```python
import torch

def _softmax(x, axis=-1):
    return torch.softmax(x, dim=axis)
def _gelu(x):
    return torch.nn.functional.gelu(x, approximate="tanh")
def _silu(x):
    return torch.nn.functional.silu(x)
def _sigmoid(x):
    return torch.sigmoid(x)
def _layernorm(x, axis=-1, eps=1e-5):
    m = x.mean(dim=axis, keepdim=True)
    v = x.var(dim=axis, keepdim=True, unbiased=False)
    return (x - m) / torch.sqrt(v + eps)
def _scatter_add(tgt, idx, src, axis=0):
    return tgt.clone().index_add_(axis, idx, src)
def _segment_sum(src, seg, n):
    out = torch.zeros((n,) + src.shape[1:], dtype=src.dtype)
    return out.index_add_(0, seg, src)
def _pad(x, pw):
    flat = tuple(v for pair in reversed(pw) for v in pair)
    return torch.nn.functional.pad(x, flat)

kernel_name = 'recurrent_scan__sliding_block__swiglu_ffn__prompt'

def setup_inputs():

    _w = (lambda a: (lambda t: t.to(torch.bfloat16) if t.is_floating_point() else t)(torch.as_tensor(a)))
    def _A_setup():
        B, S, D = 1, 2048, 640
        return {
            "x": _w((lambda *s: torch.randn(*s, dtype=torch.bfloat16) * 0.05)(B, S, D)),
            "wqkv": _w((lambda *s: torch.randn(*s, dtype=torch.bfloat16) * 0.05)(D, 3 * D)),
            "wo": _w((lambda *s: torch.randn(*s, dtype=torch.bfloat16) * 0.05)(D, D)),
        }
    _A_in = _A_setup()

    def _B_setup():
        B, S, D, F = 1, 2048, 640, 1536
        return {
            "x": _w((lambda *s: torch.randn(*s, dtype=torch.bfloat16) * 0.05)(B, S, D)),
            "w_gate": _w((lambda *s: torch.randn(*s, dtype=torch.bfloat16) * 0.05)(D, F)),
            "w_up": _w((lambda *s: torch.randn(*s, dtype=torch.bfloat16) * 0.05)(D, F)),
            "w_down": _w((lambda *s: torch.randn(*s, dtype=torch.bfloat16) * 0.05)(F, D)),
        }
    _B_in = _B_setup()

    return {
        "A_x": _A_in["x"],
        "A_wqkv": _A_in["wqkv"],
        "A_wo": _A_in["wo"],
        "B_x": _B_in["x"],
        "B_w_gate": _B_in["w_gate"],
        "B_w_up": _B_in["w_up"],
        "B_w_down": _B_in["w_down"],
    }

def reference(A_x, A_wqkv, A_wo, B_x, B_w_gate, B_w_up, B_w_down):
    def _A_ref(x, wqkv, wo):
        B, S, D = x.shape
        H = 32; Dh = D // H; W = 256
        qkv = (lambda x, *d: x.permute(*d))((x @ wqkv).reshape(B, S, 3, H, Dh), 2, 0, 3, 1, 4)
        q, k, v = qkv[0], qkv[1], qkv[2]
        scores = torch.einsum("bhqd,bhkd->bhqk", q, k) * (Dh ** -0.5)
        idx = torch.arange(S)
        mask = (idx[:, None] - idx[None, :] >= 0) & (idx[:, None] - idx[None, :] < W)
        scores = torch.where(mask[None, None], scores, -1e9)
        p = _softmax(scores, axis=-1)
        o = torch.einsum("bhqk,bhkd->bhqd", p, v)
        return (lambda x, *d: x.permute(*d))(o, 0, 2, 1, 3).reshape(B, S, D) @ wo

    def _B_ref(x, w_gate, w_up, w_down):
        g = _silu(x @ w_gate)
        u = x @ w_up
        return (g * u) @ w_down

    x = A_x
    xn = _layernorm(x, axis=-1)
    s = _A_ref(xn, A_wqkv, A_wo)
    g = _silu(_B_ref(xn, B_w_gate, B_w_up, B_w_down))
    return x + s * g
```

```python
import re

def regs_of(tok):
    tok = tok.strip()
    tok = tok.lstrip('-')
    if tok.startswith('abs(') or tok.startswith('neg('): tok = tok[4:-1]
    if tok.startswith('|'): tok = tok.strip('|')
    m = re.fullmatch(r'([vsa])(\d+)', tok)
    if m: return {m.group(1) + m.group(2)}
    m = re.fullmatch(r'([vsa])\[(\d+):(\d+)\]', tok)
    if m: return {m.group(1) + str(i) for i in range(int(m.group(2)), int(m.group(3)) + 1)}
    if tok in ('vcc', 'vcc_lo', 'vcc_hi'): return {'vcc'}
    if tok in ('exec', 'exec_lo', 'exec_hi'): return {'exec'}
    if tok == 'm0': return {'m0'}
    return set()

TRANS = ('v_exp_f32', 'v_log_f32', 'v_rcp_f32', 'v_rsq_f32', 'v_sqrt_f32', 'v_sin_f32', 'v_cos_f32')

class I:
    __slots__ = ('text', 'op', 'kind', 'rd', 'wr', 'a', 'b', 'c', 'passes', 'ws', 'store_data', 'dpp', 'trans')
    def __init__(self, text):
        self.text = text
        body = text.split(';')[0].strip()
        parts = body.split(None, 1)
        op = parts[0]
        self.op = op
        rest = parts[1] if len(parts) > 1 else ''
        ops = [o.strip() for o in re.split(r',(?![^\[]*\])', rest)] if rest else []
        mods = ''
        if ops:
            last = ops[-1].split(None, 1)
            ops[-1] = last[0]
            mods = last[1] if len(last) > 1 else ''
        self.rd = set(); self.wr = set(); self.a = self.b = self.c = set()
        self.passes = 0; self.ws = 1; self.store_data = set(); self.dpp = False; self.trans = False
        R = [regs_of(o) for o in ops]
        base = re.sub(r'_(e32|e64|dpp|sdwa)$', '', op)
        if op.startswith('v_mfma'):
            self.kind = 'mfma'
            self.wr = R[0]; self.a = R[1]; self.b = R[2]; self.c = R[3]
            self.rd = R[1] | R[2] | R[3]
            self.passes = 8 if '32x32' in op else 4
            assert 'bf16' in op
        elif op.startswith('v_'):
            self.kind = 'valu'
            self.dpp = op.endswith('_dpp')
            self.trans = base in TRANS
            self.wr = set(R[0])
            srcs = R[1:]
            if base in ('v_add_co_u32', 'v_addc_co_u32', 'v_sub_co_u32'):
                self.wr |= R[1]; srcs = R[2:]
            for r in srcs: self.rd |= r
            if base in ('v_fmac_f32', 'v_dot2c_f32_bf16', 'v_writelane_b32'): self.rd |= R[0]
            if 'permlane' in base and 'swap' in base:
                self.wr |= R[1]; self.rd |= R[0]
            assert not base.startswith('v_cmpx')
        elif op.startswith('ds_'):
            self.kind = 'ds'
            if op.startswith('ds_read') or op.startswith('ds_bpermute'):
                self.wr = R[0]
                for r in R[1:]: self.rd |= r
            else:
                for r in R: self.rd |= r
                if 'addtid' in op: self.rd |= {'m0'}
        elif op.startswith('buffer_') or op.startswith('global_'):
            self.kind = 'vmem'
            lds = ' lds' in (' ' + mods) or 'load_lds' in op
            if 'load' in op and not lds:
                self.wr = R[0]
                for r in R[1:]: self.rd |= r
            else:
                for r in R: self.rd |= r
                if lds: self.rd |= {'m0'}
                if 'store' in op and ('x4' in op or 'x3' in op):
                    self.store_data = R[0] if op.startswith('buffer_') else R[1]
        elif op.startswith('s_'):
            self.kind = 'salu'
            if op == 's_nop':
                self.ws = int(ops[0], 0) + 1
            elif op.startswith(('s_cmp', 's_bitcmp', 's_waitcnt', 's_barrier', 's_branch', 's_cbranch', 's_sleep', 's_setprio', 's_endpgm', 's_setpc')):
                for r in R: self.rd |= r
            else:
                if R: self.wr = set(R[0])
                for r in R[1:]: self.rd |= r
                if 'saveexec' in op: self.wr |= {'exec'}
        else:
            raise ValueError(text)

def isv(s): return {r for r in s if r[0] == 'v' and r != 'vcc'}
def iss(s): return {r for r in s if r[0] == 's' or r == 'vcc'}

def need(p, c):
    n = 0
    if p.kind == 'valu':
        pv = isv(p.wr); ps = iss(p.wr)
        if c.kind == 'mfma' and pv & c.rd: n = max(n, 2)
        if c.kind == 'valu':
            if p.trans and not c.trans and pv & c.rd: n = max(n, 1)
            if p.trans and c.trans and pv & c.rd: n = max(n, 1)
            if 'permlane' in c.op and pv & c.rd: n = max(n, 2)
            if ('readlane' in c.op or 'readfirstlane' in c.op) and pv & c.rd: n = max(n, 1)
            if c.dpp and pv & c.rd: n = max(n, 2)
            if ps & c.rd: n = max(n, 4 if ('readlane' in c.op or 'writelane' in c.op) else 2)
        if c.kind == 'vmem' and ps & c.rd: n = max(n, 5)
        if c.kind == 'salu' and ps & c.rd: n = max(n, 1)
    if p.kind == 'mfma':
        big = 12 if p.passes == 8 else 8
        if c.kind == 'valu' and p.wr & (c.rd | c.wr): n = max(n, big)
        if c.kind in ('vmem', 'ds') and p.wr & (c.rd | c.wr): n = max(n, big)
        if c.kind == 'mfma':
            if p.wr & (c.a | c.b): n = max(n, big)
            if p.wr & (c.c | c.wr):
                same = (p.wr == c.c and p.passes == c.passes and c.wr == c.c)
                if not same: n = max(n, big - 2)
        if c.kind == 'valu' and p.c & c.wr: n = max(n, 7 if p.passes == 8 else 3)
    if p.kind == 'salu' and 'm0' in p.wr and c.kind in ('vmem', 'ds') and 'm0' in c.rd: n = max(n, 1)
    if p.store_data and p.store_data & c.wr: n = max(n, 2)
    return n

class Tok:
    __slots__ = ('n',)
    def __init__(self, n): self.n = n

class K:
    def __init__(self):
        self.out = []
        self.win = []
        self.nvm = 0; self.dvm = 0
        self.nlg = 0; self.dlg = 0
        self.nops = 0
        self.count = {}
    def raw(self, s): self.out.append(s)
    def c(self, s): self.out.append('    ; ' + s)
    def label(self, n):
        self.out.append(n + ':')
    def _one(self, t):
        ins = I(t)
        d = 0; pad = 0
        for p in reversed(self.win):
            nd = need(p, ins)
            if nd - d > pad: pad = nd - d
            d += p.ws
            if d >= 20: break
        if pad > 0:
            self.nops += 1
            n = I(f's_nop {pad-1}')
            self.out.append('    ' + n.text); self.win.append(n)
        self.out.append('    ' + t); self.win.append(ins)
        if len(self.win) > 24: self.win = self.win[-24:]
        self.count[ins.kind] = self.count.get(ins.kind, 0) + 1
        if ins.kind == 'vmem':
            self.nvm += 1; return Tok(self.nvm)
        if ins.kind == 'ds':
            self.nlg += 1; return Tok(self.nlg)
        return None
    def __call__(self, s):
        r = None
        for x in s.strip('\n').split('\n'):
            x = x.strip()
            if not x: continue
            if x.endswith(':') or x.startswith('.'): self.out.append(x)
            elif x.startswith(';'): self.out.append('    ' + x)
            else: r = self._one(x)
        return r
    def wait(self, vm=None, lg=None):
        parts = []
        if vm is not None:
            n = vm.n if isinstance(vm, Tok) else (self.nvm if vm == 'all' else vm)
            if n > self.dvm:
                cnt = min(self.nvm - n, 63)
                parts.append(f'vmcnt({cnt})'); self.dvm = self.nvm - cnt
        if lg is not None:
            n = lg.n if isinstance(lg, Tok) else (self.nlg if lg == 'all' else lg)
            if n > self.dlg:
                cnt = min(self.nlg - n, 15)
                parts.append(f'lgkmcnt({cnt})'); self.dlg = self.nlg - cnt
        if parts: self._one('s_waitcnt ' + ' '.join(parts))
    def flush_hazards(self):
        d = 0; pad = 0
        for p in reversed(self.win):
            worst = 0
            if p.kind == 'mfma': worst = 12 if p.passes == 8 else 8
            elif p.kind == 'valu': worst = 5 if iss(p.wr) else 2
            elif p.store_data: worst = 2
            elif 'm0' in p.wr: worst = 1
            pad = max(pad, worst - d); d += p.ws
        if pad > 0: self._one(f's_nop {pad-1}')
    def snap(self): return (list(self.win), self.nvm, self.dvm, self.nlg, self.dlg)
    def restore(self, s):
        self.win = list(s[0]); self.nvm, self.dvm, self.nlg, self.dlg = s[1:]
    def text(self): return '\n'.join(self.out) + '\n'

def vr(b, n=1): return f'v{b}' if n == 1 else f'v[{b}:{b+n-1}]'
def sr(b, n=1): return f's{b}' if n == 1 else f's[{b}:{b+n-1}]'
```

```python
import sys, math
from emit import *

KN = 'recurrent_scan__sliding_block__swiglu_ffn__prompt_kernel'

FL   = 0x0
FO   = 0x800
STATS= 0x10000
WEXT = 0x20000
STAMP= 0x60000
QKV  = 0x100000
HIM  = 0x900000
OIM  = 0x1000000
W2P  = 0x1400000
WS_BYTES = 0x1800000
OOB  = 0x7f000000

L_RING = 0
L_X    = 65536
CH     = 6208
L_KV   = 65536
L_EXT  = 65536 + 68608
L_PACK = L_EXT + 10240
LDS_BYTES = L_PACK + 16384 + 16
L_ONES = L_KV + 10 * CH + 64
L_CNT = L_PACK + 16384
L_RF = 0; L_RS = 61440; L_G = 122880
assert 10 * CH + 64 + 6400 <= 68608 and LDS_BYTES <= 163840

S_X, S_U0, S_U1, S_U2, S_U3, S_U4, S_WS, S_DBG, S_WD, S_WO, S_OUT = 4, 8, 12, 16, 20, 24, 28, 32, 36, 40, 44
sI, sG, sW, sGW, sSET, sTYPE, sSTR1, sK, sXB, sW8 = 48, 49, 50, 51, 52, 53, 54, 55, 56, 57
sT0, sT1, sT2, sT3, sT4, sT5 = 58, 59, 60, 61, 62, 63
sKA = 64
sFUE, sFUL, sSIG2, sFLAG, sPOLL, sM0W, sM0X, sQF = 84, 85, 3, 64, 65, 66, 67, 68
sHS1, sHS3, sQS1, sQS2, sPKS0, sPKS1, sPKD0, sPKD1 = 69, 70, 71, 72, 73, 74, 75, 76
sAI, sAJ, sR2, sC2 = 77, 78, 79, 80
sCNT = 81
S_TMP = 88
sSTT = 86
sST0 = 88

vL = 0
vWR0, vWR1, vWR2 = 1, 2, 3
vD10, vD11, vD2, vD30, vD31 = 4, 5, 6, 7, 8
vP = 9
vST = 10
vMEAN = 12
vRS, vC1, vHO, vQO = 16, 17, 18, 19
vT = 20
vFR = 32
vA0 = 48
vA1 = 80
vX = 96

aK0, aK1, aV, aO0, aO1, aL16, aL16b, aL8 = 1, 2, 3, 4, 5, 6, 7, 3
vQ = 80; vM = 88; vS0 = 48; vS1 = 64; vO = 96; vPP = 32
vKB = ((20, 24), (28, 26)); vVB = (40, 12)
vACC = 32
sWB, sAB, sPL2, sFO = 54, 55, 56, 57
sAM = 8
LOG2E = 1.4426950408889634
def f2u(x):
    import struct
    return struct.unpack('<I', struct.pack('<f', x))[0]

class Cfg:
    stop = 'end'
    stamps = False
    rot = 0
    poll0_issue = 6; poll0_check = 8; ext_use = 10
    pack_issue = 8; pack_use = 11
    f1_at = 18; poll1_issue = 21; poll1_check = 23
    side = 4
    spin = 4000
    g2map = 0
    ones_at = 17
    bh_at = 4

class Gen:
    def __init__(self, cfg):
        self.cfg = cfg
        self.k = K()
        self.tail = []
        self.nst = 0
        self.uid = 0

    def stamp(self):
        if not self.cfg.stamps: return
        k = self.k
        if self.nst > 0: k(f's_mov_b32 s{sST0 + self.nst - 1}, s{sSTT}')
        k(f's_memtime s[{sSTT}:{sSTT+1}]')
        self.nst += 1
        assert self.nst <= 14
    def srd(self, d, p, size, off=None):
        k = self.k
        if off is None:
            k(f's_mov_b32 s{d}, s{p}\ns_and_b32 s{d+1}, s{p+1}, 0xffff\ns_mov_b32 s{d+2}, {size}')
        else:
            k(f's_add_u32 s{d}, s{p}, s{off}\ns_addc_u32 s{d+1}, s{p+1}, 0\ns_and_b32 s{d+1}, s{d+1}, 0xffff\ns_sub_u32 s{d+2}, {size}, s{off}')
        k(f's_mov_b32 s{d+3}, 0x20000')
    def poll_check(self, tok, vd, voff, srd, soff, thr, role_sgpr=None, wide=False):
        k = self.k; self.uid += 1; u = self.uid
        k.wait(vm=tok)
        if role_sgpr is not None:
            k(f's_cmp_lg_u32 s{role_sgpr}, 0\ns_cbranch_scc1 L_pok{u}')
        mn = f'v_min3_u32 v{vd}, v{vd}, v{vd+1}, v{vd+2}\nv_min_u32 v{vd}, v{vd}, v{vd+3}\n' if wide else ''
        ld = f'buffer_load_dwordx4 v[{vd}:{vd+3}]' if wide else f'buffer_load_dword v{vd}'
        k(f'{mn}v_cmp_le_u32 vcc, {thr}, v{vd}\ns_cmp_eq_u64 vcc, -1\ns_cbranch_scc0 L_pslow{u}')
        k.label(f'L_pok{u}')
        def slow(k):
            k.label(f'L_pslow{u}')
            k(f's_mov_b32 s{sCNT}, 0')
            k.label(f'L_ploop{u}')
            k(f's_sleep 2\n{ld}, v{voff}, s[{srd}:{srd+3}], {soff} offen sc1\ns_waitcnt vmcnt(0)')
            k(f'{mn}v_cmp_le_u32 vcc, {thr}, v{vd}\ns_cmp_eq_u64 vcc, -1\ns_cbranch_scc1 L_pok{u}')
            k(f's_add_u32 s{sCNT}, s{sCNT}, 1\ns_cmp_lt_u32 s{sCNT}, {self.cfg.spin}\ns_cbranch_scc1 L_ploop{u}\ns_branch L_pok{u}')
        self.tail.append(slow)
    def flag_store(self, val, soff, t=vT+10):
        k = self.k
        k(f'v_mov_b32 v{t}, {val}\nv_mov_b32 v{t+1}, 0\ns_mov_b64 exec, 1')
        r = k(f'buffer_store_dword v{t}, v{t+1}, s[{S_WS}:{S_WS+3}], s{soff} offen sc1')
        k('s_mov_b64 exec, -1')
        return r

    def prologue(self):
        k = self.k; c = self.cfg
        k('s_cmp_ge_u32 s2, 256\ns_cbranch_scc1 L_end')
        k(f's_load_dwordx16 s[{sKA}:{sKA+15}], s[0:1], 0\ns_load_dwordx4 s[{sKA+16}:{sKA+19}], s[0:1], 64')
        if c.stamps: k(f's_memtime s[{sSTT}:{sSTT+1}]'); self.nst = 1
        k(f's_getpc_b64 s[{sT0}:{sT0+1}]')
        k.label('L_pc')
        k(f's_lshr_b32 s{sT2}, s2, 3\ns_lshl_b32 s{sT2}, s{sT2}, 11\nv_and_b32 v1, 15, v0\nv_lshl_add_u32 v1, v1, 7, s{sT2}\nv_min_u32 v1, L_end-L_pc, v1')
        k(f'v_cmp_gt_u32 vcc, 16, v0\ns_and_saveexec_b64 s[{sT2}:{sT2+1}], vcc\ns_cbranch_execz L_nopf')
        k(f'global_load_dword v{vX+159}, v1, s[{sT0}:{sT0+1}]')
        k.label('L_nopf')
        k('s_mov_b64 exec, -1')
        k(f'v_lshrrev_b32 v1, 6, v0\nv_and_b32 v{vL}, 63, v0\nv_readfirstlane_b32 s{sW}, v1')
        k(f'''s_and_b32 s{sI}, s2, 1
        s_lshl_b32 s{sI}, s{sI}, 3
        s_bfe_u32 s{sT0}, s2, 0x30003
        s_add_u32 s{sI}, s{sI}, s{sT0}
        s_bfe_u32 s{sG}, s2, 0x20001
        s_lshl_b32 s{sG}, s{sG}, 2
        s_lshr_b32 s{sT0}, s2, 6
        s_add_u32 s{sG}, s{sG}, s{sT0}
        s_and_b32 s{sGW}, s{sW}, 3
        s_lshr_b32 s{sSET}, s{sW}, 2
        s_and_b32 s{sTYPE}, s{sG}, 1
        s_lshl_b32 s{sW8}, s{sW}, 3''')
        k(f'''s_lshr_b32 s{sT0}, s{sG}, 2
        s_mul_i32 s{sT0}, s{sT0}, 6
        s_bfe_u32 s{sT1}, s{sG}, 0x10001
        s_add_u32 s{sFUE}, s{sT0}, s{sT1}
        s_and_b32 s{sT1}, s{sG}, 3
        s_add_u32 s{sFUL}, s{sT0}, s{sT1}
        s_add_u32 s{sFUL}, s{sFUL}, 2
        s_add_u32 s{sSIG2}, s{sG}, 16
        s_min_u32 s{sSIG2}, s{sSIG2}, 29
        s_cmp_eq_u32 s{sTYPE}, 0
        s_cselect_b32 s{sSTR1}, 3072, 0
        s_cselect_b32 s{sT0}, 0, 3840
        s_or_b32 s{sSTR1}, s{sSTR1}, s{sT0}''')
        if c.rot:
            k(f's_lshl1_add_u32 s{sT0}, s{sG}, s{sI}\ns_and_b32 s{sT0}, s{sT0}, 7\ns_lshl_b32 s{sK}, s{sT0}, 6')
        else:
            k(f's_mov_b32 s{sK}, 0')
        t = vT
        k(f'''v_lshrrev_b32 v{t}, 3, v{vL}
        v_and_b32 v{t+1}, 7, v{vL}
        v_lshlrev_b32 v{t+1}, 4, v{t+1}
        v_and_b32 v{t+2}, 2, v{t}
        v_lshlrev_b32 v{t+2}, 5, v{t+2}
        v_xor_b32 v{t+2}, v{t+1}, v{t+2}
        v_mad_u32_u24 v{vD10}, v{t}, s{sSTR1}, v{t+2}
        v_xor_b32 v{vD11}, 32, v{vD10}
        v_mul_u32_u24 v{vD2}, 3840, v{t}
        v_add_u32 v{vD2}, v{vD2}, v{t+2}
        v_mul_u32_u24 v{vD30}, 3072, v{t}
        v_add_u32 v{vD30}, v{vD30}, v{t+2}
        v_xor_b32 v{vD31}, 32, v{vD30}''')
        k(f'''v_lshrrev_b32 v{t+3}, 1, v{t}
        v_lshlrev_b32 v{t+3}, 4, v{t+3}
        v_xor_b32 v{t+3}, v{t+1}, v{t+3}
        v_mul_u32_u24 v{vA1+4}, 1280, v{t}
        v_add_u32 v{vA1+4}, v{vA1+4}, v{t+3}
        v_xor_b32 v{vA1+5}, 64, v{vA1+4}''')
        k('s_waitcnt lgkmcnt(0)')
        P = lambda n: sKA + 2 * n
        self.srd(S_X, P(0), 2048 * 1280)
        k(f's_lshl_b32 s{sT0}, s{sFUL}, 7')
        self.srd(S_U3, P(4), 640 * 3072, sT0); self.srd(S_U4, P(5), 640 * 3072, sT0)
        k(f's_lshl_b32 s{sT0}, s{sSIG2}, 7')
        self.srd(S_U2, P(1), 640 * 3840, sT0)
        k(f'''s_and_b32 s{sT1}, s{sG}, 14
        s_cmp_eq_u32 s{sTYPE}, 0
        s_cselect_b32 s{sT0}, s{sFUE}, s{sT1}
        s_cselect_b32 s{sT1}, s{sFUE}, s{sG}
        s_cselect_b64 s[{sT2}:{sT2+1}], s[{P(4)}:{P(4)+1}], s[{P(1)}:{P(1)+1}]
        s_cselect_b64 s[{sT4}:{sT4+1}], s[{P(5)}:{P(5)+1}], s[{P(1)}:{P(1)+1}]
        s_lshl_b32 s{sT0}, s{sT0}, 7
        s_lshl_b32 s{sT1}, s{sT1}, 7
        s_mul_i32 s{sXB}, s{sSTR1}, 640''')
        self.srd(S_U0, sT2, f's{sXB}', sT0); self.srd(S_U1, sT4, f's{sXB}', sT1)
        k(f's_lshl_b32 s{sT0}, s{sI}, 3\ns_add_u32 s{sT0}, s{sT0}, s{sW}\ns_mul_i32 s{sXB}, s{sT0}, {16*1280}')
        self.srd(S_WS, P(9), WS_BYTES)
        self.srd(S_DBG, P(8), 256)
        self.srd(S_WD, P(6), 1536 * 1280)
        self.srd(S_WO, P(2), 640 * 1280)
        self.srd(S_OUT, P(7), 2048 * 1280)
        k(f's_lshl_b32 s{sM0W}, s{sW}, 10\ns_lshl_b32 s{sM0X}, s{sW}, 11')

    def dma_stage(self, n):
        k = self.k; slot = (n & 3) * 16384
        steps = []
        def adv():
            k(f's_add_u32 s{sK}, s{sK}, 64\ns_cmp_eq_u32 s{sK}, 640\ns_cselect_b32 s{sK}, 0, s{sK}')
        def w2(su0, su1, v0, v1, stride):
            def a():
                k(f's_add_u32 m0, s{sM0X}, {L_RING + slot}\ns_add_u32 s{sT0}, s{sK}, s{sW8}\ns_mul_i32 s{sT0}, s{sT0}, {stride}')
                return k(f'buffer_load_dwordx4 v{v0}, s[{su0}:{su0+3}], s{sT0} offen lds')
            def b():
                k(f's_add_u32 m0, s{sM0X}, {L_RING + slot + 1024}\ns_add_u32 s{sT0}, s{sK}, s{sW8}\ns_mul_i32 s{sT0}, s{sT0}, {stride}')
                r = k(f'buffer_load_dwordx4 v{v1}, s[{su1}:{su1+3}], s{sT0} offen lds')
                adv(); return r
            return [a, b]
        if n < 10:
            def xa():
                k(f's_add_u32 m0, s{sM0X}, {L_X + slot}\ns_lshl1_add_u32 s{sT0}, s{sK}, s{sXB}')
                return k(f'buffer_load_dwordx4 v{vA1+4}, s[{S_X}:{S_X+3}], s{sT0} offen lds')
            def xb():
                k(f's_add_u32 m0, s{sM0X}, {L_X + slot + 1024}\ns_lshl1_add_u32 s{sT0}, s{sK}, s{sXB}\ns_add_u32 s{sT0}, s{sT0}, 10240')
                return k(f'buffer_load_dwordx4 v{vA1+5}, s[{S_X}:{S_X+3}], s{sT0} offen lds')
            steps = [xa, xb] + w2(S_U0, S_U1, vD10, vD11, f's{sSTR1}')
        elif n < 15:
            for e in range(2):
                def a(e=e):
                    k(f's_add_u32 m0, s{sM0W}, {L_RING + slot + e*8192}\ns_add_u32 s{sT0}, s{sK}, s{sW8}\ns_mul_i32 s{sT0}, s{sT0}, 3840')
                    r = k(f'buffer_load_dwordx4 v{vD2}, s[{S_U2}:{S_U2+3}], s{sT0} offen lds')
                    adv(); return r
                steps.append(a)
        else:
            steps = w2(S_U3, S_U4, vD30, vD31, 3072)
        def wrap(f, last):
            def g():
                r = f()
                if last: self.stok[n] = r
            return g
        return [wrap(f, j == len(steps) - 1) for j, f in enumerate(steps)]

    def phase0(self):
        k = self.k; c = self.cfg
        self.stok = {}
        X = vX
        k(f's_cmp_lg_u32 s{sSET}, 0\ns_cbranch_scc1 L_p0b')
        pre = k.snap()
        k(f's_lshl_b32 s{sT0}, s2, 3\ns_add_u32 s{sT0}, s{sT0}, s{sW}\ns_cmp_eq_u32 s{sT0}, 3\ns_cselect_b32 s{sPOLL}, 0, {OOB}\ns_cbranch_scc0 L_noclr')
        k(f'v_lshlrev_b32 v{X+60}, 4, v{vL}\nv_mov_b32 v{X+64}, 0\nv_mov_b32 v{X+65}, 0\nv_mov_b32 v{X+66}, 0\nv_mov_b32 v{X+67}, 0')
        s0 = k.snap()
        for q in range(4):
            k(f'buffer_store_dwordx4 v[{X+64}:{X+67}], v{X+60}, s[{S_WS}:{S_WS+3}], 0 offen offset:{q*1024} sc1')
        k.nvm = s0[1]
        k.label('L_noclr')
        k(f'''s_and_b32 s{sT0}, s{sI}, 1
        s_mul_i32 s{sT1}, s{sT0}, 3
        s_add_u32 s{sT1}, s{sT1}, s{sW}
        s_add_u32 s{sT0}, s{sT0}, s{sW}
        s_mov_b64 s[{S_TMP}:{S_TMP+1}], s[{S_U0}:{S_U0+1}]
        s_mov_b32 s{S_TMP+2}, s{S_U0+2}
        s_mov_b32 s{sT2}, s{sSTR1}
        s_mov_b32 s{sT3}, 0''')
        for u, su, stride, base in ((1, S_U1, f's{sSTR1}', 1024), (2, S_U2, 3840, 8192), (3, S_U3, 3072, 4096), (4, S_U4, 3072, 5120)):
            k(f'''s_cmp_eq_u32 s{sT1}, {u}
            s_cselect_b64 s[{S_TMP}:{S_TMP+1}], s[{su}:{su+1}], s[{S_TMP}:{S_TMP+1}]
            s_cselect_b32 s{S_TMP+2}, s{su+2}, s{S_TMP+2}
            s_cselect_b32 s{sT2}, {stride}, s{sT2}
            s_cselect_b32 s{sT3}, {base}, s{sT3}''')
        k(f'''s_cmp_lt_u32 s{sT0}, 3
        s_cselect_b32 s{S_TMP+2}, s{S_TMP+2}, 0
        s_cselect_b32 s{sT5}, 0, {OOB}
        s_mov_b32 s{S_TMP+3}, 0x20000
        s_lshr_b32 s{sT0}, s{sI}, 1
        s_mul_i32 s{sT4}, s{sT0}, 80
        s_mul_i32 s{sT4}, s{sT4}, s{sT2}
        v_lshrrev_b32 v{X+60}, 3, v{vL}
        v_and_b32 v{X+61}, 7, v{vL}
        v_lshlrev_b32 v{X+61}, 4, v{X+61}
        v_mad_u32_u24 v{X+60}, v{X+60}, s{sT2}, v{X+61}
        s_lshl_b32 s{sT2}, s{sT2}, 3''')
        lt = []
        for t in range(10):
            lt.append(k(f'buffer_load_dwordx4 v[{X+4*t}:{X+4*t+3}], v{X+60}, s[{S_TMP}:{S_TMP+3}], s{sT4} offen'))
            if t < 9: k(f's_add_u32 s{sT4}, s{sT4}, s{sT2}')
        k(f'''s_mul_i32 s{sT4}, s{sG}, 10240
        s_add_u32 s{sT5}, s{sT5}, s{sT4}
        s_add_u32 s{sT5}, s{sT5}, s{sT3}
        s_add_u32 s{sT5}, s{sT5}, {WEXT}
        s_lshl_b32 s{sT4}, s{sT0}, 8
        s_and_b32 s{sT2}, s{sT4}, 1024
        s_cmp_eq_u32 s{sT1}, 2
        s_cselect_b32 s{sT2}, 0, s{sT2}
        s_add_u32 s{sT4}, s{sT4}, s{sT2}
        s_add_u32 s{sQF}, s{sT5}, s{sT4}
        s_and_b32 s{sT0}, s{sT0}, 1
        s_lshl_b32 s{sT0}, s{sT0}, 6
        s_bfe_u32 s{sT3}, s{sT3}, 0x1000a
        s_lshl_b32 s{sT3}, s{sT3}, 5
        s_or_b32 s{sT0}, s{sT0}, s{sT3}
        v_lshrrev_b32 v{X+62}, 2, v{vL}
        v_and_b32 v{X+62}, 12, v{X+62}
        v_or_b32 v{X+61}, v{X+61}, v{X+62}
        v_xor_b32 v{X+61}, s{sT0}, v{X+61}
        v_and_b32 v{X+62}, 8, v{vL}
        v_lshl_add_u32 v{X+61}, v{X+62}, 4, v{X+61}''')
        for n in (0, 1):
            for f in self.dma_stage(n): f()
        late = self.dma_stage(2) + self.dma_stage(3)
        acc = X + 48
        for t in range(10):
            k.wait(vm=lt[t])
            for d in range(4):
                src = X + 4 * t + d
                if t == 0:
                    k(f'v_lshlrev_b32 v{acc+2*d}, 16, v{src}\nv_and_b32 v{acc+2*d+1}, 0xffff0000, v{src}')
                else:
                    k(f'v_lshlrev_b32 v{X+56}, 16, v{src}\nv_and_b32 v{X+57}, 0xffff0000, v{src}\nv_add_f32 v{acc+2*d}, v{acc+2*d}, v{X+56}\nv_add_f32 v{acc+2*d+1}, v{acc+2*d+1}, v{X+57}')
            if t == 0:
                k(f'v_mov_b32 v{X+58}, 1\nv_mov_b32 v{X+59}, 0\ns_mov_b64 exec, 1')
                k(f'buffer_store_dword v{X+58}, v{X+59}, s[{S_DBG}:{S_DBG+3}], s{sPOLL} offen sc1')
                k('s_mov_b64 exec, -1')
            if t >= 2: late.pop(0)()
        assert not late
        for e in range(4): k(f'v_permlane32_swap_b32 v{acc+e}, v{acc+e+4}')
        for e in range(4): k(f'v_add_f32 v{acc+e}, v{acc+e}, v{acc+e+4}')
        for e in range(2): k(f'v_permlane16_swap_b32 v{acc+e}, v{acc+e+2}')
        for e in range(2): k(f'v_add_f32 v{acc+e}, v{acc+e}, v{acc+e+2}')
        for e in range(2): k(f'v_add_f32_dpp v{acc+e+2}, v{acc+e}, v{acc+e} row_ror:8 row_mask:0xf bank_mask:0xf')
        k(f'''v_cvt_pk_bf16_f32 v{acc}, v{acc+2}, v{acc+3}
        v_lshlrev_b32 v{acc+4}, 16, v{acc}
        v_and_b32 v{acc+5}, 0xffff0000, v{acc}
        v_sub_f32 v{acc+2}, v{acc+2}, v{acc+4}
        v_sub_f32 v{acc+3}, v{acc+3}, v{acc+5}
        v_cvt_pk_bf16_f32 v{acc+1}, v{acc+2}, v{acc+3}
        s_mov_b32 s{sT0}, 0xff00ff00
        s_mov_b32 s{sT1}, 0xff00ff00
        v_cndmask_b32 v{acc}, v{acc}, v{acc+1}, s[{sT0}:{sT1}]''')
        ta = k(f'buffer_store_dword v{acc}, v{X+61}, s[{S_WS}:{S_WS+3}], s{sQF} offen sc1')
        relA = {n: k.nvm - self.stok[n].n for n in range(4)}
        k.flush_hazards()
        k('s_branch L_p0j')
        k.restore(pre)
        k.label('L_p0b')
        k(f'''s_lshl_b32 s{sT0}, s{sI}, 4
        s_add_u32 s{sT0}, s{sT0}, s{sG}
        s_lshl_b32 s{sT0}, s{sT0}, 2
        s_add_u32 s{sT0}, s{sT0}, s{sGW}
        s_mul_i32 s{sT1}, s{sT0}, 2560
        s_lshl_b32 s{sQF}, s{sT0}, 4
        s_add_u32 s{sQF}, s{sQF}, {STATS}
        v_lshrrev_b32 v{X+62}, 5, v{vL}
        v_mul_u32_u24 v{X+61}, 1280, v{X+62}
        v_and_b32 v{X+63}, 31, v{vL}
        v_lshl_add_u32 v{X+60}, v{X+63}, 4, v{X+61}
        v_lshl_add_u32 v{X+61}, v{X+63}, 3, v{X+61}
        v_lshlrev_b32 v{X+62}, 3, v{X+62}''')
        k(f'buffer_load_dwordx4 v[{X}:{X+3}], v{X+60}, s[{S_X}:{S_X+3}], s{sT1} offen')
        k(f'buffer_load_dwordx4 v[{X+4}:{X+7}], v{X+60}, s[{S_X}:{S_X+3}], s{sT1} offen offset:512')
        tl = k(f'buffer_load_dwordx2 v[{X+8}:{X+9}], v{X+61}, s[{S_X}:{S_X+3}], s{sT1} offen offset:1024')
        for n in (0, 1):
            for f in self.dma_stage(n): f()
        late = self.dma_stage(2) + self.dma_stage(3)
        k.wait(vm=tl)
        U = X + 16
        for d in range(10):
            k(f'v_lshlrev_b32 v{U+2*d}, 16, v{X+d}\nv_and_b32 v{U+2*d+1}, 0xffff0000, v{X+d}')
        def red(a, b):
            k(f'v_add_f32 v{a}, v{a}, v{b}')
            for ctl in ('quad_perm:[1,0,3,2]', 'quad_perm:[2,3,0,1]', 'row_half_mirror', 'row_mirror'):
                k(f'v_add_f32_dpp v{a}, v{a}, v{a} {ctl} row_mask:0xf bank_mask:0xf')
                late.pop(0)()
            k(f'v_mov_b32 v{b}, v{a}\nv_permlane16_swap_b32 v{a}, v{b}\nv_add_f32 v{a}, v{a}, v{b}')
        a, b = X + 10, X + 11
        k(f'v_add_f32 v{a}, v{U}, v{U+1}\nv_add_f32 v{b}, v{U+2}, v{U+3}')
        for d in range(2, 10): k(f'v_add_f32 v{a}, v{a}, v{U+2*d}\nv_add_f32 v{b}, v{b}, v{U+2*d+1}')
        red(a, b)
        m = X + 12
        k(f'v_mul_f32 v{m}, {hex(f2u(-1.0/640))}, v{a}')
        for d in range(20): k(f'v_add_f32 v{U+d}, v{U+d}, v{m}')
        k(f'v_mul_f32 v{a}, v{U}, v{U}\nv_mul_f32 v{b}, v{U+1}, v{U+1}')
        for d in range(1, 10): k(f'v_fmac_f32 v{a}, v{U+2*d}, v{U+2*d}\nv_fmac_f32 v{b}, v{U+2*d+1}, v{U+2*d+1}')
        red(a, b)
        assert not late
        k(f'''v_mov_b32 v{m+1}, {hex(f2u(1e-5))}
        v_fmac_f32 v{m+1}, {hex(f2u(1.0/640))}, v{a}
        v_cvt_pk_bf16_f32 v{m}, v{m}, v{m}
        s_mov_b32 exec_lo, 1
        s_mov_b32 exec_hi, 1''')
        tb = k(f'buffer_store_dwordx2 v[{m}:{m+1}], v{X+62}, s[{S_WS}:{S_WS+3}], s{sQF} offen sc1')
        k('s_mov_b64 exec, -1')
        relB = {n: k.nvm - self.stok[n].n for n in range(4)}
        assert all(relA[n] >= relB[n] for n in range(4)) and relA[2] == relB[2] and relA[3] == relB[3]
        k.flush_hazards()
        k.label('L_p0j')
        self.p0tok = tb

    def consts(self):
        k = self.k; t = vT
        k(f'''v_bfe_u32 v{t}, v{vL}, 2, 2
        v_and_b32 v{t+1}, 1, v{vL}
        v_lshlrev_b32 v{t+1}, 4, v{t+1}
        v_and_b32 v{t+2}, 2, v{vL}
        v_lshl_add_u32 v{t+1}, v{t+2}, 2, v{t+1}
        v_lshl_add_u32 v{t+1}, v{t}, 7, v{t+1}
        v_bfe_u32 v{t+2}, v{vL}, 4, 1
        v_and_b32 v{t+3}, 2, v{t}
        v_or_b32 v{t+3}, v{t+3}, v{t+2}
        s_lshl_b32 s{sT0}, s{sSET}, 1
        v_xor_b32 v{t+3}, s{sT0}, v{t+3}
        v_lshl_add_u32 v{t+1}, v{t+3}, 5, v{t+1}
        v_lshrrev_b32 v{t+4}, 4, v{vL}
        v_lshl_add_u32 v{vWR0}, v{t+4}, 10, v{t+1}
        v_xor_b32 v{vWR1}, 32, v{vWR0}
        v_lshrrev_b32 v{t+4}, 5, v{vL}
        v_lshl_add_u32 v{vWR2}, v{t+4}, 10, v{t+1}''')
        k(f'''v_and_b32 v{t}, 31, v{vL}
        v_bfe_u32 v{t+1}, v{vL}, 1, 3
        v_xor_b32 v{t+1}, v{t+1}, v{t+4}
        v_lshlrev_b32 v{t+1}, 4, v{t+1}
        v_lshl_add_u32 v{t+1}, v{t}, 7, v{t+1}
        s_lshl_b32 s{sT0}, s{sGW}, 12
        s_add_u32 s{sT0}, s{sT0}, {L_X}
        v_add_u32 v{vA1}, s{sT0}, v{t+1}
        v_xor_b32 v{vA1+1}, 32, v{vA1}
        v_xor_b32 v{vA1+2}, 64, v{vA1}
        v_xor_b32 v{vA1+3}, 0x60, v{vA1}''')
        k(f'''v_lshlrev_b32 v{vQO}, 11, v{t+4}
        v_lshl_add_u32 v{vQO}, v{t}, 4, v{vQO}
        v_bfe_u32 v{t+1}, v{vL}, 4, 1
        v_mul_u32_u24 v{vHO}, 49152, v{t+1}
        v_lshl_add_u32 v{vHO}, v{t+4}, 8, v{vHO}
        v_and_b32 v{t+1}, 15, v{vL}
        v_lshl_add_u32 v{vHO}, v{t+1}, 4, v{vHO}''')
        k(f'''s_lshl_b32 s{sT0}, s{sI}, 2
        s_add_u32 s{sT0}, s{sT0}, s{sGW}
        s_mul_i32 s{sT0}, s{sT0}, {2*49152}
        s_lshl_b32 s{sT1}, s{sSET}, 10
        s_add_u32 s{sT0}, s{sT0}, s{sT1}
        s_add_u32 s{sT0}, s{sT0}, {HIM}
        s_lshl_b32 s{sT1}, s{sFUE}, 11
        s_add_u32 s{sHS1}, s{sT0}, s{sT1}
        s_lshl_b32 s{sT1}, s{sFUL}, 11
        s_add_u32 s{sHS3}, s{sT0}, s{sT1}
        s_mul_i32 s{sT0}, s{sI}, {240*2048}
        s_lshl_b32 s{sT1}, s{sGW}, 9
        s_add_u32 s{sT0}, s{sT0}, s{sT1}
        s_lshl_b32 s{sT1}, s{sSET}, 13
        s_add_u32 s{sT0}, s{sT0}, s{sT1}
        s_add_u32 s{sT0}, s{sT0}, {QKV}
        s_and_b32 s{sT1}, s{sG}, 14
        s_lshl_b32 s{sT1}, s{sT1}, 14
        s_add_u32 s{sQS1}, s{sT0}, s{sT1}
        s_lshl_b32 s{sT1}, s{sSIG2}, 14
        s_add_u32 s{sQS2}, s{sT0}, s{sT1}
        s_cmp_lt_u32 s{sG}, 14
        s_cselect_b32 s{sQS2}, s{sQS2}, {OOB}
        s_cmp_lt_u32 s{sG}, 10
        s_cselect_b32 s{sQF}, {hex(f2u(LOG2E / math.sqrt(20.0)))}, 1.0
        s_lshl_b32 s{sT0}, s{sI}, 7
        s_lshl2_add_u32 s{sT0}, s{sG}, s{sT0}
        s_cmp_eq_u32 s{sW}, 0
        s_cselect_b32 s{sFLAG}, s{sT0}, {OOB}
        s_cselect_b32 s{sPOLL}, 0, {OOB}''')
        k(f'''s_bfe_u32 s{sAI}, s2, 0x40003
        s_and_b32 s{sT0}, s2, 7
        s_lshr_b32 s{sT1}, s2, 7
        s_lshl1_add_u32 s{sAJ}, s{sT0}, s{sT1}''')
        if self.cfg.g2map == 0:
            k(f's_bfe_u32 s{sT1}, s2, 0x20003\ns_lshl2_add_u32 s{sR2}, s{sT0}, s{sT1}\ns_lshr_b32 s{sC2}, s2, 5')
        else:
            k(f'''s_lshr_b32 s{sT1}, s{sT0}, 1
            s_bfe_u32 s{sT2}, s2, 0x30003
            s_lshl3_add_u32 s{sR2}, s{sT1}, s{sT2}
            s_and_b32 s{sT1}, s2, 1
            s_lshr_b32 s{sT2}, s2, 6
            s_lshl2_add_u32 s{sC2}, s{sT1}, s{sT2}''')

    def job_f0(self):
        k = self.k; J = []
        def a():
            k(f'v_mov_b32 v{vA1+6}, 0')
            self.t_dbg = k(f'buffer_load_dword v{vP}, v{vA1+6}, s[{S_DBG}:{S_DBG+3}], s{sPOLL} offen sc1')
        def b():
            self.poll_check(self.t_dbg, vP, vA1+6, S_DBG, f's{sPOLL}', 1, sW)
            self.flag_store(1, sFLAG)
        return a, b
    def job_poll0(self):
        k = self.k
        def a():
            k(f'''v_and_b32 v{vT+8}, 15, v{vL}
            s_lshl_b32 s{sT1}, s{sI}, 7
            s_lshl_b32 s{sT2}, s{sG}, 2
            v_lshl_add_u32 v{vT+9}, v{vT+8}, 2, s{sT1}
            v_lshl_add_u32 v{vT+8}, v{vT+8}, 7, s{sT2}
            s_mov_b32 s{sT2}, 0xffff0000
            s_mov_b32 s{sT3}, 0xffff0000
            v_cndmask_b32 v{vA1+6}, v{vT+9}, v{vT+8}, s[{sT2}:{sT3}]''')
            self.t_p0 = k(f'buffer_load_dword v{vP}, v{vA1+6}, s[{S_WS}:{S_WS+3}], s{sPOLL} offen sc1')
        def b():
            self.poll_check(self.t_p0, vP, vA1+6, S_WS, f's{sPOLL}', 1, sW)
        return a, b
    def job_extload(self):
        k = self.k
        def a():
            k(f'''v_lshlrev_b32 v{vT+8}, 4, v{vL}
            s_mul_i32 s{sT1}, s{sG}, 10240
            s_add_u32 s{sT1}, s{sT1}, s{sM0W}
            s_add_u32 s{sT1}, s{sT1}, {WEXT}
            s_add_u32 m0, s{sM0W}, {L_EXT}''')
            k(f'buffer_load_dwordx4 v{vT+8}, s[{S_WS}:{S_WS+3}], s{sT1} offen sc1 lds')
        def b():
            k(f'''s_and_b32 s{sT2}, s{sM0W}, 1024
            s_mul_i32 s{sT1}, s{sG}, 10240
            s_add_u32 s{sT1}, s{sT1}, s{sT2}
            s_add_u32 s{sT1}, s{sT1}, {WEXT + 8192}
            s_add_u32 m0, s{sT2}, {L_EXT + 8192}''')
            k(f'buffer_load_dwordx4 v{vT+8}, s[{S_WS}:{S_WS+3}], s{sT1} offen sc1 lds')
        def c():
            k(f'''v_and_b32 v{vT+9}, 31, v{vL}
            v_lshlrev_b32 v{vT+9}, 3, v{vT+9}
            s_lshl_b32 s{sT1}, s{sI}, 2
            s_add_u32 s{sT1}, s{sT1}, s{sGW}
            s_lshl_b32 s{sT1}, s{sT1}, 8
            s_add_u32 s{sT1}, s{sT1}, {STATS}''')
            self.t_ext = k(f'buffer_load_dwordx2 v[{vST}:{vST+1}], v{vT+9}, s[{S_WS}:{S_WS+3}], s{sT1} offen sc1')
        return [a, b, c]
    def stats_prep(self):
        k = self.k
        k(f'v_rsq_f32 v{vRS}, v{vST+1}')
        for e in range(4): k(f'v_mov_b32 v{vMEAN+e}, v{vST}')
        k(f'v_mul_f32 v{vC1}, {hex(f2u(-LOG2E))}, v{vRS}')
    def job_gu(self, acc, soff, imm):
        k = self.k; J = []
        out = vT
        def one(s): J.append(lambda: k(s))
        for e0 in (0, 4):
            for e in range(e0, e0 + 4): one(f'v_mul_f32 v{acc+8+e}, v{acc+e}, v{acc+8+e}')
            for e in range(e0, e0 + 4): one(f'v_mul_f32 v{acc+e}, v{vC1}, v{acc+e}')
            for e in range(e0, e0 + 4): one(f'v_exp_f32 v{acc+e}, v{acc+e}')
            for e in range(e0, e0 + 4): one(f'v_fma_f32 v{acc+e}, v{acc+e}, v{vST+1}, v{vST+1}')
            for e in range(e0, e0 + 4): one(f'v_rcp_f32 v{acc+e}, v{acc+e}')
            for e in range(e0, e0 + 4): one(f'v_mul_f32 v{acc+e}, v{acc+e}, v{acc+8+e}')
            for e in range(e0, e0 + 4, 2): one(f'v_cvt_pk_bf16_f32 v{out+e//2}, v{acc+e}, v{acc+e+1}')
        def st(): self.t_store = k(f'buffer_store_dwordx4 v[{out}:{out+3}], v{vHO}, s[{S_WS}:{S_WS+3}], s{soff} offen offset:{imm} sc1')
        J.append(st)
        return J
    def job_qkv(self, acc, scale, soff, offA, offB):
        k = self.k; J = []
        def one(s): J.append(lambda: k(s))
        for half, off in ((0, offA), (8, offB)):
            out = vT
            for e in range(8): one(f'v_mul_f32 v{acc+half+e}, v{scale}, v{acc+half+e}')
            for e in range(0, 8, 2): one(f'v_cvt_pk_bf16_f32 v{out+e//2}, v{acc+half+e}, v{acc+half+e+1}')
            def st(off=off, out=out):
                k(f's_add_u32 s{sT1}, s{soff}, {off}')
                self.t_store = k(f'buffer_store_dwordx4 v[{out}:{out+3}], v{vQO}, s[{S_WS}:{S_WS+3}], s{sT1} offen sc1')
            J.append(st)
        return J
    def job_pack_issue(self):
        k = self.k
        def a():
            k(f'''s_lshl_b32 s{sT1}, s{sW}, 8
            s_add_u32 s{sT1}, s{sT1}, s2
            s_mul_i32 s{sT2}, s{sT1}, 52429
            s_lshr_b32 s{sT2}, s{sT2}, 19
            s_mul_i32 s{sT3}, s{sT2}, 10
            s_sub_u32 s{sPKS1}, s{sT1}, s{sT3}
            s_mul_i32 s{sPKS0}, s{sT2}, 10240
            s_lshl_b32 s{sT3}, s{sPKS1}, 7
            s_add_u32 s{sPKS0}, s{sPKS0}, s{sT3}''')
            k(f'''s_lshr_b32 s{sT3}, s{sT2}, 2
            s_mul_i32 s{sT3}, s{sT3}, 5120
            s_and_b32 s{sT4}, s{sT2}, 3
            s_lshl_b32 s{sT4}, s{sT4}, 8
            s_add_u32 s{sT3}, s{sT3}, s{sT4}
            s_add_u32 s{sT3}, s{sT3}, {W2P}
            s_cmp_lt_u32 s{sT2}, 192
            s_cselect_b32 s{sPKD0}, s{sT3}, {OOB}''')
            k(f'''s_mul_i32 s{sT1}, s{sT2}, 52429
            s_lshr_b32 s{sT1}, s{sT1}, 18
            s_mul_i32 s{sT3}, s{sT1}, 5
            s_sub_u32 s{sT3}, s{sT2}, s{sT3}
            s_and_b32 s{sT4}, s{sT1}, 3
            s_lshr_b32 s{sT1}, s{sT1}, 2
            s_mul_i32 s{sT1}, s{sT1}, 5
            s_cmp_gt_u32 s{sT3}, 2
            s_subb_u32 s{sT5}, s{sT3}, 0
            s_cmp_eq_u32 s{sT3}, 2
            s_cselect_b32 s{sT5}, s{sT4}, s{sT5}
            s_cselect_b32 s{sT4}, 4, s{sT4}
            s_add_u32 s{sT1}, s{sT1}, s{sT4}
            s_mul_i32 s{sT1}, s{sT1}, 5120
            s_lshl_b32 s{sT5}, s{sT5}, 8
            s_add_u32 s{sT1}, s{sT1}, s{sT5}
            s_add_u32 s{sT1}, s{sT1}, {W2P + 48*5120}
            s_cmp_lt_u32 s{sT2}, 80
            s_cselect_b32 s{sPKD1}, s{sT1}, {OOB}''')
        def b():
            k(f'''v_lshrrev_b32 v{vT+8}, 3, v{vL}
            v_mul_u32_u24 v{vT+8}, 1280, v{vT+8}
            v_and_b32 v{vT+9}, 7, v{vL}
            v_lshl_add_u32 v{vT+8}, v{vT+9}, 4, v{vT+8}
            s_add_u32 m0, s{sM0X}, {L_PACK}''')
            k(f'buffer_load_dwordx4 v{vT+8}, s[{S_WD}:{S_WD+3}], s{sPKS0} offen lds')
        def c():
            k(f's_add_u32 m0, s{sM0X}, {L_PACK + 1024}')
            self.t_pack = k(f'buffer_load_dwordx4 v{vT+8}, s[{S_WO}:{S_WO+3}], s{sPKS0} offen lds')
        return [a, b, c]
    def job_pack_use(self):
        k = self.k; J = []
        a0, a1, d = vT + 8, vT + 9, vT + 4
        x, y = vT + 10, vT + 11
        def one(s): J.append(lambda: k(s))
        one(f's_lshl_b32 s{sT1}, s{sPKS1}, 1\nv_lshrrev_b32 v{x}, 5, v{vL}\nv_add_u32 v{x}, s{sT1}, v{x}')
        one(f'v_mul_u32_u24 v{y}, 52, v{x}\nv_lshrrev_b32 v{y}, 8, v{y}')
        one(f'v_mul_u32_u24 v{a0}, 5, v{y}\nv_sub_u32 v{x}, v{x}, v{a0}')
        one(f'v_bfe_u32 v{d}, v{vL}, 4, 1\nv_lshl_add_u32 v{d+1}, v{x}, 1, v{d}')
        one(f'v_cmp_lt_u32 vcc, 4, v{d+1}\nv_mul_u32_u24 v{y}, {2*340}, v{y}\nv_add_u32 v{a1}, {340-6}, v{d+1}\nv_cndmask_b32 v{a1}, v{d+1}, v{a1}, vcc')
        one(f'v_cmp_eq_u32 vcc, 5, v{d+1}\nv_mov_b32 v{d+2}, {340+4}\nv_and_b32 v{d+3}, 15, v{vL}\nv_cndmask_b32 v{a1}, v{a1}, v{d+2}, vcc')
        one(f'v_add_lshl_u32 v{a1}, v{a1}, v{y}, 10\nv_lshl_add_u32 v{a1}, v{d+3}, 4, v{a1}')
        one(f'v_and_b32 v{d+1}, 3, v{vL}\nv_lshlrev_b32 v{d+2}, 4, v{d+1}\nv_lshl_add_u32 v{d+2}, v{d}, 3, v{d+2}')
        one(f'v_cmp_eq_u32 vcc, 2, v{x}\nv_lshlrev_b32 v{d+1}, 3, v{d+1}\nv_lshl_add_u32 v{d+1}, v{d}, 5, v{d+1}\nv_cndmask_b32 v{a0}, v{d+2}, v{d+1}, vcc')
        one(f'v_bfe_u32 v{x}, v{vL}, 2, 2\nv_lshl_add_u32 v{a0}, v{x}, 7, v{a0}')
        one(f'v_lshrrev_b32 v{x}, 5, v{vL}\nv_lshl_add_u32 v{a0}, v{x}, 6, v{a0}\ns_add_u32 s{sT1}, s{sM0X}, {L_PACK}\nv_add_u32 v{a0}, s{sT1}, v{a0}')
        for it, sd in ((0, sPKD0), (1, sPKD1)):
            def rd(it=it):
                k.wait(vm=self.t_pack)
                k(f'ds_read_b64_tr_b16 v[{d}:{d+1}], v{a0} offset:{it*1024}')
                self.t_pkr = k(f'ds_read_b64_tr_b16 v[{d+2}:{d+3}], v{a0} offset:{it*1024+512}')
            def st(sd=sd):
                k.wait(lg=self.t_pkr)
                self.t_store = k(f'buffer_store_dwordx4 v[{d}:{d+3}], v{a1}, s[{S_WS}:{S_WS+3}], s{sd} offen sc1')
            J += [rd, None, None, None, None, None, None, None, None, st, None]
        return J

    def frag_list(self):
        c = self.cfg
        F = []
        for n in range(25):
            slot = (n & 3) * 16384
            for q in range(8):
                f = dict(stage=n, first=(q == 0), pre=None)
                if 10 <= n < 15:
                    kk = 8 * (n - 10) + q
                    f.update(addr=vWR2, off=slot + q * 2048, acc=vA1, b=vX + 4 * kk, zero=(kk == 0))
                else:
                    t, tt = q >> 1, q & 1
                    kk = 4 * (n if n < 10 else n - 15) + t
                    f.update(addr=(vWR0, vWR1)[tt], off=slot + t * 4096, acc=vA0 + 16 * tt, b=vX + 4 * kk, zero=(kk == 0))
                    if n < 10 and tt == 0: f['xread'] = (vX + 4 * kk, vA1 + t, slot)
                F.append(f)
                def ext(addr, off, acc, tag=None):
                    F.append(dict(stage=n, first=False, addr=addr, off=0, acc=acc, b=vMEAN, zero=False, ext=L_EXT + off, tag=tag))
                if n == c.ext_use and q == 1:
                    ext(vWR0, 0, vA0); ext(vWR1, 0, vA0 + 16, 'p1done')
                if n == 14 and q == 3: ext(vWR2, 8192, vA1)
                if n == 20 and q == 3: ext(vWR0, 4096, vA0); ext(vWR1, 4096, vA0 + 16)
        return F

    def run_frags(self, F, lo, hi, typ):
        k = self.k; c = self.cfg
        for i in range(lo, hi):
            f = F[i]
            k.wait(lg=f['tok'])
            fr = vFR + 4 * (i & 3)
            cin = '0' if f['zero'] else vr(f['acc'], 16)
            if f['zero'] and f['stage'] == 15: assert not self.pend_acc0, 'pass-1 epilogue not finished'
            k(f"v_mfma_f32_32x32x16_bf16 {vr(f['acc'],16)}, {vr(fr,4)}, {vr(f['b'],4)}, {cin}")
            if i + 3 < len(F): self.issue_reads(F, i + 3, typ)
            if f.get('tag') == 'p1done':
                self.side += [None] * (2 * c.side)
                if typ == 0:
                    self.side += self.job_gu(vA0, sHS1, 0) + self.job_gu(vA0 + 16, sHS1, 512)
                else:
                    self.side += [lambda: k(f'v_mul_f32 v{vD11}, s{sQF}, v{vRS}')]
                    self.side += self.job_qkv(vA0, vD11, sQS1, 0, 16384) + self.job_qkv(vA0 + 16, vD11, sQS1, 4096, 16384 + 4096)
                self.pend_acc0 = True
                def done(): self.pend_acc0 = False
                self.side.append(done)
            if f['stage'] == 15 and f['first']:
                self.side += [None] * (2 * c.side) + self.job_qkv(vA1, vRS, sQS2, 0, 4096)
                def mark(): self.t_f1 = self.t_store
                self.side.append(mark)
            if self.dmaq: self.dmaq.pop(0)()
            n = c.side
            while n > 0 and self.side:
                j = self.side.pop(0)
                if j: j()
                n -= 1
            if self.side2:
                j = self.side2.pop(0)
                if j: j()

    def issue_reads(self, F, i, typ):
        k = self.k; c = self.cfg
        f = F[i]
        if f['first']: self.barrier(f['stage'])
        if 'xread' in f:
            d, a, off = f['xread']
            k(f'ds_read_b128 {vr(d,4)}, v{a} offset:{off}')
        fr = vFR + 4 * (i & 3)
        a = f['addr']
        if 'ext' in f:
            k(f"v_add_u32 v{vD10}, {f['ext']}, v{a}"); a = vD10
        k(f"ds_read_b64_tr_b16 {vr(fr,2)}, v{a} offset:{f['off']}")
        f['tok'] = k(f"ds_read_b64_tr_b16 {vr(fr+2,2)}, v{a} offset:{f['off']+512}")

    def barrier(self, n):
        k = self.k; c = self.cfg
        assert not self.dmaq
        k.wait(vm=self.stok[n])
        if n == c.f0_at: k.wait(vm=self.p0tok)
        if n == c.poll0_check: self.p0[1]()
        if n == c.ext_use: k.wait(vm=self.t_ext)
        if n == c.f1_at: k.wait(vm=self.t_f1)
        if n == c.poll1_check: self.p1[1]()
        k('s_barrier')
        if n in (0, 10, 15): self.stamp()
        if n >= 2 and n + 2 < 25: self.dmaq = self.dma_stage(n + 2)
        if n == c.f0_at: self.dmaq.append(self.f0[1])
        if n == c.poll0_issue: self.dmaq.append(self.p0[0])
        if n == c.poll0_check: self.dmaq += self.job_extload()
        if n == c.ext_use: self.stats_prep()
        if n == c.pack_issue: self.dmaq += self.job_pack_issue()
        if n == c.pack_use: self.side2 += self.job_pack_use()
        if n == c.f1_at: self.dmaq.append(lambda: self.flag_store(2, sFLAG))
        if n == c.ones_at: self.side += self.job_ones()
        if n == c.poll1_issue: self.dmaq.append(self.p1[0])
        if n == c.poll1_check: self.side2 += self.job_kv(); self.side += self.job_masks()

    def gemm1(self):
        k = self.k; c = self.cfg
        self.side = []; self.side2 = []; self.dmaq = []; self.pend_acc0 = False
        self.f0 = self.job_f0(); self.p0 = self.job_poll0(); self.p1 = self.job_poll1()
        self.f0[0]()
        F = self.frag_list()
        for i in range(3): self.issue_reads(F, i, None)
        split = next(i for i, f in enumerate(F) if f.get('tag') == 'p1done')
        join = next(i for i, f in enumerate(F) if f['stage'] == 15) - 3
        self.run_frags(F, 0, split, None)
        k(f's_cmp_lg_u32 s{sTYPE}, 0\ns_cbranch_scc1 L_typeB')
        pre = k.snap(); st = (list(self.side), list(self.side2), list(self.dmaq), dict(self.stok), self.nst)
        rel = []
        for typ in (0, 1):
            k.restore(pre)
            self.side, self.side2, self.dmaq, self.stok = list(st[0]), list(st[1]), list(st[2]), dict(st[3])
            self.nst = st[4]
            if typ == 1: k.label('L_typeB')
            self.run_frags(F, split, join, typ)
            assert not self.side and not self.side2 and not self.dmaq and not self.pend_acc0, (len(self.side), len(self.side2))
            rel.append(([k.nvm - self.stok[n].n for n in (15, 16)], [k.nlg - F[i]['tok'].n for i in range(join, join + 3)], k.nvm - k.dvm, k.nlg - k.dlg))
            if typ == 0:
                winA = list(k.win)
                k('s_branch L_join')
        assert rel[0][1] == rel[1][1]
        for j, n in enumerate((15, 16)): self.stok[n] = Tok(k.nvm - min(rel[0][0][j], rel[1][0][j]))
        k.dvm = k.nvm - max(rel[0][2], rel[1][2]); k.dlg = k.nlg - max(rel[0][3], rel[1][3])
        assert [p.text for p in winA[-8:]] == [p.text for p in k.win[-8:]], 'paths must end alike'
        k.label('L_join')
        self.run_frags(F, join, len(F), None)
        assert not self.side and not self.side2 and not self.dmaq
        self.stamp()

    def job_poll1(self):
        k = self.k
        def a():
            k(f'v_lshrrev_b32 v{vA1+6}, 2, v{vL}\nv_lshlrev_b32 v{vA1+6}, 7, v{vA1+6}\nv_and_b32 v{vA1+7}, 3, v{vL}\nv_lshl_add_u32 v{vA1+6}, v{vA1+7}, 4, v{vA1+6}')
            self.t_p1 = k(f'buffer_load_dwordx4 v[{vA1+8}:{vA1+11}], v{vA1+6}, s[{S_WS}:{S_WS+3}], s{sPOLL} offen sc1')
        def b():
            self.poll_check(self.t_p1, vA1+8, vA1+6, S_WS, f's{sPOLL}', 2, sW, wide=True)
        return a, b
    def job_ones(self):
        k = self.k; J = []
        d = vA1 + 12; tk = vT + 4; a = vT + 5
        def one(s): J.append(lambda: k(s))
        one(f's_mul_i32 s{sT1}, s{sW}, 48\nv_add_u32 v{tk}, s{sT1}, v{vL}')
        one(f's_sub_i32 s{sT1}, 2, s{sAI}\ns_lshl_b32 s{sT1}, s{sT1}, 7\nv_cmp_le_i32 vcc, s{sT1}, v{tk}\nv_mov_b32 v{d+1}, 0x3f803f80\nv_lshlrev_b32 v{a}, 4, v{tk}\nv_cndmask_b32 v{d}, 0, v{d+1}, vcc'
            f'\nv_lshrrev_b32 v{d+2}, 7, v{tk}\nv_mul_u32_u24 v{d+2}, {240*2048 - 2048}, v{d+2}\nv_add_u32 v{d+2}, v{d+2}, v{a}\nv_mov_b32 v{d+3}, {OOB}\nv_cndmask_b32 v{vT+6}, v{d+3}, v{d+2}, vcc')
        one(f'v_mov_b32 v{d+1}, v{d}\nv_mov_b32 v{d+2}, v{d}\nv_mov_b32 v{d+3}, v{d}')
        one(f'v_add_u32 v{a}, {L_ONES}, v{a}\nds_write_b128 v{a}, v[{d}:{d+3}]')
        one(f'v_mov_b32 v{tk}, 0\nv_mov_b32 v{a}, {L_CNT}\nds_write_b32 v{a}, v{tk}')
        return J
    def job_kv(self):
        k = self.k; J = []
        def base():
            k(f"""s_mul_i32 s{sPKS0}, s{sAI}, {240*2048}
            s_mul_i32 s{sT1}, s{sAJ}, {5*2048}
            s_add_u32 s{sPKS0}, s{sPKS0}, s{sT1}
            s_mul_i32 s{sPKS1}, s{sW}, 768""")
            k(f"""s_lshl_b32 s{sT1}, s{sGW}, 9
            s_add_u32 s{sT1}, s{sT1}, s{sPKS0}
            s_add_u32 s{sT1}, s{sT1}, {QKV}
            s_mul_i32 s{sT2}, s{sSET}, {3*2048}
            s_add_u32 s{sT2}, s{sT2}, s{sT1}""")
            k(f'buffer_load_dwordx4 v[{vQ}:{vQ+3}], v{vQO}, s[{S_WS}:{S_WS+3}], s{sT2} offen sc1')
            k(f"""s_lshl3_add_u32 s{sT1}, s{sSET}, s{sT1}
            s_add_u32 s{sT1}, s{sT1}, 4096
            v_lshrrev_b32 v{vT+5}, 5, v{vL}
            v_lshl_add_u32 v{vT+5}, v{vT+5}, 30, v{vQO}""")
            k(f'buffer_load_dwordx2 v[{vQ+4}:{vQ+5}], v{vT+5}, s[{S_WS}:{S_WS+3}], s{sT1} offen sc1')
        J.append(base)
        for e in range(10):
            def f(e=e):
                src = QKV - 2*240*2048 + ((80 if e < 5 else 155) + e) * 2048
                k(f's_add_u32 m0, s{sPKS1}, {L_KV + e*CH}\ns_add_u32 s{sT1}, s{sPKS0}, {src}\ns_mov_b32 exec_hi, 0xffff')
                self.t_kv = k(f'buffer_load_dwordx4 v{vT+6}, s[{S_WS}:{S_WS+3}], s{sT1} offen sc1 lds')
                k('s_mov_b32 exec_hi, -1')
            J.append(f)
        return J
    def dmask(self, r, inv=False):
        n0 = 8 * (r >> 2) + (r & 3)
        return f's_lshl_b32 s{sT2}, -1, {n0}\ns_lshl_b32 s{sT3}, -1, {n0+4}'
    def job_masks(self):
        k = self.k; J = []
        J.append(lambda: k(f'v_mov_b32 v{vT+4}, 0xffff'))
        for j in range(8):
            J.append(lambda j=j: k(self.dmask(2*j) + f'\nv_cndmask_b32 v{vM+j}, 0, v{vT+4}, s[{sT2}:{sT3}]'))
            J.append(lambda j=j: k(self.dmask(2*j+1) + f'\nv_cndmask_b32 v{vM+j}, v{vM+j}, -1, s[{sT2}:{sT3}]'))
        return J

    def attn_consts(self):
        k = self.k; t = 8
        k(f"""v_and_b32 v{t}, 31, v{vL}
        v_lshrrev_b32 v{t+1}, 5, v{vL}
        s_lshl_b32 s{sT0}, s{sGW}, 9
        s_mul_i32 s{sT1}, s{sSET}, {3*CH}
        s_add_u32 s{sT1}, s{sT1}, s{sT0}
        s_add_u32 s{sT2}, s{sT1}, {L_KV}
        v_mul_u32_u24 v{aK0}, {CH}, v{t+1}
        v_lshl_add_u32 v{aK0}, v{t}, 4, v{aK0}
        v_add_u32 v{aK0}, s{sT2}, v{aK0}
        s_lshl3_add_u32 s{sT2}, s{sSET}, s{sT0}
        s_add_u32 s{sT3}, s{sT2}, {L_KV + 2*CH}
        v_lshl_add_u32 v{aK1}, v{t}, 4, s{sT3}""")
        k(f"""v_bfe_u32 v{t}, v{vL}, 2, 2
        v_lshl_add_u32 v{t}, v{t+1}, 2, v{t}
        v_lshlrev_b32 v{t}, 4, v{t}
        v_and_b32 v{aV}, 1, v{vL}
        v_mul_u32_u24 v{aV}, {CH}, v{aV}
        v_and_b32 v{t+2}, 2, v{vL}
        v_lshl_add_u32 v{aV}, v{t+2}, 2, v{aV}
        s_add_u32 s{sT1}, s{sT1}, {L_KV + 5*CH}
        v_add3_u32 v{aV}, v{aV}, v{t}, s{sT1}
        s_add_u32 s{sT2}, s{sT2}, {L_KV + 7*CH}
        v_add_u32 v{t}, s{sT2}, v{t}
        s_mov_b32 s{sT2}, 0x33330000
        s_mov_b32 s{sT3}, 0x33330000
        v_cndmask_b32 v{aV}, v{aV}, v{t}, s[{sT2}:{sT3}]
        s_lshl_b32 s{sT1}, s{sSET}, 3
        s_sub_u32 s{sT1}, s{sT0}, s{sT1}
        s_add_u32 s{sT1}, s{sT1}, {L_ONES + 8}
        v_lshl_add_u32 v{t}, v{t+1}, 6, s{sT1}
        s_mov_b32 s{sT2}, 0xcccc0000
        s_mov_b32 s{sT3}, 0xcccc0000
        v_cndmask_b32 v{aV}, v{aV}, v{t}, s[{sT2}:{sT3}]""")
        k(f"""v_bfe_u32 v{t}, v{vL}, 4, 1
        v_mul_u32_u24 v{t}, 20480, v{t}
        v_and_b32 v{t+2}, 15, v{vL}
        v_lshl_add_u32 v{aO0}, v{t+2}, 4, v{t}
        v_lshl_add_u32 v{aO0}, v{t+1}, 8, v{aO0}
        v_lshl_add_u32 v{aO1}, v{t+2}, 3, v{t}
        v_lshl_add_u32 v{aO1}, v{t+1}, 30, v{aO1}
        s_lshl2_add_u32 s{sT0}, s{sAI}, s{sGW}
        s_lshr_b32 s{sT1}, s{sAJ}, 2
        s_lshl3_add_u32 s{sT0}, s{sT0}, s{sT1}
        s_mul_i32 s{sT0}, s{sT0}, 5120
        s_lshl_b32 s{sT1}, s{sSET}, 9
        s_add_u32 s{sT0}, s{sT0}, s{sT1}
        s_add_u32 s{sT0}, s{sT0}, {OIM}
        s_and_b32 s{sT1}, s{sAJ}, 3
        s_lshl_b32 s{sT2}, s{sT1}, 10
        s_add_u32 s{sQS1}, s{sT0}, s{sT2}
        s_lshl_b32 s{sT2}, s{sT1}, 7
        s_add_u32 s{sQS2}, s{sT0}, s{sT2}
        s_add_u32 s{sQS2}, s{sQS2}, 4096""")

    def rdK(self, t, buf, a0=None, a1=None):
        k = self.k; k0, k1 = vKB[buf]
        k(f'ds_read_b128 {vr(k0,4)}, v{a0 or aK0} offset:{t*512}')
        return k(f'ds_read_b64 {vr(k1,2)}, v{a1 or aK1} offset:{t*512}')
    def rdV(self, t, buf, a=None):
        k = self.k; v = vVB[buf]
        for q in range(4): r = k(f'ds_read_b64_tr_b16 {vr(v+2*q,2)}, v{a or aV} offset:{t*512 + q*128}')
        return r
    def qk(self, buf, S):
        k = self.k; k0, k1 = vKB[buf]
        k(f'v_mfma_f32_32x32x16_bf16 {vr(S,16)}, {vr(k0,4)}, {vr(vQ,4)}, 0')
        k(f'v_mfma_f32_32x32x8_bf16 {vr(S,16)}, {vr(k1,2)}, {vr(vQ+4,2)}, {vr(S,16)}')
    def pv(self, buf, half, P, first=False):
        self.k(f"v_mfma_f32_32x32x16_bf16 {vr(vO,16)}, {vr(vVB[buf]+4*half,4)}, {vr(P+4*half,4)}, {'0' if first else vr(vO,16)}")

    def attention(self, pf, tag):
        k = self.k; c = self.cfg
        def sp(n=1):
            for _ in range(n):
                if pf: pf.pop(0)()
        S = (vS0, vS1)
        t0 = self.rdK(0, 0); t8 = self.rdK(8, 1)
        tv0 = self.rdV(0, 0); tv8 = self.rdV(8, 1)
        k.wait(lg=t0); self.qk(0, S[0])
        k.wait(lg=t8); self.qk(1, S[1])
        tk = self.rdK(1, 0)
        sp(4)
        for r in range(16):
            k(self.dmask(r) + f'\nv_cndmask_b32 v{S[0]+r}, v{S[0]+r}, v{S[1]+r}, s[{sT2}:{sT3}]')
        k.wait(lg=tk); self.qk(0, S[1])
        tk = self.rdK(2, 1)
        def expcvt(Sb, half):
            for r in range(8*half, 8*half + 8): k(f'v_exp_f32 v{Sb+r}, v{Sb+r}')
            for r in range(8*half, 8*half + 8, 2): k(f'v_cvt_pk_bf16_f32 v{vPP+r//2}, v{Sb+r}, v{Sb+r+1}')
        for half in range(2):
            expcvt(S[0], half)
            for j in range(4*half, 4*half + 4): k(f'v_and_b32 v{vM+j}, v{vM+j}, v{vPP+j}')
            for j in range(4*half, 4*half + 4): k(f'v_xor_b32 v{vPP+j}, v{vM+j}, v{vPP+j}')
            k.wait(lg=tv8)
            self.pv(1, half, vM, first=(half == 0))
            sp(1)
            self.pv(0, half, vPP)
            sp(1)
        tv = self.rdV(1, 1)
        for t in range(1, 8):
            Sb = S[t & 1]
            if t < 7:
                k.wait(lg=tk); self.qk(t & 1, S[(t + 1) & 1])
                if t < 6: tk = self.rdK(t + 2, (t + 1) & 1)
                tvn = self.rdV(t + 1, (t + 1) & 1)
            if t == c.bh_at:
                k.wait(vm=self.t_hl)
                k('s_barrier')
                self.flag_store(3, sFLAG, 8)
            for half in range(2):
                expcvt(Sb, half)
                sp(1)
                k.wait(lg=tv)
                self.pv(t & 1, half, vPP)
                sp(1)
            tv = tvn
        sp(100)
        k(f'v_mov_b32 v8, {hex(f2u(2.0**-40))}\nv_mov_b32 v9, {hex(f2u(2.0**40))}\nv_med3_f32 v8, v{vO+12}, v8, v9')
        k(f'v_cmp_eq_f32 vcc, v8, v{vO+12}\ns_cmp_eq_u64 vcc, -1\ns_cbranch_scc1 L_aok{tag}')
        k(f's_call_b64 s[{sT4}:{sT5}], L_fallback')
        k.label(f'L_aok{tag}')
        k(f'v_rcp_f32 v8, v{vO+12}')
        for r in range(12): k(f'v_mul_f32 v{vO+r}, v8, v{vO+r}')
        for j in range(6): k(f'v_cvt_pk_bf16_f32 v{vS0+j}, v{vO+2*j}, v{vO+2*j+1}')
        k(f'buffer_store_dwordx4 {vr(vS0,4)}, v{aO0}, s[{S_WS}:{S_WS+3}], s{sQS1} offen sc1')
        self.t_o = k(f'buffer_store_dwordx2 {vr(vS0+4,2)}, v{aO1}, s[{S_WS}:{S_WS+3}], s{sQS2} offen sc1')

    def fallback(self, k):
        sB, sXr, sOr = sT0, sPKS0, sPKD0
        mx, ninf, a0, a1, a2 = 8, 9, vM, vM + 1, vM + 2
        k.label('L_fallback')
        k('s_nop 7\ns_nop 7')
        k(f'v_mov_b32 v{ninf}, 0xff800000\nv_mov_b32 v{mx}, 0xff800000')
        for ps in range(2):
            k(f"""s_lshl2_add_u32 s{sB}, s{sAI}, s{sGW}
            s_sub_i32 s{sB}, 8, s{sB}
            s_max_i32 s{sB}, s{sB}, 0""")
            k.label(f'L_fb{ps}')
            k(f"""s_lshl_b32 s{sT1}, s{sB}, 9
            v_add_u32 v{a0}, s{sT1}, v{aK0}
            v_add_u32 v{a1}, s{sT1}, v{aK1}
            v_add_u32 v{a2}, s{sT1}, v{aV}""")
            self.rdK(0, 0, a0, a1)
            if ps: self.rdV(0, 0, a2)
            k(f"""s_cmp_eq_u32 s{sB}, 0
            s_cselect_b32 s{sXr}, -1, 0
            s_and_b32 s{sT1}, s{sB}, 7
            s_cselect_b32 s{sOr}, -1, 0
            s_waitcnt lgkmcnt(0)""")
            self.qk(0, vS0)
            for r in range(16):
                k(self.dmask(r) + f"""
                s_xor_b32 s{sT2}, s{sT2}, s{sXr}
                s_xor_b32 s{sT3}, s{sT3}, s{sXr}
                s_or_b32 s{sT2}, s{sT2}, s{sOr}
                s_or_b32 s{sT3}, s{sT3}, s{sOr}
                v_cndmask_b32 v{vS0+r}, v{ninf}, v{vS0+r}, s[{sT2}:{sT3}]""")
            if ps == 0:
                for r in range(0, 16, 2): k(f'v_max3_f32 v{mx}, v{mx}, v{vS0+r}, v{vS0+r+1}')
            else:
                for r in range(16): k(f'v_sub_f32 v{vS0+r}, v{vS0+r}, v{mx}')
                for r in range(16): k(f'v_exp_f32 v{vS0+r}, v{vS0+r}')
                for r in range(0, 16, 2): k(f'v_cvt_pk_bf16_f32 v{vPP+r//2}, v{vS0+r}, v{vS0+r+1}')
                self.pv(0, 0, vPP); self.pv(0, 1, vPP)
            k.flush_hazards()
            k(f's_add_u32 s{sB}, s{sB}, 1\ns_cmp_le_u32 s{sB}, 8\ns_cbranch_scc1 L_fb{ps}')
            if ps == 0:
                k(f'v_mov_b32 v{a0}, v{mx}\nv_permlane32_swap_b32 v{mx}, v{a0}\nv_max_f32 v{mx}, v{mx}, v{a0}')
                for r in range(16): k(f'v_mov_b32 v{vO+r}, 0')
        k(f's_setpc_b64 s[{sT4}:{sT5}]')

    def g2_consts(self, setB):
        k = self.k
        k(f'v_lshlrev_b32 v{aL16}, 4, v{vL}\nv_add_u32 v{aL16b}, 4096, v{aL16}')
        k(f"""s_mul_i32 s{sT0}, s{sC2}, 68
        s_mul_i32 s{sT1}, s{sGW}, {5 if setB else 12}
        s_add_u32 s{sT0}, s{sT0}, s{sT1}
        s_mul_i32 s{sWB}, s{sT0}, 5120
        s_add_u32 s{sWB}, s{sWB}, {W2P + (48*5120 if setB else 0)}""")
        if setB:
            k(f's_lshl4_add_u32 s{sT0}, s{sR2}, s{sGW}\ns_mul_i32 s{sAB}, s{sT0}, 5120\ns_add_u32 s{sAB}, s{sAB}, {OIM}')
        else:
            k(f's_mul_i32 s{sAB}, s{sR2}, {4*49152}\ns_mul_i32 s{sT1}, s{sGW}, 12288\ns_add_u32 s{sAB}, s{sAB}, s{sT1}\ns_add_u32 s{sAB}, s{sAB}, {HIM}')
        k(f's_lshr_b32 s{sT0}, s{sR2}, 1\ns_lshl_b32 s{sT0}, s{sT0}, 7\ns_lshl4_add_u32 s{sPL2}, s{sGW}, s{sT0}')
        if setB:
            k(f"""s_add_u32 s{sPL2}, s{sPL2}, {FO}
            s_lshl_b32 s{sT0}, s{sAI}, 7
            s_lshl2_add_u32 s{sT0}, s{sAJ}, s{sT0}
            s_add_u32 s{sT0}, s{sT0}, {FO}
            s_cmp_eq_u32 s{sGW}, 0
            s_cselect_b32 s{sFO}, s{sT0}, {OOB}""")
    def ldW(self, kap, regs, toks):
        k = self.k; J = []
        for T in range(5):
            def f(T=T):
                k(f's_add_u32 s{sT0}, s{sWB}, {kap*5120}')
                a, off = (aL16, T*1024) if T < 4 else (aL16b, 0)
                toks[('w', kap)] = k(f'buffer_load_dwordx4 {vr(regs[T],4)}, v{a}, s[{S_WS}:{S_WS+3}], s{sT0} offen offset:{off} sc1')
            J.append(f)
        return J
    def ldA(self, kap, regs, toks, stride, mid=False):
        k = self.k; J = []
        for mt in range(4):
            def f(mt=mt):
                k(f's_add_u32 s{sT0}, s{sAB}, {mt*stride + kap*1024}')
                if mid:
                    k(f'buffer_load_dwordx2 {vr(regs[mt],2)}, v{aL8}, s[{S_WS}:{S_WS+3}], s{sT0} offen sc1')
                    toks[('a', kap)] = k(f'buffer_load_dwordx2 {vr(regs[mt]+2,2)}, v{aL8}, s[{S_WS}:{S_WS+3}], s{sT0} offen offset:512 sc1')
                else:
                    toks[('a', kap)] = k(f'buffer_load_dwordx4 {vr(regs[mt],4)}, v{aL16}, s[{S_WS}:{S_WS+3}], s{sT0} offen sc1')
            J.append(f)
        return J
    def kstep(self, wregs, aregs, first, q):
        k = self.k
        for mt in range(4):
            for T in range(5):
                acc = vACC + 4 * (5 * mt + T)
                k(f"v_mfma_f32_16x16x32_bf16 {vr(acc,4)}, {vr(wregs[T],4)}, {vr(aregs[mt],4)}, {'0' if first else vr(acc,4)}")
                if q and (5 * mt + T) % 2 == 1: q.pop(0)()
        while q: q.pop(0)()
    def red_write(self, base):
        k = self.k
        for d in range(1, 4):
            k(f"""s_add_u32 s{sT0}, s{sGW}, {d}
            s_and_b32 s{sT0}, s{sT0}, 3
            s_mul_i32 s{sT0}, s{sT0}, 15360
            s_add_u32 s{sT0}, s{sT0}, {base + (d-1)*5120}
            v_add_u32 v8, s{sT0}, v{aL16}""")
            for T in range(5): r = k(f'ds_write_b128 v8, {vr(vACC + 4*(5*d+T),4)} offset:{T*1024}')
        return r
    def red_read(self, base):
        k = self.k
        k(f's_mul_i32 s{sT0}, s{sGW}, 15360\ns_add_u32 s{sT0}, s{sT0}, {base}\nv_add_u32 v8, s{sT0}, v{aL16}')
        toks = []
        for T in range(5):
            for d in range(3): r = k(f'ds_read_b128 {vr(vACC + 20 + 4*(5*d+T),4)}, v8 offset:{d*5120 + T*1024}')
            toks.append(r)
        return toks
    def sum4(self, T):
        k = self.k
        for e in range(4):
            a = vACC + 4*T + e
            k(f'v_add_f32 v{a}, v{a}, v{a+20}\nv_add_f32 v{a+40}, v{a+40}, v{a+60}')
        for e in range(4):
            a = vACC + 4*T + e
            k(f'v_add_f32 v{a}, v{a}, v{a+40}')

    def back_half(self):
        k = self.k; c = self.cfg
        k(f's_cmp_lg_u32 s{sSET}, 0\ns_cbranch_scc1 L_setB')
        pre = k.snap(); nst = self.nst
        for setB in (0, 1):
            k.restore(pre); self.nst = nst
            if setB: k.label('L_setB')
            toks = {}
            self.g2_consts(setB)
            stride = 20480 if setB else 49152
            for d in range(4):
                k(f's_add_u32 s{sT0}, s{sGW}, {d}\ns_and_b32 s{sT0}, s{sT0}, 3\ns_mul_i32 s{sT0}, s{sT0}, {stride}\ns_add_u32 s{sAM+d}, s{sT0}, s{sAB}')
            if setB:
                W = [[156 + 20*q + 4*T for T in range(5)] for q in range(5)]
                slots = [112 + 4*j for j in range(11)] + [12 + 4*j for j in range(5)]
                A = [slots[4*q:4*q+4] for q in range(4)] + [W[0][:4]]
                pf = sum((self.ldW(q, W[q], toks) for q in range(5)), [])
            else:
                W = [[112 + 36*(q&3) + 4*T for T in range(5)] for q in range(12)]
                A = [[132 + 36*(q&3) + 4*m for m in range(4)] for q in range(12)]
                pf = sum((self.ldW(q, W[q], toks) + self.ldA2(q, A[q], toks) for q in range(4)), [])
            J = self.job_gu(vA0, sHS3, 0) + self.job_gu(vA0 + 16, sHS3, 512)
            for j in J: j()
            self.t_hl = self.t_store
            self.attn_consts()
            k.wait(vm=self.t_kv, lg='all')
            k('s_barrier')
            self.stamp()
            self.attention(pf, 'B' if setB else 'A')
            self.stamp()
            k(f'v_and_b32 v10, 3, v{vL}\nv_lshlrev_b32 v10, 2, v10')
            if not setB:
                tp = k(f'buffer_load_dword v11, v10, s[{S_WS}:{S_WS+3}], s{sPL2} offen sc1')
                for q in range(4):
                    k.wait(vm=toks[('a', q)])
                    self.kstep(W[q], A[q], q == 0, self.ldW(q + 3, W[q + 3], toks) if q >= 1 else [])
                for f in self.ldW(7, W[7], toks): f()
                k.wait(vm=self.t_o)
                k('s_barrier')
                self.poll_check(tp, 11, 10, S_WS, f's{sPL2}', 3)
                self.stamp()
                for q in range(4, 8):
                    for f in self.ldA2(q, A[q], toks): f()
                for q in range(4, 12):
                    k.wait(vm=toks[('a', q)])
                    nx = q + 3
                    self.kstep(W[q], A[q], False, (self.ldW(nx, W[nx], toks) + self.ldA2(nx, A[nx], toks)) if 8 <= nx < 12 else [])
                self.stamp()
                r = self.red_write(L_RF)
                k(f'v_mov_b32 v8, {L_CNT}\nv_mov_b32 v9, 1\ns_mov_b64 exec, 1\nds_add_u32 v8, v9\ns_mov_b64 exec, -1')
                k.label('L_arv')
                k(f'ds_read_b32 v9, v8\ns_waitcnt lgkmcnt(0)\nv_readfirstlane_b32 s{sT0}, v9\ns_cmp_lt_u32 s{sT0}, 4\ns_cbranch_scc1 L_arv')
                k.dlg = k.nlg
                tr = self.red_read(L_RF)
                k(f's_mul_i32 s{sT0}, s{sGW}, 5120\ns_add_u32 s{sT0}, s{sT0}, {L_G}\nv_add_u32 v9, s{sT0}, v{aL16}')
                for T in range(5):
                    k.wait(lg=tr[T]); self.sum4(T)
                    a = vACC + 4*T; b = a + 20
                    for e in range(4): k(f'v_mul_f32 v{b+e}, {hex(f2u(-LOG2E))}, v{a+e}')
                    for e in range(4): k(f'v_exp_f32 v{b+e}, v{b+e}')
                    for e in range(4): k(f'v_add_f32 v{b+e}, 1.0, v{b+e}')
                    for e in range(4): k(f'v_rcp_f32 v{b+e}, v{b+e}')
                    for e in range(4): k(f'v_mul_f32 v{a+e}, v{a+e}, v{b+e}')
                    k(f'ds_write_b128 v9, {vr(a,4)} offset:{T*1024}')
                k.wait(lg='all')
                k('s_barrier')
                self.stamp()
                k('s_branch L_fin')
            else:
                k(f'v_lshlrev_b32 v{aL8}, 3, v{vL}')
                k.wait(vm=self.t_o)
                k('s_barrier')
                self.flag_store(1, sFO, 8)
                tp = k(f'buffer_load_dword v11, v10, s[{S_WS}:{S_WS+3}], s{sPL2} offen sc1')
                self.poll_check(tp, 11, 10, S_WS, f's{sPL2}', 1)
                self.stamp()
                for q in range(4):
                    for f in self.ldA2(q, A[q], toks): f()
                k(f"""v_and_b32 v8, 15, v{vL}
                v_mul_u32_u24 v8, 1280, v8
                v_lshrrev_b32 v9, 4, v{vL}
                v_lshl_add_u32 v1, v9, 4, v8
                v_lshl_add_u32 v2, v9, 3, v8
                s_lshl2_add_u32 s{sT0}, s{sR2}, s{sGW}
                s_mul_i32 s{sT0}, s{sT0}, {16*1280}
                s_mul_i32 s{sT1}, s{sC2}, 160
                s_add_u32 s{sT0}, s{sT0}, s{sT1}
                s_bitcmp1_b32 s{sC2}, 0
                s_cselect_b32 s{sT1}, 32, 0
                s_cselect_b32 s{sT2}, 0, 128
                s_add_u32 s{sQS1}, s{sT0}, s{sT1}
                s_add_u32 s{sQS2}, s{sT0}, s{sT2}""")
                XR = A[0][0]
                def lx():
                    k(f'buffer_load_dwordx4 {vr(XR,4)}, v1, s[{S_X}:{S_X+3}], s{sQS1} offen')
                    k(f'buffer_load_dwordx4 {vr(XR+4,4)}, v1, s[{S_X}:{S_X+3}], s{sQS1} offen offset:64')
                    toks['x'] = k(f'buffer_load_dwordx2 {vr(XR+8,2)}, v2, s[{S_X}:{S_X+3}], s{sQS2} offen')
                for q in range(5):
                    k.wait(vm=toks[('a', q)])
                    self.kstep(W[q], A[q], q == 0, (self.ldA2(4, A[4], toks, mid=True) + [lx]) if q == 1 else [])
                self.stamp()
                self.red_write(L_RS)
                XU = W[1][0]
                k.wait(vm=toks['x'])
                for T in range(5):
                    src = XR + (4*(T>>1) + 2*(T&1) if T < 4 else 8)
                    for e in range(2):
                        k(f'v_lshlrev_b32 v{XU+4*T+2*e}, 16, v{src+e}\nv_and_b32 v{XU+4*T+2*e+1}, 0xffff0000, v{src+e}')
                k.wait(lg='all')
                k('s_barrier')
                self.stamp()
                GR = W[2][0]
                k(f's_mul_i32 s{sT1}, s{sGW}, 5120\ns_add_u32 s{sT1}, s{sT1}, {L_G}\nv_add_u32 v9, s{sT1}, v{aL16}')
                for T in range(5): k(f'ds_read_b128 {vr(GR+4*T,4)}, v9 offset:{T*1024}')
                tr = self.red_read(L_RS)
                for T in range(5):
                    k.wait(lg=tr[T]); self.sum4(T)
                    for e in range(4): k(f'v_fmac_f32 v{XU+4*T+e}, v{vACC+4*T+e}, v{GR+4*T+e}')
                    for e in range(2): k(f'v_cvt_pk_bf16_f32 v{XR+2*T+e}, v{XU+4*T+2*e}, v{XU+4*T+2*e+1}')
                    if T == 1: k(f'buffer_store_dwordx4 {vr(XR,4)}, v1, s[{S_OUT}:{S_OUT+3}], s{sQS1} offen')
                    if T == 3: k(f'buffer_store_dwordx4 {vr(XR+4,4)}, v1, s[{S_OUT}:{S_OUT+3}], s{sQS1} offen offset:64')
                    if T == 4: k(f'buffer_store_dwordx2 {vr(XR+8,2)}, v2, s[{S_OUT}:{S_OUT+3}], s{sQS2} offen')
        k.label('L_fin')
        self.tail.append(self.fallback)
    def ldA2(self, kap, regs, toks, mid=False):
        k = self.k; J = []
        for d in range(4):
            def f(d=d):
                so = sAM + d; off = kap * 1024
                if off > 3500:
                    k(f's_add_u32 s{sT0}, s{so}, {off & ~4095}'); so = sT0; off &= 4095
                if mid:
                    k(f'buffer_load_dwordx2 {vr(regs[d],2)}, v{aL8}, s[{S_WS}:{S_WS+3}], s{so} offen offset:{off} sc1')
                    toks[('a', kap)] = k(f'buffer_load_dwordx2 {vr(regs[d]+2,2)}, v{aL8}, s[{S_WS}:{S_WS+3}], s{so} offen offset:{off+512} sc1')
                else:
                    toks[('a', kap)] = k(f'buffer_load_dwordx4 {vr(regs[d],4)}, v{aL16}, s[{S_WS}:{S_WS+3}], s{so} offen offset:{off} sc1')
            J.append(f)
        return J

    def late_epilogue_simple(self):
        k = self.k
        for j in self.job_gu(vA0, sHS3, 0) + self.job_gu(vA0 + 16, sHS3, 512): j()
        self.stamp()

    def finish(self):
        k = self.k; c = self.cfg
        if c.stamps:
            k('s_waitcnt vmcnt(0)')
            self.stamp()
            k(f's_waitcnt lgkmcnt(0)\ns_mov_b32 s{sST0 + self.nst - 1}, s{sSTT}')
            k(f's_lshl_b32 s{sT0}, s2, 3\ns_add_u32 s{sT0}, s{sT0}, s{sW}\ns_lshl_b32 s{sT0}, s{sT0}, 6\ns_add_u32 s{sT0}, s{sT0}, {STAMP}\nv_mov_b32 v1, 0\ns_mov_b64 exec, 1')
            for n in range(self.nst):
                k(f'v_mov_b32 v2, s{sST0+n}\nbuffer_store_dword v2, v1, s[{S_WS}:{S_WS+3}], s{sT0} offen offset:{4*n}')
        k('s_endpgm')
        for t in self.tail:
            k.win = []
            t(k)
        k.label('L_end')
        k('s_endpgm')

    def build(self):
        c = self.cfg
        self.prologue()
        self.phase0()
        self.consts()
        self.gemm1()
        self.back_half()
        self.finish()
        return self.wrap()

    def wrap(self):
        hdr = ''.join(l for l in open('recurrent_scan__sliding_block__swiglu_ffn__prompt.s.ref').readlines()[:11]) if self.cfg.__dict__.get('header', False) else ''
        return f'''{hdr}; @launch grid=(256,1,1) block=(512,1,1) lds={LDS_BYTES}
.amdgcn_target "amdgcn-amd-amdhsa--gfx950"
.text
.globl {KN}
.p2align 8
.type {KN},@function
{KN}:
{self.k.text()}.section .rodata,"a"
.p2align 6
.amdhsa_kernel {KN}
  .amdhsa_next_free_vgpr 256
  .amdhsa_next_free_sgpr 102
  .amdhsa_accum_offset 256
  .amdhsa_group_segment_fixed_size 0
  .amdhsa_kernarg_size 80
  .amdhsa_user_sgpr_count 2
  .amdhsa_user_sgpr_kernarg_segment_ptr 1
  .amdhsa_system_sgpr_workgroup_id_x 1
.end_amdhsa_kernel
'''
Cfg.f0_at = 2

def make(**kw):
    c = Cfg()
    for a, b in kw.items(): setattr(c, a, b)
    g = Gen(c)
    s = g.build()
    return s, g

if __name__ == '__main__':
    s, g = make(stamps=True)
    open('k.s', 'w').write(s)
    print(g.k.count, 'nops', g.k.nops)
```

```python
import sys, json
import gen as G
kw = json.loads(sys.argv[2]) if len(sys.argv) > 2 else {}
s, g = G.make(header=True, **kw)
open(sys.argv[1], 'w').write(s)
print(g.k.count, 'nops', g.k.nops, 'bytes', len(s))
```

```python
import gen as G
KN = G.KN
s, g = G.make()
main_launch = f'; @launch kernel={KN} grid=(256,1,1) block=(512,1,1) lds={G.LDS_BYTES}\n'
body = s.split('\n', 1)[1]
def kd(name, vg=32):
    return f'''.amdhsa_kernel {name}
  .amdhsa_next_free_vgpr {vg}
  .amdhsa_next_free_sgpr 32
  .amdhsa_accum_offset {vg}
  .amdhsa_group_segment_fixed_size 0
  .amdhsa_kernarg_size 80
  .amdhsa_user_sgpr_count 2
  .amdhsa_user_sgpr_kernarg_segment_ptr 1
  .amdhsa_system_sgpr_workgroup_id_x 1
.end_amdhsa_kernel
'''
def with_extra(name, code, launches):
    b = body.replace('.section .rodata,"a"', f'.globl {name}\n.p2align 8\n.type {name},@function\n{name}:\n{code}\n.section .rodata,"a"')
    b += '.p2align 6\n' + kd(name)
    return launches + b
def chase(off, n, stride):
    return f'''    s_cmp_ge_u32 s2, 1
    s_cbranch_scc1 P_end
    s_load_dwordx2 s[4:5], s[0:1], {off}
    s_waitcnt lgkmcnt(0)
    s_mov_b32 s8, s4
    s_and_b32 s9, s5, 0xffff
    s_mov_b32 s10, 2621440
    s_mov_b32 s11, 0x20000
    v_mov_b32 v1, 0
    s_mov_b32 s12, 0
P_loop:
    buffer_load_dword v2, v1, s[8:11], s12 offen
    s_waitcnt vmcnt(0)
    s_add_u32 s12, s12, {stride}
    s_cmp_lt_u32 s12, {n*stride}
    s_cbranch_scc1 P_loop
P_end:
    s_endpgm'''
pl = '; @launch kernel=probe_kernel grid=(1,1,1) block=(64,1,1) lds=0\n'
open('v0.s', 'w').write(main_launch + body)
open('v1.s', 'w').write(with_extra('probe_kernel', '    s_endpgm', pl + main_launch))
open('v2.s', 'w').write(with_extra('probe_kernel', chase(24, 100, 20480+256), pl + main_launch))
open('v3.s', 'w').write(main_launch + main_launch + body)
open('v4.s', 'w').write(with_extra('probe_kernel', chase(72, 100, 20480+256), pl + main_launch))
open('v5.s', 'w').write(with_extra('probe_kernel', '    s_endpgm', main_launch + pl + pl + pl + pl))
```

```python
import re

def regs_of(tok):
    tok = tok.strip()
    tok = tok.lstrip('-')
    if tok.startswith('abs(') or tok.startswith('neg('): tok = tok[4:-1]
    if tok.startswith('|'): tok = tok.strip('|')
    m = re.fullmatch(r'([vsa])(\d+)', tok)
    if m: return {m.group(1) + m.group(2)}
    m = re.fullmatch(r'([vsa])\[(\d+):(\d+)\]', tok)
    if m: return {m.group(1) + str(i) for i in range(int(m.group(2)), int(m.group(3)) + 1)}
    if tok in ('vcc', 'vcc_lo', 'vcc_hi'): return {'vcc'}
    if tok in ('exec', 'exec_lo', 'exec_hi'): return {'exec'}
    if tok == 'm0': return {'m0'}
    return set()

TRANS = ('v_exp_f32', 'v_log_f32', 'v_rcp_f32', 'v_rsq_f32', 'v_sqrt_f32', 'v_sin_f32', 'v_cos_f32')

class I:
    __slots__ = ('text', 'op', 'kind', 'rd', 'wr', 'a', 'b', 'c', 'passes', 'ws', 'store_data', 'dpp', 'trans')
    def __init__(self, text):
        self.text = text
        body = text.split(';')[0].strip()
        parts = body.split(None, 1)
        op = parts[0]
        self.op = op
        rest = parts[1] if len(parts) > 1 else ''
        ops = [o.strip() for o in re.split(r',(?![^\[]*\])', rest)] if rest else []
        mods = ''
        if ops:
            last = ops[-1].split(None, 1)
            ops[-1] = last[0]
            mods = last[1] if len(last) > 1 else ''
        self.rd = set(); self.wr = set(); self.a = self.b = self.c = set()
        self.passes = 0; self.ws = 1; self.store_data = set(); self.dpp = False; self.trans = False
        R = [regs_of(o) for o in ops]
        base = re.sub(r'_(e32|e64|dpp|sdwa)$', '', op)
        if op.startswith('v_mfma'):
            self.kind = 'mfma'
            self.wr = R[0]; self.a = R[1]; self.b = R[2]; self.c = R[3]
            self.rd = R[1] | R[2] | R[3]
            self.passes = 8 if '32x32' in op else 4
            assert 'bf16' in op
        elif op.startswith('v_'):
            self.kind = 'valu'
            self.dpp = op.endswith('_dpp')
            self.trans = base in TRANS
            self.wr = set(R[0])
            srcs = R[1:]
            if base in ('v_add_co_u32', 'v_addc_co_u32', 'v_sub_co_u32'):
                self.wr |= R[1]; srcs = R[2:]
            for r in srcs: self.rd |= r
            if base in ('v_fmac_f32', 'v_dot2c_f32_bf16', 'v_writelane_b32'): self.rd |= R[0]
            if 'permlane' in base and 'swap' in base:
                self.wr |= R[1]; self.rd |= R[0]
            assert not base.startswith('v_cmpx')
        elif op.startswith('ds_'):
            self.kind = 'ds'
            if op.startswith('ds_read') or op.startswith('ds_bpermute') or '_rtn_' in op:
                self.wr = R[0]
                for r in R[1:]: self.rd |= r
            else:
                for r in R: self.rd |= r
                if 'addtid' in op: self.rd |= {'m0'}
        elif op.startswith('buffer_') or op.startswith('global_'):
            self.kind = 'vmem'
            lds = ' lds' in (' ' + mods) or 'load_lds' in op
            if 'load' in op and not lds:
                self.wr = R[0]
                for r in R[1:]: self.rd |= r
            else:
                for r in R: self.rd |= r
                if lds: self.rd |= {'m0'}
                if 'store' in op and ('x4' in op or 'x3' in op):
                    self.store_data = R[0] if op.startswith('buffer_') else R[1]
        elif op.startswith('s_'):
            self.kind = 'salu'
            if op == 's_nop':
                self.ws = int(ops[0], 0) + 1
            elif op.startswith(('s_cmp', 's_bitcmp', 's_waitcnt', 's_barrier', 's_branch', 's_cbranch', 's_sleep', 's_setprio', 's_endpgm', 's_setpc')):
                for r in R: self.rd |= r
            else:
                if R: self.wr = set(R[0])
                for r in R[1:]: self.rd |= r
                if 'saveexec' in op: self.wr |= {'exec'}
        else:
            raise ValueError(text)

def isv(s): return {r for r in s if r[0] == 'v' and r != 'vcc'}
def iss(s): return {r for r in s if r[0] == 's' or r == 'vcc'}

def need(p, c):
    n = 0
    if p.kind == 'valu':
        pv = isv(p.wr); ps = iss(p.wr)
        if c.kind == 'mfma' and pv & c.rd: n = max(n, 2)
        if c.kind == 'valu':
            if p.trans and not c.trans and pv & c.rd: n = max(n, 1)
            if p.trans and c.trans and pv & c.rd: n = max(n, 1)
            if 'permlane' in c.op and pv & c.rd: n = max(n, 2)
            if ('readlane' in c.op or 'readfirstlane' in c.op) and pv & c.rd: n = max(n, 1)
            if c.dpp and pv & c.rd: n = max(n, 2)
            if ps & c.rd: n = max(n, 4 if ('readlane' in c.op or 'writelane' in c.op) else 2)
        if c.kind == 'vmem' and ps & c.rd: n = max(n, 5)
        if c.kind == 'salu' and ps & c.rd: n = max(n, 1)
    if p.kind == 'mfma':
        big = 12 if p.passes == 8 else 8
        if c.kind == 'valu' and p.wr & (c.rd | c.wr): n = max(n, big)
        if c.kind in ('vmem', 'ds') and p.wr & (c.rd | c.wr): n = max(n, big)
        if c.kind == 'mfma':
            if p.wr & (c.a | c.b): n = max(n, big)
            if p.wr & (c.c | c.wr):
                same = (p.wr == c.c and p.passes == c.passes and c.wr == c.c)
                if not same: n = max(n, big - 2)
        if c.kind == 'valu' and p.c & c.wr: n = max(n, 7 if p.passes == 8 else 3)
    if p.kind == 'salu' and 'm0' in p.wr and c.kind in ('vmem', 'ds') and 'm0' in c.rd: n = max(n, 1)
    if p.store_data and p.store_data & c.wr: n = max(n, 2)
    return n

class Tok:
    __slots__ = ('n',)
    def __init__(self, n): self.n = n

class K:
    def __init__(self):
        self.out = []
        self.win = []
        self.nvm = 0; self.dvm = 0
        self.nlg = 0; self.dlg = 0
        self.nops = 0
        self.cond = []
        self.lab = 0
        self.count = {}
    def raw(self, s): self.out.append(s)
    def c(self, s): self.out.append('    ; ' + s)
    def label(self, n):
        self.out.append(n + ':')
    def _one(self, t):
        ins = I(t)
        d = 0; pad = 0
        for p in reversed(self.win):
            nd = need(p, ins)
            if nd - d > pad: pad = nd - d
            d += p.ws
            if d >= 20: break
        if pad > 0:
            self.nops += 1
            n = I(f's_nop {pad-1}')
            self.out.append('    ' + n.text); self.win.append(n)
        self.out.append('    ' + t); self.win.append(ins)
        if len(self.win) > 24: self.win = self.win[-24:]
        self.count[ins.kind] = self.count.get(ins.kind, 0) + 1
        if ins.kind == 'vmem':
            self.nvm += 1; return Tok(self.nvm)
        if ins.kind == 'ds':
            self.nlg += 1; return Tok(self.nlg)
        return None
    def __call__(self, s):
        r = None
        for x in s.strip('\n').split('\n'):
            x = x.strip()
            if not x: continue
            if x.endswith(':') or x.startswith('.'): self.out.append(x)
            elif x.startswith(';'): self.out.append('    ' + x)
            else: r = self._one(x)
        return r
    def wait(self, vm=None, lg=None):
        parts = []
        if vm is not None:
            n = vm.n if isinstance(vm, Tok) else (self.nvm if vm == 'all' else vm)
            if n > self.dvm:
                cnt = min(self.nvm - n, 63); assert cnt >= 0
                newer = [c for c in self.cond if c[0] >= n]
                self.cond = newer
                self.dvm = self.nvm - cnt
                if newer:
                    assert len({c[1] for c in newer}) == 1
                    self.lab += 1
                    self._one(f's_waitcnt vmcnt({min(cnt + newer[0][1], 63)})')
                    self(newer[0][2](newer))
                    self._one(f's_cbranch_scc1 L_cw{self.lab}')
                    self._one(f's_waitcnt vmcnt({cnt})')
                    self.label(f'L_cw{self.lab}')
                else:
                    parts.append(f'vmcnt({cnt})')
        if lg is not None:
            n = lg.n if isinstance(lg, Tok) else (self.nlg if lg == 'all' else lg)
            if n > self.dlg:
                cnt = min(self.nlg - n, 15)
                parts.append(f'lgkmcnt({cnt})'); self.dlg = self.nlg - cnt
        if parts: self._one('s_waitcnt ' + ' '.join(parts))
    def flush_hazards(self):
        d = 0; pad = 0
        for p in reversed(self.win):
            worst = 0
            if p.kind == 'mfma': worst = 12 if p.passes == 8 else 8
            elif p.kind == 'valu': worst = 5 if iss(p.wr) else 2
            elif p.store_data: worst = 2
            elif 'm0' in p.wr: worst = 1
            pad = max(pad, worst - d); d += p.ws
        if pad > 0: self._one(f's_nop {pad-1}')
    def snap(self): return (list(self.win), self.nvm, self.dvm, self.nlg, self.dlg, list(self.cond))
    def restore(self, s):
        self.win = list(s[0]); self.nvm, self.dvm, self.nlg, self.dlg = s[1:5]; self.cond = list(s[5])
    def text(self): return '\n'.join(self.out) + '\n'

def vr(b, n=1): return f'v{b}' if n == 1 else f'v[{b}:{b+n-1}]'
def sr(b, n=1): return f's{b}' if n == 1 else f's[{b}:{b+n-1}]'
```

```python
import sys, math, struct
from emit import *

KN = 'recurrent_scan__sliding_block__swiglu_ffn__prompt_kernel'

FL   = 0x0
STATS= 0x10000
WEXT = 0x20000
STAMP= 0x60000
QKV  = 0x100000
HIM  = 0x900000
OIM  = 0x1000000
W2P  = 0x1400000
WS_BYTES = 0x1800000
OOB  = 0x7f000000

L_RING = 0
L_X    = 65536
CH     = 6208
L_KV   = 65536
L_ONES = L_KV + 10 * CH + 64
L_EXT  = 65536 + 68608
L_PACK = L_EXT + 10240
L_CNT  = L_PACK + 12288
LDS_BYTES = L_CNT + 16
L_RF = L_KV; L_RS = 0
assert 10 * CH + 64 + 6400 <= 68608 and LDS_BYTES <= 163840

S_X, S_Q, S_G, S_U, S_WS, S_DBG, S_WD, S_WO, S_OUT, S_TMP = 4, 8, 12, 16, 20, 24, 28, 32, 36, 40
S_U0, S_U1 = 36, 64
sI, sG, sW, sGW, sXO, sWO_, sM0X, sM0W = 44, 45, 46, 47, 48, 49, 50, 51
sFLAG, sPOLL, sQF, sHE, sHL, sQS1, sQS2 = 52, 53, 54, 55, 56, 57, 3
sT0, sT1, sT2, sT3, sT4, sT5 = 58, 59, 60, 61, 62, 63
sPKS, sPKL, sPKD0, sPKD1, sPKD2 = 78, 79, 80, 81, 82
sAI, sAJ, sR2, sC2, sCNT = 69, 70, 71, 72, 73
sCO, sCD, sC2O, sC3O = 74, 75, 76, 77
sWB, sPL2, sKVS, sKVM, sSTG = 78, 79, 81, 82, 83
sSTR, sADV, sC1, sSLOT = 68, 84, 85, 53
sAM = 40
sSTT = 86; sST0 = 88

vL = 0
vWR0, vWR1, vWR2 = 1, 2, 3
vDA, vDB = 4, 5
aL16, aL16b = 6, 7
vEX, vP = 8, 9
vST = 10
vMEAN = 12
vRS, vC1, vHO, vQO = 16, 17, 18, 19
vT = 20
vFR = 32
vA0 = 48
vA1 = 80
vX = 96
vSEL = vA1 + 8; vCSA = vA1 + 12; vCSO = vA1 + 7; vCSG = vA1 + 6
aK0, aK1, aV, aO0, aO1, aL8 = 1, 2, 3, 4, 5, 3
vQ = 80; vM = 88; vS0 = 48; vS1 = 64; vO = 96; vPP = 32
vKB = ((20, 24), (28, 26)); vVB = (40, 12)
vACC = 32
EARLY = (0, 1, 2, 3); LATE = (4, 5, 6, 7, 8, 9, 10, 11)

LOG2E = 1.4426950408889634
def f2u(x): return struct.unpack('<I', struct.pack('<f', x))[0]

class Cfg:
    header = False
    stamps = False; clock = 's_memtime'; grps = ['main', 'fin']
    spin = 4000
    g2map = 1
    fa = 2; pa = 5
    cb = 0; cbd = 2
    pk = 1; pkd = 2
    c2 = 7
    fb = 9; pb = 11
    fq = 18; pq = 21
    w0early = 0
    hoist_hi = 22
    hoist = 1
    kvn = 5
    bh_at = 4
    epf = 12
    bo_at = 2
    slp = 8; slp0 = 16
    prio = 3

class Gen:
    def __init__(self, cfg):
        self.cfg = cfg; self.k = K(); self.tail = []; self.nst = 0; self.uid = 0

    def stamp(self, grp='main'):
        if not self.cfg.stamps or grp not in self.cfg.grps: return
        k = self.k
        if self.nst > 0: k(f's_mov_b32 s{sST0 + self.nst - 1}, s{sSTT}')
        k(f'{self.cfg.clock} s[{sSTT}:{sSTT+1}]')
        self.nst += 1
        assert self.nst <= 14
    def poll_check(self, tok, vd, voff, srd, soff, thr, role=True, wide=False, slp=6):
        k = self.k; self.uid += 1; u = self.uid
        if role:
            k(f's_cmp_lg_u32 s{sGW}, 0\ns_cbranch_scc1 L_pok{u}\ns_waitcnt vmcnt({k.nvm - tok})')
        else: k.wait(vm=tok)
        mn = f'v_min3_u32 v{vd}, v{vd}, v{vd+1}, v{vd+2}\nv_min_u32 v{vd}, v{vd}, v{vd+3}\n' if wide else ''
        ld = f'buffer_load_dwordx4 v[{vd}:{vd+3}]' if wide else f'buffer_load_dword v{vd}'
        k(f'{mn}v_cmp_le_u32 vcc, {thr}, v{vd}\ns_cmp_eq_u64 vcc, -1\ns_cbranch_scc0 L_pslow{u}')
        k.label(f'L_pok{u}')
        def slow(k):
            k.label(f'L_pslow{u}')
            k(f's_mov_b32 s{sCNT}, 0')
            k.label(f'L_ploop{u}')
            k(f's_sleep {slp}\n{ld}, v{voff}, s[{srd}:{srd+3}], {soff} offen sc1\ns_waitcnt vmcnt(0)')
            k(f'{mn}v_cmp_le_u32 vcc, {thr}, v{vd}\ns_cmp_eq_u64 vcc, -1\ns_cbranch_scc1 L_pok{u}')
            k(f's_add_u32 s{sCNT}, s{sCNT}, 1\ns_cmp_lt_u32 s{sCNT}, {self.cfg.spin}\ns_cbranch_scc1 L_ploop{u}\ns_branch L_pok{u}')
        self.tail.append(slow)
    def flag_store(self, val, t=vT+10, test=None, srd=S_WS):
        k = self.k; self.uid += 1; u = self.uid
        k(test or f's_cmp_lg_u32 s{sGW}, 0')
        k(f's_cbranch_scc1 L_nf{u}\nv_mov_b32 v{t}, {val}\nv_mov_b32 v{t+1}, 0\ns_mov_b64 exec, 1')
        k(f"buffer_store_dword v{t}, v{t+1}, s[{srd}:{srd+3}], {'0' if test else f's{sFLAG}'} offen sc1")
        k.nvm -= 1
        k('s_mov_b64 exec, -1')
        k.label(f'L_nf{u}')

    def prologue(self):
        k = self.k; c = self.cfg
        k('s_cmp_ge_u32 s2, 256\ns_cbranch_scc1 L_end')
        k(f"""s_load_dwordx2 s[{S_X}:{S_X+1}], s[0:1], 0
        s_bitcmp1_b32 s2, 6
        s_cselect_b32 s{sT0}, 8, 32
        s_cselect_b32 s{sT1}, 8, 40
        s_load_dwordx2 s[{S_U0}:{S_U0+1}], s[0:1], s{sT0}
        s_load_dwordx2 s[{S_U1}:{S_U1+1}], s[0:1], s{sT1}
        s_load_dwordx2 s[{S_WS}:{S_WS+1}], s[0:1], 72
        s_load_dwordx2 s[{S_DBG}:{S_DBG+1}], s[0:1], 64""")
        if c.stamps: k(f'{c.clock} s[{sSTT}:{sSTT+1}]'); self.nst = 1
        k(f'v_lshrrev_b32 v1, 6, v0\nv_and_b32 v{vL}, 63, v0\nv_readfirstlane_b32 s{sW}, v1')
        k(f's_cmp_ge_u32 s{sW}, 4\ns_cbranch_scc1 L_setB')

    def prologue2(self):
        k = self.k; t = vT
        k(f"""s_and_b32 s{sI}, s2, 1
        s_bfe_u32 s{sT0}, s2, 0x30003
        s_lshl3_add_u32 s{sI}, s{sI}, s{sT0}
        s_bfe_u32 s{sT1}, s2, 0x20001
        s_lshr_b32 s{sT0}, s2, 6
        s_lshl2_add_u32 s{sG}, s{sT1}, s{sT0}
        s_and_b32 s{sGW}, s{sW}, 3
        s_mov_b32 s{S_X+2}, {2048*1280}
        s_mov_b32 s{S_X+3}, 0x20000
        s_mul_i32 s{sC3O}, s{sT1}, 768
        s_and_b32 s{sT2}, s2, 128
        s_add_u32 s{sT2}, s{sT2}, s{sC3O}
        s_and_b32 s{sT3}, s{sG}, 14
        s_lshl_b32 s{sT3}, s{sT3}, 7
        s_movk_i32 s{sT4}, 3072
        s_bitcmp1_b32 s2, 6
        s_cselect_b32 s{sC1}, s{sT3}, s{sT2}
        s_cselect_b32 s{sSTR}, 3840, s{sT4}
        s_cselect_b32 s{sT5}, 0xa0, 32
        s_mul_i32 s{S_U0+2}, s{sSTR}, 640
        s_mov_b32 s{S_U0+3}, 0x20000
        s_mov_b32 s{S_U1+2}, s{S_U0+2}
        s_mov_b32 s{S_U1+3}, 0x20000""")
        k(f"""v_lshrrev_b32 v{t}, 3, v{vL}
        v_and_b32 v{t+1}, 7, v{vL}
        v_lshlrev_b32 v{t+1}, 4, v{t+1}""")
    def prologue3(self):
        k = self.k; t = vT
        k(f"""s_lshl_b32 s{sM0X}, s{sW}, 11
        s_lshl3_add_u32 s{sXO}, s{sI}, s{sW}
        s_mul_i32 s{sXO}, s{sXO}, {16*1280}
        v_and_b32 v{t+3}, 48, v{vL}
        v_xor_b32 v{t+3}, v{t+1}, v{t+3}
        v_mul_u32_u24 v{vA1+4}, 1280, v{t}
        v_add_u32 v{vA1+4}, v{vA1+4}, v{t+3}
        v_xor_b32 v{vA1+5}, 64, v{vA1+4}
        v_add_u32 v{vA1+5}, {10240-1024}, v{vA1+5}""")
    def prologue4(self):
        k = self.k; t = vT
        k(f"""s_mul_i32 s{sWO_}, s{sW}, s{sSTR}
        s_lshl3_add_u32 s{sWO_}, s{sWO_}, s{sC1}
        s_lshl_b32 s{sADV}, s{sSTR}, 6
        v_and_b32 v{t+2}, 16, v{vL}
        v_lshlrev_b32 v{t+2}, 2, v{t+2}
        v_xor_b32 v{vT+7}, v{t+1}, v{t+2}
        v_mad_u32_u24 v{vDA}, v{t}, s{sSTR}, v{vT+7}
        v_xor_b32 v{vDB}, s{sT5}, v{vDA}""")

    def late_srds(self):
        k = self.k
        L = ((S_Q, 8, 640*3840), (S_G, 32, 640*3072), (S_U, 40, 640*3072)) + (((S_WD, 48, 1536*1280), (S_WO, 16, 640*1280)) if self.S else ())
        for d, off, size in L: k(f's_load_dwordx2 s[{d}:{d+1}], s[0:1], {off}')
        if self.S: k(f's_load_dwordx2 s[{S_TMP}:{S_TMP+1}], s[0:1], 56')
        for d, off, size in L: k(f's_mov_b32 s{d+2}, {size}\ns_mov_b32 s{d+3}, 0x20000')
        k(f's_cmp_lt_u32 s{sG}, 14\ns_cselect_b32 s{S_Q+2}, s{S_Q+2}, 0')

    def dma_stage(self, n):
        k = self.k; slot = (n & 3) * 16384
        steps = []
        if n < 10:
            def x():
                k(f's_add_u32 m0, s{sM0X}, {L_X + slot}')
                k(f'buffer_load_dwordx4 v{vA1+4}, s[{S_X}:{S_X+3}], s{sXO} offen lds')
                k(f'buffer_load_dwordx4 v{vA1+5}, s[{S_X}:{S_X+3}], s{sXO} offen offset:1024 lds')
                k(f's_add_u32 s{sXO}, s{sXO}, 128')
            steps.append(x)
        def w():
            if n == 10:
                k(f"""v_lshrrev_b32 v{vDA}, 3, v{vL}
                v_mul_u32_u24 v{vDA}, 3840, v{vDA}
                v_add_u32 v{vDA}, v{vDA}, v{vT+7}
                v_add_u32 v{vDB}, {8*3840 - 1024}, v{vDA}
                s_mul_i32 s{sWO_}, s{sW}, {16*3840}
                s_add_u32 s{sWO_}, s{sWO_}, s{sC2O}""")
            if n == 15:
                k(f"""v_lshrrev_b32 v{vDA}, 3, v{vL}
                v_mul_u32_u24 v{vDA}, 3072, v{vDA}
                v_add_u32 v{vDA}, v{vDA}, v{vT+7}
                v_xor_b32 v{vDB}, 32, v{vDA}
                s_mul_i32 s{sWO_}, s{sW}, {8*3072}
                s_add_u32 s{sWO_}, s{sWO_}, s{sC3O}""")
            k(f's_add_u32 m0, s{sM0X}, {L_RING + slot}')
            if 10 <= n < 15:
                k(f'buffer_load_dwordx4 v{vDA}, s[{S_Q}:{S_Q+3}], s{sWO_} offen lds')
                self.stok[n] = k(f'buffer_load_dwordx4 v{vDB}, s[{S_Q}:{S_Q+3}], s{sWO_} offen offset:1024 lds')
                k(f's_add_u32 s{sWO_}, s{sWO_}, {128*3840}')
            else:
                s0, s1, adv = (S_U0, S_U1, f's{sADV}') if n < 10 else (S_G, S_U, 64*3072)
                k(f'buffer_load_dwordx4 v{vDA}, s[{s0}:{s0+3}], s{sWO_} offen lds')
                k(f's_add_u32 m0, s{sM0X}, {L_RING + slot + 1024}')
                self.stok[n] = k(f'buffer_load_dwordx4 v{vDB}, s[{s1}:{s1+3}], s{sWO_} offen lds')
                k(f's_add_u32 s{sWO_}, s{sWO_}, {adv}')
        steps.append(w)
        return steps

    def cs_sel(self):
        k = self.k; sel = vSEL; t = vT + 10
        k(f"""v_and_b32 v{t}, 1, v{vL}
        v_lshlrev_b32 v{t}, 4, v{t}
        s_movk_i32 s{sT3}, 0x3f80
        v_lshlrev_b32 v{t}, v{t}, s{sT3}""")
        for d in range(4):
            m = hex((3 << (2*d)) * 0x10001)
            k(f's_mov_b32 vcc_lo, {m}\ns_mov_b32 vcc_hi, {m}\nv_cndmask_b32 v{sel+d}, 0, v{t}, vcc')
        k(f"""v_and_b32 v{vCSO}, 7, v{vL}
        v_lshlrev_b32 v{vCSO}, 4, v{vCSO}
        v_bfe_u32 v{t}, v{vL}, 4, 1
        v_lshl_add_u32 v{vCSO}, v{t}, 3, v{vCSO}
        v_and_b32 v{t}, 8, v{vL}
        v_lshl_add_u32 v{vCSO}, v{t}, 4, v{vCSO}
        v_and_b32 v{t}, 32, v{vL}
        v_lshl_add_u32 v{vCSO}, v{t}, 24, v{vCSO}""")
    def cs_run(self, buf, acc):
        k = self.k; h = buf
        for j in range(10):
            k(f"v_mfma_f32_16x16x32_bf16 {vr(acc,4)}, {vr(vSEL,4)}, {vr(buf+4*j,4)}, {'0' if j == 0 else vr(acc,4)}")
        for e in range(4): k(f'v_add_f32_dpp v{h+4+e}, v{acc+e}, v{acc+e} row_ror:8 row_mask:0xf bank_mask:0xf')
        for e in range(2): k(f'v_cvt_pk_bf16_f32 v{acc+e}, v{h+4+2*e}, v{h+5+2*e}')
        for e in range(2): k(f'v_lshlrev_b32 v{h+2*e}, 16, v{acc+e}\nv_and_b32 v{h+2*e+1}, 0xffff0000, v{acc+e}')
        for e in range(4): k(f'v_sub_f32 v{h+e}, v{h+4+e}, v{h+e}')
        k(f's_mov_b32 vcc_lo, 0xff00ff00\ns_mov_b32 vcc_hi, 0xff00ff00')
        for e in range(2): k(f'v_cvt_pk_bf16_f32 v{acc+2+e}, v{h+2*e}, v{h+2*e+1}')
        for e in range(2): k(f'v_cndmask_b32 v{acc+e}, v{acc+e}, v{acc+2+e}, vcc')

    def phase0A(self):
        k = self.k; X = vX; t = vT; c = self.cfg
        k(f"""s_lshr_b32 s{sT0}, s{sI}, 1
        s_mul_i32 s{sT1}, s{sT0}, 80
        s_mul_i32 s{sT1}, s{sT1}, s{sSTR}
        s_add_u32 s{sT1}, s{sT1}, s{sC1}
        s_and_b32 s{sT2}, s{sT5}, 128
        s_bitcmp1_b32 s{sI}, 0
        s_cselect_b32 s{sT2}, s{sT2}, 0
        s_add_u32 s{sT1}, s{sT1}, s{sT2}
        s_lshl_b32 s{sT2}, s{sSTR}, 3
        v_mad_u32_u24 v{X+60}, v{t}, s{sSTR}, v{t+1}
        s_mov_b32 s{S_TMP+2}, s{S_U0+2}
        s_mov_b32 s{S_TMP+3}, 0x20000
        s_mov_b32 s{S_WS+2}, {WS_BYTES}
        s_mov_b32 s{S_WS+3}, 0x20000""")
        self.prologue3()
        k(f"""s_bitcmp1_b32 s{sI}, 0
        s_waitcnt lgkmcnt(0)
        s_cselect_b64 s[{S_TMP}:{S_TMP+1}], s[{S_U1}:{S_U1+1}], s[{S_U0}:{S_U0+1}]
        s_cmp_lg_u32 s{sW}, 0
        s_cbranch_scc1 L_nocs""")
        s0 = k.snap()
        for j in range(10):
            k(f'buffer_load_dwordx4 v[{X+4*j}:{X+4*j+3}], v{X+60}, s[{S_TMP}:{S_TMP+3}], s{sT1} offen')
            if j < 9: k(f's_add_u32 s{sT1}, s{sT1}, s{sT2}')
        k.label('L_nocs')
        k(f's_lshl3_add_u32 s{sT4}, s2, s{sW}\ns_cmp_eq_u32 s{sT4}, 3\ns_cbranch_scc0 L_noclr')
        k(f'v_lshlrev_b32 v{X+60}, 7, v{vL}\nv_mov_b32 v{X+64}, 0')
        for q in range(4):
            k(f's_mov_b32 s{sT4}, {q*8192}\nbuffer_store_dword v{X+64}, v{X+60}, s[{S_WS}:{S_WS+3}], s{sT4} offen sc1')
        k.label('L_noclr')
        k(f's_cmp_lg_u32 s{sW}, 2\ns_cbranch_scc1 L_nopf\ns_getpc_b64 s[{sT2}:{sT3}]')
        k.label('L_pc')
        k(f's_lshr_b32 s{sT4}, s2, 3\ns_lshl_b32 s{sT4}, s{sT4}, 11\nv_and_b32 v{X+60}, 15, v{vL}\nv_lshl_add_u32 v{X+60}, v{X+60}, 7, s{sT4}\nv_min_u32 v{X+60}, L_end-L_pc, v{X+60}')
        k(f's_mov_b64 exec, 0xffff\nglobal_load_dword v{X+61}, v{X+60}, s[{sT2}:{sT3}]\ns_mov_b64 exec, -1')
        k.label('L_nopf')
        k.nvm = s0[1]
        self.stamp('p0')
        d0 = self.dma_stage(0)
        d0[0]()
        self.prologue4()
        if c.w0early: d0[1]()
        self.late_srds()
        k(f's_mov_b32 s{S_DBG+2}, 256\ns_mov_b32 s{S_DBG+3}, 0x20000')
        self.cs_sel()
        k(f"""s_mul_i32 s{sT1}, s{sG}, 10240
        s_add_u32 s{sT1}, s{sT1}, {WEXT}
        s_lshl_b32 s{sT3}, s{sT0}, 8
        s_add_u32 s{sPL2}, s{sT1}, s{sT3}
        s_and_b32 s{sT4}, s{sT3}, 1024
        s_add_u32 s{sT1}, s{sPL2}, s{sT4}
        s_and_b32 s{sT3}, s{sI}, 1
        s_lshl_b32 s{sT3}, s{sT3}, 10
        s_add_u32 s{sCD}, s{sT1}, s{sT3}
        s_mov_b32 s{sWB}, s{sCD}
        s_and_b32 s{sT3}, s{sI}, 3
        s_lshl_b32 s{sT3}, s{sT3}, 5
        s_cmp_eq_u32 s{sW}, 2
        s_cselect_b32 s{sT4}, 64, 0x60
        s_and_b32 s{sT3}, s{sT3}, s{sT4}
        v_xor_b32 v{vCSO}, s{sT3}, v{vCSO}""")
        self.consts0(); self.consts1()
        k('s_waitcnt lgkmcnt(0)')
        self.csb_setup()
        if not c.w0early: d0[1]()
        self.stamp('p0')
        k(f's_waitcnt vmcnt({k.nvm - s0[1]})')
        self.stamp('p0')
        self.flag_store(1, X+58, f's_lshl3_add_u32 s{sT4}, s2, s{sW}\ns_cmp_lg_u32 s{sT4}, 3', S_DBG)
        k(f's_cmp_lg_u32 s{sW}, 0\ns_cbranch_scc1 L_nocs2')
        self.cs_run(X, vCSA)
        k(f'buffer_store_dwordx2 {vr(vCSA,2)}, v{vCSO}, s[{S_WS}:{S_WS+3}], s{sWB} offen sc1')
        k.nvm -= 1; self.t_a = Tok(k.nvm + 1)
        k.cond.append((k.nvm, 1, lambda nw: f's_cmp_eq_u32 s{sW}, 0', -1))
        k.flush_hazards()
        k.label('L_nocs2')
        for f in self.dma_stage(1): f()
        self.stamp('p0')

    def phase0B(self):
        k = self.k; X = vX; c = self.cfg
        k(f"""s_lshl4_add_u32 s{sT0}, s{sI}, s{sG}
        s_lshl2_add_u32 s{sT0}, s{sT0}, s{sGW}
        s_mul_i32 s{sT1}, s{sT0}, 2560
        v_lshrrev_b32 v{X+62}, 5, v{vL}
        v_mul_u32_u24 v{X+61}, 1280, v{X+62}
        v_and_b32 v{X+63}, 31, v{vL}
        v_lshl_add_u32 v{X+60}, v{X+63}, 4, v{X+61}
        v_lshl_add_u32 v{X+61}, v{X+63}, 3, v{X+61}""")
        self.prologue3()
        k('s_waitcnt lgkmcnt(0)')
        k(f'buffer_load_dwordx4 v[{X}:{X+3}], v{X+60}, s[{S_X}:{S_X+3}], s{sT1} offen')
        k(f'buffer_load_dwordx4 v[{X+4}:{X+7}], v{X+60}, s[{S_X}:{S_X+3}], s{sT1} offen offset:512')
        tl = k(f'buffer_load_dwordx2 v[{X+8}:{X+9}], v{X+61}, s[{S_X}:{S_X+3}], s{sT1} offen offset:1024')
        self.stamp('p0')
        d0 = self.dma_stage(0)
        d0[0]()
        self.prologue4()
        if c.w0early: d0[1]()
        self.late_srds()
        k(f's_mov_b32 s{S_WS+2}, {WS_BYTES}\ns_mov_b32 s{S_WS+3}, 0x20000')
        k(f's_lshl_b32 s{sCO}, s{sT0}, 4\ns_add_u32 s{sCO}, s{sCO}, {STATS}\nv_lshlrev_b32 v{X+62}, 3, v{X+62}')
        self.consts0(); self.consts1()
        self.pack_setup()
        k('s_waitcnt lgkmcnt(0)')
        if not c.w0early: d0[1]()
        a, b, m = X + 10, X + 11, X + 12
        k(f'v_mov_b32 v{a}, 0\nv_mov_b32 v{b}, 0\ns_mov_b32 s{sT2}, 0x3f803f80')
        self.stamp('p0')
        k.wait(vm=tl)
        self.stamp('p0')
        for d in range(10): k(f'v_dot2c_f32_bf16 v{a}, s{sT2}, v{X+d}\nv_dot2c_f32_bf16 v{b}, v{X+d}, v{X+d}')
        k('s_nop 2')
        for ctl in ('quad_perm:[1,0,3,2]', 'quad_perm:[2,3,0,1]', 'row_half_mirror', 'row_mirror'):
            for r in (a, b): k(f'v_add_f32_dpp v{r}, v{r}, v{r} {ctl} row_mask:0xf bank_mask:0xf')
        k(f"""v_mov_b32 v{X}, v{a}
        v_mov_b32 v{X+1}, v{b}
        v_permlane16_swap_b32 v{a}, v{X}
        v_permlane16_swap_b32 v{b}, v{X+1}
        v_add_f32 v{a}, v{a}, v{X}
        v_add_f32 v{b}, v{b}, v{X+1}
        v_mul_f32 v{m}, {hex(f2u(-1.0/640))}, v{a}
        v_mul_f32 v{b}, {hex(f2u(1.0/640))}, v{b}
        v_fma_f32 v{b}, -v{m}, v{m}, v{b}
        v_max_f32 v{b}, 0, v{b}
        v_add_f32 v{m+1}, {hex(f2u(1e-5))}, v{b}
        v_cvt_pk_bf16_f32 v{m}, v{m}, v{m}
        s_mov_b32 exec_lo, 1
        s_mov_b32 exec_hi, 1""")
        self.t_a = k(f'buffer_store_dwordx2 v[{m}:{m+1}], v{X+62}, s[{S_WS}:{S_WS+3}], s{sCO} offen sc1')
        k('s_mov_b64 exec, -1')
        for f in self.dma_stage(1): f()
        self.stamp('p0')

    def consts0(self):
        k = self.k; t = vT; S = self.S
        k(f'''v_bfe_u32 v{t}, v{vL}, 2, 2
        v_and_b32 v{t+1}, 1, v{vL}
        v_lshlrev_b32 v{t+1}, 4, v{t+1}
        v_and_b32 v{t+2}, 2, v{vL}
        v_lshl_add_u32 v{t+1}, v{t+2}, 2, v{t+1}
        v_bfe_u32 v{t+2}, v{vL}, 4, 1
        v_lshrrev_b32 v{t+4}, 5, v{vL}
        v_lshl_add_u32 v{t+1}, v{t}, 7, v{t+1}
        v_and_b32 v{t+3}, 2, v{t}
        v_or_b32 v{t+3}, v{t+3}, v{t+2}
        v_lshl_add_u32 v{t+1}, v{t+3}, 5, v{t+1}
        v_lshrrev_b32 v{t+3}, 4, v{vL}
        v_lshl_add_u32 v{vWR0}, v{t+3}, 10, v{t+1}
        v_lshl_add_u32 v{vWR2}, v{t+4}, 10, v{t+1}''')
        if S: k(f'v_xor_b32 v{vWR0}, 64, v{vWR0}\nv_xor_b32 v{vWR2}, 64, v{vWR2}')
        k(f'''v_xor_b32 v{vWR1}, 32, v{vWR0}
        v_and_b32 v{t}, 31, v{vL}
        v_bfe_u32 v{t+1}, v{vL}, 1, 3
        v_xor_b32 v{t+1}, v{t+1}, v{t+4}
        v_lshlrev_b32 v{t+1}, 4, v{t+1}
        v_lshl_add_u32 v{t+1}, v{t}, 7, v{t+1}
        s_lshl_b32 s{sT0}, s{sGW}, 12
        s_add_u32 s{sT0}, s{sT0}, {L_X}
        v_add_u32 v{vA1}, s{sT0}, v{t+1}
        v_xor_b32 v{vA1+1}, 32, v{vA1}
        v_xor_b32 v{vA1+2}, 64, v{vA1}
        v_xor_b32 v{vA1+3}, 0x60, v{vA1}''')
    def consts1(self):
        k = self.k; t = vT + 8; S = self.S; c = self.cfg
        k(f'''v_and_b32 v{t}, 31, v{vL}
        v_lshrrev_b32 v{t+2}, 5, v{vL}
        v_lshlrev_b32 v{vQO}, 11, v{t+2}
        v_lshl_add_u32 v{vQO}, v{t}, 4, v{vQO}
        v_bfe_u32 v{t+1}, v{vL}, 4, 1
        v_mul_u32_u24 v{vHO}, 49152, v{t+1}
        v_lshl_add_u32 v{vHO}, v{t+2}, 8, v{vHO}
        v_and_b32 v{t+1}, 15, v{vL}
        v_lshl_add_u32 v{vHO}, v{t+1}, 4, v{vHO}
        v_lshlrev_b32 v{aL16}, 4, v{vL}
        v_add_u32 v{aL16b}, 4096, v{aL16}''')
        k(f"""s_add_u32 s{sC2O}, s{sG}, 16
        s_lshl_b32 s{sC2O}, s{sC2O}, 7
        s_and_b32 s{sT1}, s{sG}, 3
        s_lshl_b32 s{sT1}, s{sT1}, 7
        s_add_u32 s{sC3O}, s{sC3O}, s{sT1}
        s_add_u32 s{sC3O}, s{sC3O}, 256
        s_lshl2_add_u32 s{sT1}, s{sI}, s{sGW}
        s_mul_i32 s{sT1}, s{sT1}, {2*49152}
        s_add_u32 s{sT1}, s{sT1}, {HIM + S*1024}
        s_lshl4_add_u32 s{sHE}, s{sC1}, s{sT1}
        s_lshl4_add_u32 s{sHL}, s{sC3O}, s{sT1}
        s_mul_i32 s{sT2}, s{sI}, {240*2048}
        s_lshl_b32 s{sT1}, s{sGW}, 9
        s_add_u32 s{sT2}, s{sT2}, s{sT1}
        s_add_u32 s{sT2}, s{sT2}, {QKV + S*8192}
        s_lshl_b32 s{sT1}, s{sC1}, 7
        s_add_u32 s{sQS1}, s{sT2}, s{sT1}
        s_lshl_b32 s{sT1}, s{sC2O}, 7
        s_add_u32 s{sQS2}, s{sT2}, s{sT1}
        s_cmp_lt_u32 s{sG}, 14
        s_cselect_b32 s{sQS2}, s{sQS2}, {OOB}
        s_cmp_lt_u32 s{sG}, 10
        s_cselect_b32 s{sQF}, {hex(f2u(LOG2E / math.sqrt(20.0)))}, 1.0
        s_lshl_b32 s{sFLAG}, s2, 7""")
    def consts2(self):
        k = self.k; S = self.S; c = self.cfg
        k(f'''s_bfe_u32 s{sAI}, s2, 0x40003
        s_and_b32 s{sT0}, s2, 7
        s_lshr_b32 s{sT1}, s2, 7
        s_lshl1_add_u32 s{sAJ}, s{sT0}, s{sT1}''')
        if c.g2map == 0:
            k(f's_bfe_u32 s{sT1}, s2, 0x20003\ns_lshl2_add_u32 s{sR2}, s{sT0}, s{sT1}\ns_lshr_b32 s{sC2}, s2, 5')
        else:
            k(f'''s_lshr_b32 s{sT1}, s{sT0}, 1
            s_bfe_u32 s{sT2}, s2, 0x30003
            s_lshl3_add_u32 s{sR2}, s{sT1}, s{sT2}
            s_and_b32 s{sT1}, s2, 1
            s_lshr_b32 s{sT2}, s2, 6
            s_lshl2_add_u32 s{sC2}, s{sT1}, s{sT2}''')
        k(f'''s_mul_i32 s{sT0}, s{sC2}, 68
        s_mul_i32 s{sT1}, s{sGW}, {5 if S else 12}
        s_add_u32 s{sT1}, s{sT0}, s{sT1}
        s_mul_i32 s{sWB}, s{sT1}, 5120
        s_add_u32 s{sWB}, s{sWB}, {W2P + (48*5120 if S else 0)}
        s_mul_i32 s{sSTG}, s{sGW}, 20480
        s_cmp_eq_u32 s{sGW}, 3
        s_cselect_b32 s{sSTG}, {L_EXT}, s{sSTG}
        s_lshr_b32 s{sPL2}, s{sR2}, 1''')
        if S:
            k(f"""s_mul_i32 s{sT1}, s{sGW}, 12
            s_add_u32 s{sT1}, s{sT0}, s{sT1}
            s_mul_i32 s{sCD}, s{sT1}, 5120
            s_add_u32 s{sCD}, s{sCD}, {W2P}
            s_mov_b64 s[{S_OUT}:{S_OUT+1}], s[{S_TMP}:{S_TMP+1}]
            s_mov_b32 s{S_OUT+2}, {2048*1280}
            s_mov_b32 s{S_OUT+3}, 0x20000""")
    def consts3(self):
        k = self.k; S = self.S
        if S: k(f's_lshl4_add_u32 s{sT1}, s{sR2}, s{sGW}\ns_mul_i32 s{sT1}, s{sT1}, 5120\ns_add_u32 s{sT1}, s{sT1}, {OIM}')
        else: k(f's_mul_i32 s{sT1}, s{sR2}, {4*49152}\ns_mul_i32 s{sT0}, s{sGW}, 12288\ns_add_u32 s{sT1}, s{sT1}, s{sT0}\ns_add_u32 s{sT1}, s{sT1}, {HIM}')
        for d in range(4):
            k(f's_add_u32 s{sT0}, s{sGW}, {d}\ns_and_b32 s{sT0}, s{sT0}, 3\ns_mul_i32 s{sT0}, s{sT0}, {20480 if S else 49152}\ns_add_u32 s{sAM+d}, s{sT0}, s{sT1}')
        k(f'''s_mul_i32 s{sKVS}, s{sAI}, {240*2048}
        s_mul_i32 s{sT1}, s{sAJ}, {5*2048}
        s_add_u32 s{sKVS}, s{sKVS}, s{sT1}
        s_mul_i32 s{sKVM}, s{sW}, 768''')

    def fg(self, d, src, t):
        self.k(f'v_bfe_u32 v{t}, v{src}, 2, 2\nv_and_b32 v{d}, 3, v{src}\nv_lshlrev_b32 v{d}, 13, v{d}\nv_lshl_add_u32 v{d}, v{t}, 8, v{d}')
    def fi(self, d, src, t):
        self.k(f'v_bfe_u32 v{t}, v{src}, 3, 1\nv_and_b32 v{d}, 7, v{src}\nv_lshlrev_b32 v{d}, 10, v{d}\nv_lshl_add_u32 v{d}, v{t}, 7, v{d}')
    def poll(self, kind, thr):
        k = self.k; a = vEX; st = {}
        srd = S_DBG if kind == 'dbg' else S_WS
        def addr():
            t = vT + 10
            if kind == 'dbg': k(f'v_mov_b32 v{a}, 0')
            elif kind == 'rc':
                self.fg(a, vL, t); self.fi(t + 1, vL, t)
                k(f"""s_lshl_b32 s{sT1}, s2, 7
                s_and_b32 s{sT2}, s{sT1}, {0x39 << 7}
                s_and_b32 s{sT1}, s{sT1}, {0xc6 << 7}
                v_add_u32 v{a}, s{sT2}, v{a}
                v_add_u32 v{t+1}, s{sT1}, v{t+1}
                s_mov_b32 vcc_lo, 0xffff0000
                s_mov_b32 vcc_hi, 0xffff0000
                v_cndmask_b32 v{a}, v{a}, v{t+1}, vcc""")
            elif kind == 'pk':
                self.fi(t + 1, vL, t)
                k(f"""s_lshl_b32 s{sT1}, s2, 7
                s_and_b32 s{sT1}, s{sT1}, {0xc6 << 7}
                v_add_u32 v{t+1}, s{sT1}, v{t+1}
                s_mul_i32 s{sT1}, s{sC2}, 5
                s_lshr_b32 s{sT1}, s{sT1}, 2
                v_lshrrev_b32 v{a}, 1, v{vL}
                v_lshl_add_u32 v{a}, v{a}, 3, v{vL}
                v_add_lshl_u32 v{a}, v{a}, s{sT1}, 7
                s_mov_b32 vcc_lo, 0
                s_mov_b32 vcc_hi, 0xffff0000
                v_cndmask_b32 v{a}, v{a}, v{t+1}, vcc""")
            elif kind == 'kv':
                k(f"""v_lshrrev_b32 v{t}, 4, v{vL}
                v_sub_u32 v{t}, s{sAI}, v{t}
                v_max_i32 v{t}, 0, v{t}
                v_mov_b32 v{t+1}, s{sPL2}
                s_mov_b32 vcc_lo, 0
                s_mov_b32 vcc_hi, 0xffff0000
                v_cndmask_b32 v{t+1}, v{t}, v{t+1}, vcc""")
                self.fi(t + 1, t + 1, t); self.fg(a, vL, t)
                k(f'v_add_u32 v{a}, v{a}, v{t+1}')
        def issue():
            self.uid += 1; u = self.uid
            k(f's_cmp_lg_u32 s{sGW}, 0\ns_cbranch_scc1 L_np{u}')
            k(f'buffer_load_dword v{vP}, v{a}, s[{srd}:{srd+3}], 0 offen sc1')
            k.nvm -= 1; st['t'] = k.nvm
            k.label(f'L_np{u}')
        def check(): self.poll_check(st['t'], vP, a, srd, '0', thr)
        return addr, issue, check
    def ext_a(self):
        k = self.k
        if self.S:
            k(f'''s_lshl_b32 s{sT2}, s{sGW}, 10
            s_add_u32 m0, s{sT2}, {L_EXT}
            s_mul_i32 s{sT1}, s{sG}, 10240
            s_add_u32 s{sT1}, s{sT1}, s{sT2}
            s_add_u32 s{sT1}, s{sT1}, {WEXT}''')
            k(f'buffer_load_dwordx4 v{aL16}, s[{S_WS}:{S_WS+3}], s{sT1} offen sc1 lds')
        k(f'''v_and_b32 v{vT+10}, 31, v{vL}
        v_lshlrev_b32 v{vT+10}, 3, v{vT+10}
        s_lshl2_add_u32 s{sT1}, s{sI}, s{sGW}
        s_lshl_b32 s{sT1}, s{sT1}, 8
        s_add_u32 s{sT1}, s{sT1}, {STATS}''')
        self.t_ea = k(f'buffer_load_dwordx2 v[{vST}:{vST+1}], v{vT+10}, s[{S_WS}:{S_WS+3}], s{sT1} offen sc1')
    def ext_b(self):
        k = self.k
        k(f'''s_lshl_b32 s{sT2}, s{sGW}, 9
        s_add_u32 m0, s{sT2}, {L_EXT + 8192}
        s_mul_i32 s{sT1}, s{sG}, 10240
        s_add_u32 s{sT1}, s{sT1}, s{sT2}
        s_add_u32 s{sT3}, s{sT1}, {WEXT + 8192}
        s_mov_b32 exec_hi, 0''')
        k(f'buffer_load_dwordx4 v{aL16}, s[{S_WS}:{S_WS+3}], s{sT3} offen sc1 lds')
        k(f'''s_mov_b32 exec_hi, -1
        s_lshl1_add_u32 m0, s{sT2}, {L_EXT + 4096}
        s_add_u32 s{sT1}, s{sT1}, s{sT2}
        s_add_u32 s{sT1}, s{sT1}, {WEXT + 4096}''')
        self.t_eb = k(f'buffer_load_dwordx4 v{aL16}, s[{S_WS}:{S_WS+3}], s{sT1} offen sc1 lds')
    def stats_prep(self):
        k = self.k
        k(f'v_rsq_f32 v{vRS}, v{vST+1}')
        for e in range(4): k(f'v_mov_b32 v{vMEAN+e}, v{vST}')
        k(f'v_mul_f32 v{vC1}, {hex(f2u(-LOG2E))}, v{vRS}\nv_mul_f32 v{vST}, s{sQF}, v{vRS}')
    def job_gu(self, acc, soff, imm):
        k = self.k; J = []; out = vT
        def one(s): J.append(lambda: k(s))
        for e0 in (0, 4):
            for e in range(e0, e0 + 4): one(f'v_mul_f32 v{acc+8+e}, v{acc+e}, v{acc+8+e}')
            for e in range(e0, e0 + 4): one(f'v_mul_f32 v{acc+e}, v{vC1}, v{acc+e}')
            for e in range(e0, e0 + 4): one(f'v_exp_f32 v{acc+e}, v{acc+e}')
            for e in range(e0, e0 + 4): one(f'v_fma_f32 v{acc+e}, v{acc+e}, v{vST+1}, v{vST+1}')
            for e in range(e0, e0 + 4): one(f'v_rcp_f32 v{acc+e}, v{acc+e}')
            for e in range(e0, e0 + 4): one(f'v_mul_f32 v{acc+e}, v{acc+e}, v{acc+8+e}')
            for e in range(e0, e0 + 4, 2): one(f'v_cvt_pk_bf16_f32 v{out+e//2}, v{acc+e}, v{acc+e+1}')
        def st(): self.t_store = k(f'buffer_store_dwordx4 v[{out}:{out+3}], v{vHO}, s[{S_WS}:{S_WS+3}], s{soff} offen offset:{imm} sc1')
        J.append(st)
        return J
    def qkv_half(self, acc, scale, soff, off):
        k = self.k
        for e in range(8): k(f'v_mul_f32 v{acc+e}, v{scale}, v{acc+e}')
        k(f's_add_u32 s{sT1}, s{soff}, {off}')
        for e in range(0, 8, 2): k(f'v_cvt_pk_bf16_f32 v{acc+e//2}, v{acc+e}, v{acc+e+1}')
        self.t_store = k(f'buffer_store_dwordx4 {vr(acc,4)}, v{vQO}, s[{S_WS}:{S_WS+3}], s{sT1} offen sc1')
    def job_e1(self, j):
        k = self.k
        def f():
            self.uid += 1; u = self.uid
            tt, half = j >> 1, j & 1; acc = vA0 + 16 * tt
            k(f's_bitcmp1_b32 s2, 6\ns_cbranch_scc1 L_eq{u}')
            s0 = k.snap()
            J = self.job_gu(acc, sHE, tt * 512)
            for x in (J[26:] if half else J[:26]): x()
            k.flush_hazards()
            k(f's_branch L_ed{u}')
            k.restore(s0)
            k.label(f'L_eq{u}')
            self.qkv_half(acc + 8 * half, vST, sQS1, tt * 4096 + half * 16384)
            if not half: k.nvm -= 1
            k.flush_hazards()
            k.label(f'L_ed{u}')
        return f
    def csb_setup(self):
        k = self.k; tmp = vT + 11
        k(f"""s_bitcmp1_b32 s{sI}, 0
        s_cselect_b64 s[{sT2}:{sT3}], s[{S_U}:{S_U+1}], s[{S_G}:{S_G+1}]
        s_cselect_b32 s{sT4}, 0, s{S_Q+2}
        s_cselect_b32 s{sPL2}, {OOB}, s{sPL2}
        s_add_u32 s{sPL2}, s{sPL2}, 4096
        s_movk_i32 s{sT1}, 3072
        s_cmp_eq_u32 s{sW}, 2
        s_cselect_b64 s[{S_WD}:{S_WD+1}], s[{S_Q}:{S_Q+1}], s[{sT2}:{sT3}]
        s_cselect_b32 s{S_WD+2}, s{sT4}, 0
        s_cselect_b32 s{sT4}, s{sPL2}, {OOB}
        s_cselect_b32 s{sT1}, 3840, s{sT1}
        s_cselect_b32 s{sCO}, s{sC2O}, s{sC3O}
        s_cmp_eq_u32 s{sW}, 1
        s_cselect_b32 s{S_WD+2}, {640*3072}, s{S_WD+2}
        s_cselect_b32 s{sCD}, s{sCD}, s{sT4}
        s_add_u32 s{sCD}, s{sCD}, 4096
        s_mov_b32 s{S_WD+3}, 0x20000
        s_bfe_u32 s{sSLOT}, s2, {hex(0x4 | ((self.cfg.nslot.bit_length()-1) << 16))}
        s_cmp_ge_u32 s{sCD}, {OOB}
        s_cselect_b32 s{sSLOT}, 9, s{sSLOT}
        s_lshr_b32 s{sT2}, s{sI}, 1
        s_mul_i32 s{sT2}, s{sT2}, 80
        s_mul_i32 s{sT2}, s{sT2}, s{sT1}
        s_add_u32 s{sCO}, s{sCO}, s{sT2}
        s_lshl_b32 s{sKVM}, s{sT1}, 3
        v_lshrrev_b32 v{tmp}, 3, v{vL}
        v_and_b32 v{vCSG}, 7, v{vL}
        v_lshlrev_b32 v{vCSG}, 4, v{vCSG}
        v_mad_u32_u24 v{vCSG}, v{tmp}, s{sT1}, v{vCSG}""")
    def slot_test(self, newer):
        return f's_sub_u32 s{sCNT}, s{sSLOT}, {newer[0][3]}\ns_cmp_le_u32 s{sCNT}, {newer[-1][3] - newer[0][3]}'
    def job_csb(self, lump):
        k = self.k; c = self.cfg
        buf = vX + 120
        st = {}
        def ld(p):
            def f():
                k(f's_cmp_lg_u32 s{sSLOT}, {p}\ns_cbranch_scc1 L_ncb{p}')
                for j in range(10):
                    k(f'buffer_load_dwordx4 {vr(buf+4*j,4)}, v{vCSG}, s[{S_WD}:{S_WD+3}], s{sCO} offen')
                    if j < 9: k(f's_add_u32 s{sCO}, s{sCO}, s{sKVM}')
                k.nvm -= 10; k.cond.append((k.nvm, 10, self.slot_test, p)); st['t'] = Tok(k.nvm + 1)
                k.label(f'L_ncb{p}')
            return f
        def use():
            k.wait(vm=st['t'])
            k(f's_cmp_ge_u32 s{sSLOT}, 8\ns_cbranch_scc1 L_csb')
            self.cs_run(buf, vCSA)
            k(f'buffer_store_dwordx2 {vr(vCSA,2)}, v{vCSO}, s[{S_WS}:{S_WS+3}], s{sCD} offen sc1')
            k.nvm -= 1; self.t_b = Tok(k.nvm + 1)
            k.flush_hazards()
            k.label('L_csb')
        for p in range(c.nslot): lump[c.cb + p].append(('first', ld(p)))
        u = c.cb + c.nslot - 1 + c.cbd
        lump[u].append(('first', use))
        assert u <= 6
    def pack_setup(self):
        k = self.k
        a0, a1, go = vA1 + 6, vA1 + 7, vA1 + 8
        d = vT; x, y = vT + 10, vT + 11
        k(f"""s_mul_i32 s{sT1}, s2, 52429
        s_lshr_b32 s{sT1}, s{sT1}, 19
        s_mul_i32 s{sT3}, s{sT1}, 10
        s_sub_u32 s{sPKL}, s2, s{sT3}
        s_lshl2_add_u32 s{sT2}, s{sT1}, s{sGW}
        s_mul_i32 s{sPKS}, s{sT2}, 10240
        s_lshl_b32 s{sT3}, s{sPKL}, 7
        s_add_u32 s{sPKS}, s{sPKS}, s{sT3}
        s_mul_i32 s{sT3}, s{sT1}, 5120
        s_lshl_b32 s{sT4}, s{sGW}, 8
        s_add_u32 s{sT3}, s{sT3}, s{sT4}
        s_add_u32 s{sT3}, s{sT3}, {W2P}
        s_cmp_lt_u32 s{sT2}, 96
        s_cselect_b32 s{sPKD0}, s{sT3}, {OOB}
        s_cselect_b32 s{sPKS}, s{sPKS}, {OOB}
        s_add_u32 s{sPKD1}, s{sPKD0}, {24*5120}
        s_mul_i32 s{sT1}, s{sT2}, 52429
        s_lshr_b32 s{sT1}, s{sT1}, 18
        s_mul_i32 s{sT3}, s{sT1}, 5
        s_sub_u32 s{sT3}, s{sT2}, s{sT3}
        s_and_b32 s{sT4}, s{sT1}, 3
        s_lshr_b32 s{sT1}, s{sT1}, 2
        s_mul_i32 s{sT1}, s{sT1}, 5
        s_cmp_gt_u32 s{sT3}, 2
        s_subb_u32 s{sT5}, s{sT3}, 0
        s_cmp_eq_u32 s{sT3}, 2
        s_cselect_b32 s{sT5}, s{sT4}, s{sT5}
        s_cselect_b32 s{sT4}, 4, s{sT4}
        s_add_u32 s{sT1}, s{sT1}, s{sT4}
        s_mul_i32 s{sT1}, s{sT1}, 5120
        s_lshl_b32 s{sT5}, s{sT5}, 8
        s_add_u32 s{sT1}, s{sT1}, s{sT5}
        s_add_u32 s{sT1}, s{sT1}, {W2P + 48*5120}
        s_cmp_lt_u32 s{sT2}, 80
        s_cselect_b32 s{sPKD2}, s{sT1}, {OOB}
        s_bfe_u32 s{sSLOT}, s2, {hex(0x4 | ((self.cfg.nslot.bit_length()-1) << 16))}
        v_lshrrev_b32 v{go}, 3, v{vL}
        v_mul_u32_u24 v{go}, 1280, v{go}
        v_and_b32 v{x}, 7, v{vL}
        v_lshl_add_u32 v{go}, v{x}, 4, v{go}""")
    def job_pack(self, lump):
        k = self.k; c = self.cfg
        a0, a1, go = vA1 + 6, vA1 + 7, vA1 + 8
        d = vT; x, y = vT + 4, vT + 5
        def issue(p):
            def f():
                k(f"""s_cmp_lg_u32 s{sSLOT}, {p}
                s_cbranch_scc1 L_npk{p}
                s_mul_i32 s{sT2}, s{sGW}, 3072
                s_add_u32 m0, s{sT2}, {L_PACK}
                s_add_u32 s{sT1}, s{sPKS}, {96*10240 - 1024}""")
                k(f'buffer_load_dwordx4 v{go}, s[{S_WD}:{S_WD+3}], s{sPKS} offen lds')
                k(f'buffer_load_dwordx4 v{go}, s[{S_WD}:{S_WD+3}], s{sT1} offen offset:1024 lds')
                k(f's_add_u32 m0, s{sT2}, {L_PACK + 2048}')
                k(f'buffer_load_dwordx4 v{go}, s[{S_WO}:{S_WO+3}], s{sPKS} offen lds')
                k.nvm -= 3; k.cond.append((k.nvm, 3, self.slot_test, p)); self.t_pk = Tok(k.nvm + 1)
                k.label(f'L_npk{p}')
            return f
        def addr1():
            k(f"""s_lshl_b32 s{sT1}, s{sPKL}, 1
            v_lshrrev_b32 v{x}, 5, v{vL}
            v_add_u32 v{x}, s{sT1}, v{x}
            v_mul_u32_u24 v{y}, 52, v{x}
            v_lshrrev_b32 v{y}, 8, v{y}
            v_mul_u32_u24 v{a0}, 5, v{y}
            v_sub_u32 v{x}, v{x}, v{a0}
            v_bfe_u32 v{d}, v{vL}, 4, 1
            v_lshl_add_u32 v{d+1}, v{x}, 1, v{d}
            v_cmp_lt_u32 vcc, 4, v{d+1}
            v_mul_u32_u24 v{y}, {2*340}, v{y}
            v_add_u32 v{a1}, {340-6}, v{d+1}
            v_cndmask_b32 v{a1}, v{d+1}, v{a1}, vcc
            v_cmp_eq_u32 vcc, 5, v{d+1}
            v_mov_b32 v{d+2}, {340+4}
            v_and_b32 v{d+3}, 15, v{vL}
            v_cndmask_b32 v{a1}, v{a1}, v{d+2}, vcc
            v_add_lshl_u32 v{a1}, v{a1}, v{y}, 10
            v_lshl_add_u32 v{a1}, v{d+3}, 4, v{a1}""")
        def addr2():
            k(f"""v_and_b32 v{d+1}, 3, v{vL}
            v_lshlrev_b32 v{d+2}, 4, v{d+1}
            v_lshl_add_u32 v{d+2}, v{d}, 3, v{d+2}
            v_cmp_eq_u32 vcc, 2, v{x}
            v_lshlrev_b32 v{d+1}, 3, v{d+1}
            v_lshl_add_u32 v{d+1}, v{d}, 5, v{d+1}
            v_cndmask_b32 v{a0}, v{d+2}, v{d+1}, vcc
            v_bfe_u32 v{x}, v{vL}, 2, 2
            v_lshl_add_u32 v{a0}, v{x}, 7, v{a0}
            v_lshrrev_b32 v{x}, 5, v{vL}
            v_lshl_add_u32 v{a0}, v{x}, 6, v{a0}
            s_mul_i32 s{sT1}, s{sGW}, 3072
            s_add_u32 s{sT1}, s{sT1}, {L_PACK}
            v_add_u32 v{a0}, s{sT1}, v{a0}""")
        D = (vT, 12, vA1 + 12)
        def rd():
            k.wait(vm=self.t_pk)
            for it in range(3):
                k(f'ds_read_b64_tr_b16 {vr(D[it],2)}, v{a0} offset:{it*1024}')
                self.t_pr = k(f'ds_read_b64_tr_b16 {vr(D[it]+2,2)}, v{a0} offset:{it*1024+512}')
        def st():
            k.wait(lg=self.t_pr)
            for it, sd in enumerate((sPKD0, sPKD1, sPKD2)):
                self.t_b = k(f'buffer_store_dwordx4 {vr(D[it],4)}, v{a1}, s[{S_WS}:{S_WS+3}], s{sd} offen sc1')
        n = c.pk
        for p in range(c.nslot): lump[n + p].append(('first', issue(p)))
        u = n + c.nslot - 1 + c.pkd
        lump[1].append(addr1); lump[2].append(addr2); lump[u].append(rd); lump[u + 1].append(st)
        assert 3 <= u and u + 1 <= 8 and u + 1 < c.pa + 4
    def job_ones(self):
        k = self.k
        d = vT; tk = vT + 10; a = vT + 11
        k(f'''s_mul_i32 s{sT1}, s{sW}, 48
        v_add_u32 v{tk}, s{sT1}, v{vL}
        s_sub_i32 s{sT1}, 2, s{sAI}
        s_lshl_b32 s{sT1}, s{sT1}, 7
        v_cmp_le_i32 vcc, s{sT1}, v{tk}
        v_mov_b32 v{d+1}, 0x3f803f80
        v_lshlrev_b32 v{a}, 4, v{tk}
        v_cndmask_b32 v{d}, 0, v{d+1}, vcc
        v_lshrrev_b32 v{d+2}, 7, v{tk}
        v_mul_u32_u24 v{d+2}, {240*2048 - 2048}, v{d+2}
        v_add_u32 v{d+2}, v{d+2}, v{a}
        v_mov_b32 v{d+3}, {OOB}
        v_cndmask_b32 v{vT+8}, v{d+3}, v{d+2}, vcc
        v_mov_b32 v{d+1}, v{d}
        v_mov_b32 v{d+2}, v{d}
        v_mov_b32 v{d+3}, v{d}
        v_add_u32 v{a}, {L_ONES}, v{a}
        ds_write_b128 v{a}, v[{d}:{d+3}]
        v_mov_b32 v{tk}, 0
        v_mov_b32 v{a}, {L_CNT}
        ds_write2_b32 v{a}, v{tk}, v{tk} offset0:0 offset1:1''')
    def job_kv(self):
        k = self.k; J = []; S = self.S
        for e in range(10):
            def f(e=e):
                src = QKV - 2*240*2048 + ((80 if e < 5 else 155) + e) * 2048
                k(f's_add_u32 m0, s{sKVM}, {L_KV + e*CH}\ns_add_u32 s{sT1}, s{sKVS}, {src}\ns_mov_b32 exec_hi, 0xffff')
                self.t_kv = k(f'buffer_load_dwordx4 v{vT+8}, s[{S_WS}:{S_WS+3}], s{sT1} offen sc1 lds')
                k('s_mov_b32 exec_hi, -1')
            J.append(f)
        def q():
            k(f'''s_lshl_b32 s{sT1}, s{sGW}, 9
            s_add_u32 s{sT1}, s{sT1}, s{sKVS}
            s_add_u32 s{sT2}, s{sT1}, {QKV + S*3*2048}
            s_add_u32 s{sT1}, s{sT1}, {QKV + 4096 + 8*S}
            v_lshrrev_b32 v{vT+10}, 5, v{vL}
            v_lshl_add_u32 v{vT+10}, v{vT+10}, 30, v{vQO}''')
            k(f'buffer_load_dwordx4 v[{vQ}:{vQ+3}], v{vQO}, s[{S_WS}:{S_WS+3}], s{sT2} offen sc1')
            self.t_kv = k(f'buffer_load_dwordx2 v[{vQ+4}:{vQ+5}], v{vT+10}, s[{S_WS}:{S_WS+3}], s{sT1} offen sc1')
        J.append(q)
        return J
    def dmask(self, r):
        n0 = 8 * (r >> 2) + (r & 3)
        return f's_lshl_b32 s{sT2}, -1, {n0}\ns_lshl_b32 s{sT3}, -1, {n0+4}'
    def job_masks(self, lo, hi):
        k = self.k
        def f():
            k(f'v_mov_b32 v{vT+10}, 0xffff')
            for j in range(lo, hi):
                k(self.dmask(2*j) + f'\nv_cndmask_b32 v{vM+j}, 0, v{vT+10}, s[{sT2}:{sT3}]')
                k(self.dmask(2*j+1) + f'\nv_cndmask_b32 v{vM+j}, v{vM+j}, -1, s[{sT2}:{sT3}]')
        return f

    def frag_list(self):
        c = self.cfg; F = []
        ea, eb = c.pa + 4, c.pb + 4
        for n in range(25):
            slot = (n & 3) * 16384
            for q in range(8):
                f = dict(stage=n, first=(q == 0))
                if 10 <= n < 15:
                    kk = 8 * (n - 10) + q
                    f.update(addr=vWR2, off=slot + q * 2048, d2=512, acc=vA1, b=vX + 4 * kk, zero=(kk == 0))
                else:
                    t, tt = q >> 1, q & 1
                    kk = 4 * (n if n < 10 else n - 15) + t
                    f.update(addr=(vWR0, vWR1)[tt], off=slot + t * 4096, d2=512, acc=vA0 + 16 * tt, b=vX + 4 * kk, zero=(kk == 0))
                    if n < 10 and tt == 0: f['xread'] = (vX + 4 * kk, vA1 + t, slot)
                F.append(f)
                def ext(addr, off, acc, d2):
                    F.append(dict(stage=n, first=False, addr=addr, off=0, d2=d2, acc=acc, b=vMEAN, zero=False, ext=L_EXT + off))
                if n == ea and q == 1: ext(vWR0, 0, vA0, 512); ext(vWR1, 0, vA0 + 16, 512)
                if n == eb and q == 1: ext(vWR2, 8192, vA1, 512)
                if n == 20 and q == 1: ext(vWR0, 4096, vA0, 512)
                if n == 21 and q == 1: ext(vWR1, 4096, vA0 + 16, 512)
        return F
    def issue_reads(self, F, i):
        k = self.k; f = F[i]
        if f['first']: self.barrier(f['stage'])
        if 'xread' in f:
            d, a, off = f['xread']
            k(f'ds_read_b128 {vr(d,4)}, v{a} offset:{off}')
        fr = vFR + 4 * (i & 3); a = f['addr']
        if 'ext' in f:
            k(f"v_add_u32 v{vT+9}, {f['ext']}, v{a}"); a = vT + 9
        k(f"ds_read_b64_tr_b16 {vr(fr,2)}, v{a} offset:{f['off']}")
        f['tok'] = k(f"ds_read_b64_tr_b16 {vr(fr+2,2)}, v{a} offset:{f['off']+f['d2']}")
        if f['first'] and self.S: self.run_lump(f['stage'])
    def run_lump(self, n):
        k = self.k
        if self.cfg.prio == 1: k('s_setprio 0')
        if self.cfg.prio == 3 and self.S: k('s_setprio 1')
        for j in self.lump[n]: j()
        self.lump[n] = []
        if self.cfg.prio == 1: k('s_setprio 1')
        if self.cfg.prio == 3 and self.S: k('s_setprio 0')
    def barrier(self, n):
        k = self.k
        if not self.S: self.run_lump(n - 1)
        toks = [self.stok[n]] + [g() for g in self.pre[n]]
        k.wait(vm=max(t.n for t in toks), lg='all' if n in self.drain else None)
        k('s_barrier')
        if n in (0, 10, 15): self.stamp()
        if n in (0, 1, 2, 3): self.stamp('p0')
        if n <= 10: self.stamp('p1')
        if 8 <= n <= 19: self.stamp('p2')
        if n >= 14: self.stamp('p3')
        for g in self.post[n]: g()

    def gemm1(self):
        k = self.k; c = self.cfg; S = self.S
        L = self.lump = {n: [] for n in range(-1, 26)}
        pre = self.pre = {n: [] for n in range(26)}
        post = self.post = {n: [] for n in range(26)}
        ea, eb = c.pa + 4, c.pb + 4
        if S:
            for n, v in ((c.fa, 1), (c.fb, 2), (c.fq, 3)):
                L[n].append(lambda v=v: self.flag_store(v))
        else:
            for n, kind, thr in ((0, 'dbg', 1), (c.pa, 'rc', 1), (c.pb, 'pk', 2), (c.pq, 'kv', 3)):
                a_, i_, c_ = self.poll(kind, thr)
                L[n + 1].append(c_)
                L[n - 1 if n else 0].append(('late', a_))
                L[n].append(('late', i_))
            assert c.fa >= 2 and c.pa >= 3 and c.pb >= max(c.pa + 2, c.c2 + 1)
        self.inter = {n: [] for n in range(26)}; self.drain = set()
        nxt = 2
        for n in range(24):
            depth = c.dp1 if n < c.dpx else c.dp2
            mode = c.dm1 if n < 8 else c.dm2
            while nxt <= min(n + depth, 24):
                if mode == 0 and not S and c.alast: L[n] += [('late', f) for f in self.dma_stage(nxt)]
                elif mode == 0 or (mode == 1 and S): L[n] += self.dma_stage(nxt)
                elif mode == 1: post[n] += self.dma_stage(nxt)
                else: self.inter[n] += self.dma_stage(nxt)
                if nxt == n + 3 and nxt >= 4: self.drain.add(n)
                nxt += 1
        pre[c.fa].append(lambda: self.t_a)
        if S: self.job_pack(L)
        else: self.job_csb(L)
        L[9 if S else c.c2].append(self.consts2); L[10 if S else c.c2 + 1].append(self.consts3)
        pre[c.fb].append(lambda: self.t_b)
        L[c.pa + 2].append(self.ext_a); pre[ea].append(lambda: self.t_ea); post[ea].append(self.stats_prep)
        if S: L[c.pb + 2].append(self.ext_b); pre[eb].append(lambda: self.t_eb)
        q0 = max(10, ea) + S
        for j in range(4): L[q0 + j].append(self.job_e1(j))
        assert q0 + 3 <= 14 + S
        g0 = max(15, eb) + S
        def e2():
            self.qkv_half(vA1, vRS, sQS2, 0); self.qkv_half(vA1 + 8, vRS, sQS2, 4096)
            self.t_q = self.t_store
        L[g0].append(e2); pre[c.fq].append(lambda: self.t_q)
        assert c.fq > g0
        L[g0 + 1].append(self.job_ones)
        L[g0 + 2].append(self.job_masks(0, 4)); L[g0 + 3].append(self.job_masks(4, 8))
        kv = self.job_kv(); n = c.pq + 2
        while kv:
            assert n <= 24
            if len(kv) <= c.kvn or n == 24: assert n > g0 + 1
            take = len(kv) if n == 24 else c.kvn
            L[n] += kv[:take]; kv = kv[take:]; n += 1
        self.g2_plan()
        for n in range(c.pb + 2, 25):
            for _ in range(c.hoist if n <= c.hoist_hi else 0):
                if self.pf and self.pf[0][0] == 'w' and self.pf[0][1] + 3 < vX + 16 * (n - 15 - S):
                    L[n].append(self.pf.pop(0)[2])
        for n in L:
            late = [j[1] for j in L[n] if isinstance(j, tuple) and j[0] == 'late']
            first = [j[1] for j in L[n] if isinstance(j, tuple) and j[0] == 'first']
            L[n] = first + [j for j in L[n] if not isinstance(j, tuple)] + late
        F = self.frag_list()
        if S and c.prio == 2: k('s_setprio 1')
        if S: self.run_lump(-1)
        for i in range(3): self.issue_reads(F, i)
        for i, f in enumerate(F):
            k.wait(lg=f['tok'])
            cin = '0' if f['zero'] else vr(f['acc'], 16)
            k(f"v_mfma_f32_32x32x16_bf16 {vr(f['acc'],16)}, {vr(vFR + 4*(i&3),4)}, {vr(f['b'],4)}, {cin}")
            if i + 3 < len(F):
                self.issue_reads(F, i + 3)
                q = self.inter[F[i + 3]['stage']]
                if q and (i % 2 == 0 or len(q) > 2): q.pop(0)()
        if not S: self.run_lump(24)
        if c.prio: k('s_setprio 0')
        assert not any(L.values())
        self.stamp()

    def attn_consts(self):
        k = self.k; t = 8; S = self.S
        k(f'''v_and_b32 v{t}, 31, v{vL}
        v_lshrrev_b32 v{t+1}, 5, v{vL}
        s_lshl_b32 s{sT0}, s{sGW}, 9
        s_add_u32 s{sT2}, s{sT0}, {L_KV + S*3*CH}
        v_mul_u32_u24 v{aK0}, {CH}, v{t+1}
        v_lshl_add_u32 v{aK0}, v{t}, 4, v{aK0}
        v_add_u32 v{aK0}, s{sT2}, v{aK0}
        s_add_u32 s{sT3}, s{sT0}, {L_KV + 2*CH + 8*S}
        v_lshl_add_u32 v{aK1}, v{t}, 4, s{sT3}
        v_bfe_u32 v{t}, v{vL}, 2, 2
        v_lshl_add_u32 v{t}, v{t+1}, 2, v{t}
        v_lshlrev_b32 v{t}, 4, v{t}
        v_and_b32 v{aV}, 1, v{vL}
        v_mul_u32_u24 v{aV}, {CH}, v{aV}
        v_and_b32 v{t+2}, 2, v{vL}
        v_lshl_add_u32 v{aV}, v{t+2}, 2, v{aV}
        s_add_u32 s{sT1}, s{sT0}, {L_KV + (5 + 3*S)*CH}
        v_add3_u32 v{aV}, v{aV}, v{t}, s{sT1}
        s_add_u32 s{sT2}, s{sT0}, {L_KV + 7*CH + 8*S}
        v_add_u32 v{t}, s{sT2}, v{t}
        s_mov_b32 s{sT2}, 0x33330000
        s_mov_b32 s{sT3}, 0x33330000
        v_cndmask_b32 v{aV}, v{aV}, v{t}, s[{sT2}:{sT3}]
        s_add_u32 s{sT1}, s{sT0}, {L_ONES + 8 - 8*S}
        v_lshl_add_u32 v{t}, v{t+1}, 6, s{sT1}
        s_mov_b32 s{sT2}, 0xcccc0000
        s_mov_b32 s{sT3}, 0xcccc0000
        v_cndmask_b32 v{aV}, v{aV}, v{t}, s[{sT2}:{sT3}]
        v_bfe_u32 v{t}, v{vL}, 4, 1
        v_mul_u32_u24 v{t}, 20480, v{t}
        v_and_b32 v{t+2}, 15, v{vL}
        v_lshl_add_u32 v{aO0}, v{t+2}, 4, v{t}
        v_lshl_add_u32 v{aO0}, v{t+1}, 8, v{aO0}
        v_lshl_add_u32 v{aO1}, v{t+2}, 3, v{t}
        v_lshl_add_u32 v{aO1}, v{t+1}, 30, v{aO1}
        s_lshl2_add_u32 s{sT0}, s{sAI}, s{sGW}
        s_lshr_b32 s{sT1}, s{sAJ}, 2
        s_lshl3_add_u32 s{sT0}, s{sT0}, s{sT1}
        s_mul_i32 s{sT0}, s{sT0}, 5120
        s_add_u32 s{sT0}, s{sT0}, {OIM + S*512}
        s_and_b32 s{sT1}, s{sAJ}, 3
        s_lshl_b32 s{sT2}, s{sT1}, 10
        s_add_u32 s{sQS1}, s{sT0}, s{sT2}
        s_lshl_b32 s{sT2}, s{sT1}, 7
        s_add_u32 s{sQS2}, s{sT0}, s{sT2}
        s_add_u32 s{sQS2}, s{sQS2}, 4096''')
    def rdK(self, t, buf, a0=None, a1=None):
        k = self.k; k0, k1 = vKB[buf]
        k(f'ds_read_b128 {vr(k0,4)}, v{a0 or aK0} offset:{t*512}')
        return k(f'ds_read_b64 {vr(k1,2)}, v{a1 or aK1} offset:{t*512}')
    def rdV(self, t, buf, a=None):
        k = self.k; v = vVB[buf]
        for q in range(4): r = k(f'ds_read_b64_tr_b16 {vr(v+2*q,2)}, v{a or aV} offset:{t*512 + q*128}')
        return r
    def qk(self, buf, S):
        k = self.k; k0, k1 = vKB[buf]
        k(f'v_mfma_f32_32x32x16_bf16 {vr(S,16)}, {vr(k0,4)}, {vr(vQ,4)}, 0')
        k(f'v_mfma_f32_32x32x8_bf16 {vr(S,16)}, {vr(k1,2)}, {vr(vQ+4,2)}, {vr(S,16)}')
    def pv(self, buf, half, P, first=False):
        self.k(f"v_mfma_f32_32x32x16_bf16 {vr(vO,16)}, {vr(vVB[buf]+4*half,4)}, {vr(P+4*half,4)}, {'0' if first else vr(vO,16)}")
    def attention(self, pf):
        k = self.k; c = self.cfg
        npf = len(pf); pts = [0]
        def sp():
            pts[0] += 1
            while npf - len(pf) < (npf * pts[0] + 33) // 34 and pf: pf.pop(0)()
        S = (vS0, vS1)
        self.stamp('at')
        t0 = self.rdK(0, 0); t8 = self.rdK(8, 1)
        tv0 = self.rdV(0, 0); tv8 = self.rdV(8, 1)
        k.wait(lg=t0); self.qk(0, S[0])
        k.wait(lg=t8); self.qk(1, S[1])
        tk = self.rdK(1, 0)
        sp(); sp()
        for r in range(16):
            k(self.dmask(r) + f'\nv_cndmask_b32 v{S[0]+r}, v{S[0]+r}, v{S[1]+r}, s[{sT2}:{sT3}]')
        k.wait(lg=tk); self.qk(0, S[1])
        tk = self.rdK(2, 1)
        def expcvt(Sb, half):
            for r in range(8*half, 8*half + 8): k(f'v_exp_f32 v{Sb+r}, v{Sb+r}')
            for r in range(8*half, 8*half + 8, 2): k(f'v_cvt_pk_bf16_f32 v{vPP+r//2}, v{Sb+r}, v{Sb+r+1}')
        for half in range(2):
            expcvt(S[0], half)
            for j in range(4*half, 4*half + 4): k(f'v_and_b32 v{vM+j}, v{vM+j}, v{vPP+j}')
            for j in range(4*half, 4*half + 4): k(f'v_xor_b32 v{vPP+j}, v{vM+j}, v{vPP+j}')
            k.wait(lg=tv8)
            self.pv(1, half, vM, first=(half == 0))
            sp()
            self.pv(0, half, vPP)
            sp()
        tv = self.rdV(1, 1)
        for t in range(1, 8):
            Sb = S[t & 1]
            self.stamp('at')
            if t < 7:
                k.wait(lg=tk); self.qk(t & 1, S[(t + 1) & 1])
                if t < 6: tk = self.rdK(t + 2, (t + 1) & 1)
                tvn = self.rdV(t + 1, (t + 1) & 1)
            if t == c.bh_at - (c.bh_skew if self.S else 0):
                k.wait(vm=self.t_hl)
                k('s_barrier')
                if self.S: self.flag_store(4, 8)
            for half in range(2):
                expcvt(Sb, half)
                sp()
                k.wait(lg=tv)
                self.pv(t & 1, half, vPP)
                sp()
            tv = tvn
        assert not pf
        self.stamp('at')
        tag = 'AB'[self.S]
        k(f'v_mov_b32 v8, {hex(f2u(2.0**-40))}\nv_mov_b32 v9, {hex(f2u(2.0**40))}\nv_med3_f32 v8, v{vO+12}, v8, v9')
        k(f'v_cmp_eq_f32 vcc, v8, v{vO+12}\ns_cmp_eq_u64 vcc, -1\ns_cbranch_scc1 L_aok{tag}')
        k(f's_call_b64 s[{sT4}:{sT5}], L_fallback')
        k.label(f'L_aok{tag}')
        k(f'v_rcp_f32 v8, v{vO+12}')
        for r in range(12): k(f'v_mul_f32 v{vO+r}, v8, v{vO+r}')
        for j in range(6): k(f'v_cvt_pk_bf16_f32 v{vS0+j}, v{vO+2*j}, v{vO+2*j+1}')
        k(f'buffer_store_dwordx4 {vr(vS0,4)}, v{aO0}, s[{S_WS}:{S_WS+3}], s{sQS1} offen sc1')
        self.t_o = k(f'buffer_store_dwordx2 {vr(vS0+4,2)}, v{aO1}, s[{S_WS}:{S_WS+3}], s{sQS2} offen sc1')
    def fallback(self, k):
        sB, sXr, sOr = sT0, sHE, sQF
        mx, ninf, a0, a1, a2 = 8, 9, vM, vM + 1, vM + 2
        k.label('L_fallback')
        k('s_nop 7\ns_nop 7')
        k(f'v_mov_b32 v{ninf}, 0xff800000\nv_mov_b32 v{mx}, 0xff800000')
        for ps in range(2):
            k(f's_lshl2_add_u32 s{sB}, s{sAI}, s{sGW}\ns_sub_i32 s{sB}, 8, s{sB}\ns_max_i32 s{sB}, s{sB}, 0')
            k.label(f'L_fb{ps}')
            k(f's_lshl_b32 s{sT1}, s{sB}, 9\nv_add_u32 v{a0}, s{sT1}, v{aK0}\nv_add_u32 v{a1}, s{sT1}, v{aK1}\nv_add_u32 v{a2}, s{sT1}, v{aV}')
            self.rdK(0, 0, a0, a1)
            if ps: self.rdV(0, 0, a2)
            k(f's_cmp_eq_u32 s{sB}, 0\ns_cselect_b32 s{sXr}, -1, 0\ns_and_b32 s{sT1}, s{sB}, 7\ns_cselect_b32 s{sOr}, -1, 0\ns_waitcnt lgkmcnt(0)')
            self.qk(0, vS0)
            for r in range(16):
                k(self.dmask(r) + f'''
                s_xor_b32 s{sT2}, s{sT2}, s{sXr}
                s_xor_b32 s{sT3}, s{sT3}, s{sXr}
                s_or_b32 s{sT2}, s{sT2}, s{sOr}
                s_or_b32 s{sT3}, s{sT3}, s{sOr}
                v_cndmask_b32 v{vS0+r}, v{ninf}, v{vS0+r}, s[{sT2}:{sT3}]''')
            if ps == 0:
                for r in range(0, 16, 2): k(f'v_max3_f32 v{mx}, v{mx}, v{vS0+r}, v{vS0+r+1}')
            else:
                for r in range(16): k(f'v_sub_f32 v{vS0+r}, v{vS0+r}, v{mx}')
                for r in range(16): k(f'v_exp_f32 v{vS0+r}, v{vS0+r}')
                for r in range(0, 16, 2): k(f'v_cvt_pk_bf16_f32 v{vPP+r//2}, v{vS0+r}, v{vS0+r+1}')
                self.pv(0, 0, vPP); self.pv(0, 1, vPP)
            k.flush_hazards()
            k(f's_add_u32 s{sB}, s{sB}, 1\ns_cmp_le_u32 s{sB}, 8\ns_cbranch_scc1 L_fb{ps}')
            if ps == 0:
                k(f'v_mov_b32 v{a0}, v{mx}\nv_permlane32_swap_b32 v{mx}, v{a0}\nv_max_f32 v{mx}, v{mx}, v{a0}')
                for r in range(16): k(f'v_mov_b32 v{vO+r}, 0')
        k(f's_setpc_b64 s[{sT4}:{sT5}]')

    def ldW(self, q, kap, regs):
        k = self.k; J = []
        for T in range(5):
            def f(T=T):
                k(f's_add_u32 s{sT0}, s{sWB}, {kap*5120}')
                a, off = (aL16, T*1024) if T < 4 else (aL16b, 0)
                self.toks[('w', q)] = k(f'buffer_load_dwordx4 {vr(regs[T],4)}, v{a}, s[{S_WS}:{S_WS+3}], s{sT0} offen offset:{off} sc1')
            J.append(('w', regs[T], f))
        return J
    def ldA(self, q, kap, regs, mid=False):
        k = self.k; J = []
        for d in range(4):
            def f(d=d):
                so = sAM + d; off = kap * 1024
                if off > 3500:
                    k(f's_add_u32 s{sT0}, s{so}, {off & ~4095}'); so = sT0; off &= 4095
                if mid:
                    k(f'buffer_load_dwordx2 {vr(regs[d],2)}, v{aL8}, s[{S_WS}:{S_WS+3}], s{so} offen offset:{off} sc1')
                    self.toks[('a', q)] = k(f'buffer_load_dwordx2 {vr(regs[d]+2,2)}, v{aL8}, s[{S_WS}:{S_WS+3}], s{so} offen offset:{off+512} sc1')
                else:
                    self.toks[('a', q)] = k(f'buffer_load_dwordx4 {vr(regs[d],4)}, v{aL16}, s[{S_WS}:{S_WS+3}], s{so} offen offset:{off} sc1')
            J.append(('a', regs[d], f))
        return J
    def stage_w(self):
        k = self.k; J = []
        for q in range(4):
            for T in range(5):
                def f(q=q, T=T):
                    o = T * 1024
                    k(f's_add_u32 m0, s{sSTG}, {q*5120 + o}\ns_add_u32 s{sT0}, s{sCD}, {LATE[q]*5120 + o}')
                    self.t_stg = k(f'buffer_load_dwordx4 v{aL16}, s[{S_WS}:{S_WS+3}], s{sT0} offen sc1 lds')
                J.append(f)
        return J
    def g2_plan(self):
        self.toks = {}
        if self.S:
            self.W = W = [[112 + 20*q + 4*T for T in range(5)] for q in range(5)]
            slots = [212 + 4*j for j in range(11)] + [12 + 4*j for j in range(5)]
            self.A = [slots[4*q:4*q+4] for q in range(4)] + [W[0][:4]]
            self.pf = sum((self.ldW(q, q, W[q]) for q in range(5)), [])
        else:
            self.W = [[112 + 20*(q&3) + 4*T for T in range(5)] if not 4 <= q < 8 else [12 + 4*T for T in range(5)] for q in range(12)]
            self.A = [[192 + 16*(q&3) + 4*m for m in range(4)] for q in range(12)]
            self.pf = sum((self.ldW(q, EARLY[q], self.W[q]) for q in range(4)), []) + sum((self.ldA(q, EARLY[q], self.A[q]) for q in range(4)), [])
    def kstep(self, wregs, aregs, first, q, lds=None):
        k = self.k
        q = [j[2] if isinstance(j, tuple) else j for j in q]
        for T in range(5):
            if lds: k.wait(lg=lds[0][T])
            for mt in range(4):
                acc = vACC + 4 * (5 * mt + T)
                k(f"v_mfma_f32_16x16x32_bf16 {vr(acc,4)}, {vr(wregs[T],4)}, {vr(aregs[mt],4)}, {'0' if first else vr(acc,4)}")
                if q and mt % 2 == 1: q.pop(0)()
                if lds and lds[1] is not None and mt == 0 and T > 0: lds[0][T-1] = lds[1](T - 1)
        while q: q.pop(0)()
        if lds and lds[1] is not None: lds[0][4] = lds[1](4)
    def red_write(self, base):
        k = self.k
        for d in range(1, 4):
            k(f'''s_add_u32 s{sT0}, s{sGW}, {d}
            s_and_b32 s{sT0}, s{sT0}, 3
            s_mul_i32 s{sT0}, s{sT0}, 15360
            s_add_u32 s{sT0}, s{sT0}, {base + (d-1)*5120}
            v_add_u32 v8, s{sT0}, v{aL16}''')
            for T in range(5): r = k(f'ds_write_b128 v8, {vr(vACC + 4*(5*d+T),4)} offset:{T*1024}')
        return r
    def red_read(self, base):
        k = self.k
        k(f's_mul_i32 s{sT0}, s{sGW}, 15360\ns_add_u32 s{sT0}, s{sT0}, {base}\nv_add_u32 v8, s{sT0}, v{aL16}')
        toks = []
        for T in range(5):
            for d in range(3): r = k(f'ds_read_b128 {vr(vACC + 20 + 4*(5*d+T),4)}, v8 offset:{d*5120 + T*1024}')
            toks.append(r)
        return toks
    def sum4(self, T):
        k = self.k
        for e in range(4):
            a = vACC + 4*T + e
            k(f'v_add_f32 v{a}, v{a}, v{a+20}\nv_add_f32 v{a+40}, v{a+40}, v{a+60}')
        for e in range(4):
            a = vACC + 4*T + e
            k(f'v_add_f32 v{a}, v{a}, v{a+40}')
    def lds_wait(self, word, thr, slp):
        k = self.k; self.uid += 1; u = self.uid
        k.label(f'L_lw{u}')
        k(f'ds_read_b32 v9, v8 offset:{4*word}\ns_waitcnt lgkmcnt(0)\nv_readfirstlane_b32 s{sT0}, v9\ns_cmp_ge_u32 s{sT0}, {thr}\ns_cbranch_scc1 L_lwd{u}')
        if slp: k(f's_sleep {slp}')
        k(f's_branch L_lw{u}')
        k.label(f'L_lwd{u}')
        k.dlg = k.nlg

    def back_half(self):
        k = self.k; c = self.cfg; S = self.S
        W, A, toks = self.W, self.A, self.toks
        pf = [j[2] for j in self.pf]
        if S and c.bprio: k('s_setprio 1')
        J = self.job_gu(vA0, sHL, 0) + self.job_gu(vA0 + 16, sHL, 512)
        for n, j in enumerate(J):
            j()
            if c.epf and n % c.epf == c.epf - 1 and pf: pf.pop(0)()
        self.t_hl = self.t_store
        self.attn_consts()
        k.wait(vm=self.t_kv, lg='all')
        k('s_barrier')
        self.stamp()
        if S:
            nb = min(len(pf), c.bdefer)
            rest = pf[len(pf) - nb:]; pf = self.stage_w() + pf[:len(pf) - nb]
        if c.nopf: late, pf = pf, []
        self.attention(pf)
        self.stamp()
        if c.nopf:
            for f in late: f()
            self.t_o = Tok(k.nvm)
        if not S:
            KAP = EARLY + LATE
            k(f'''v_and_b32 v10, 3, v{vL}
            v_lshlrev_b32 v10, 13, v10
            s_lshr_b32 s{sT0}, s{sPL2}, 3
            s_lshl1_add_u32 s{sT0}, s{sGW}, s{sT0}
            s_and_b32 s{sT1}, s{sPL2}, 7
            s_lshl3_add_u32 s{sT0}, s{sT1}, s{sT0}
            s_lshl_b32 s{sPL2}, s{sT0}, 7
            v_add_u32 v1, s{sSTG}, v{aL16}''')
            def bo():
                k.wait(vm=self.t_o)
                k('s_barrier')
            for q in range(4):
                if q == c.bo_at: bo()
                if q == 1: tp = k(f'buffer_load_dword v11, v10, s[{S_WS}:{S_WS+3}], s{sPL2} offen sc1')
                k.wait(vm=toks[('a', q)])
                self.kstep(W[q], A[q], q == 0, self.ldW(q + 7, KAP[q + 7], W[q + 7]) if q >= 1 else [])
            self.poll_check(tp, 11, 10, S_WS, f's{sPL2}', 4, role=False, slp=c.slp)
            for q in range(4, 8):
                for f in self.ldA(q, KAP[q], A[q]): f[2]()
            for f in self.ldW(11, KAP[11], W[11]): f[2]()
            if c.bo_at >= 4: bo()
            self.stamp()
            rd = lambda q: (lambda T: k(f'ds_read_b128 {vr(12+4*T,4)}, v1 offset:{(q-4)*5120 + T*1024}'))
            lt = [rd(4)(T) for T in range(5)]
            for q in range(4, 12):
                k.wait(vm=max(toks[('a', q)].n, toks[('w', q)].n if q >= 8 else 0))
                nx = q + 3
                self.kstep(W[q], A[q], False, self.ldA(nx, KAP[nx], A[nx]) if 8 <= nx < 12 else [],
                           lds=(lt, rd(q + 1) if q < 7 else None) if q < 8 else None)
                if q == 7:
                    k(f'v_mov_b32 v8, {L_CNT}\nv_mov_b32 v9, 0x100\ns_mov_b64 exec, 1\nds_add_u32 v8, v9 offset:4\ns_mov_b64 exec, -1')
            self.stamp()
            self.red_write(L_RF)
            k(f'v_mov_b32 v8, {L_CNT}\nv_mov_b32 v9, 1\ns_mov_b64 exec, 1\nds_add_u32 v8, v9\ns_mov_b64 exec, -1')
            self.lds_wait(0, 4, 0)
            tr = self.red_read(L_RF)
            for T in range(5):
                k.wait(lg=tr[T]); self.sum4(T)
                a = vACC + 4*T; b = a + 20
                for e in range(4): k(f'v_mul_f32 v{b+e}, {hex(f2u(-LOG2E))}, v{a+e}')
                for e in range(4): k(f'v_exp_f32 v{b+e}, v{b+e}')
                for e in range(4): k(f'v_add_f32 v{b+e}, 1.0, v{b+e}')
                for e in range(4): k(f'v_rcp_f32 v{b+e}, v{b+e}')
                for e in range(4): k(f'v_mul_f32 v{a+e}, v{a+e}, v{b+e}')
                k(f'ds_write_b128 v8, {vr(a,4)} offset:{T*1024}')
            k.wait(lg='all')
            k('s_barrier')
            self.stamp()
        else:
            for f in rest: f()
            k(f'v_lshlrev_b32 v{aL8}, 3, v{vL}\nv_bfe_u32 v10, v{vL}, 1, 3\nv_and_b32 v11, 1, v{vL}\nv_lshl_add_u32 v10, v11, 7, v10\ns_lshl_b32 s{sT0}, s{sPL2}, 3\nv_add_lshl_u32 v10, v10, s{sT0}, 7')
            k.wait(vm=self.t_o)
            k('s_barrier')
            self.flag_store(5, 8)
            k(f'''v_and_b32 v8, 15, v{vL}
            v_mul_u32_u24 v8, 1280, v8
            v_lshrrev_b32 v9, 4, v{vL}
            v_lshl_add_u32 v1, v9, 4, v8
            v_lshl_add_u32 v2, v9, 3, v8
            s_lshl2_add_u32 s{sT0}, s{sR2}, s{sGW}
            s_mul_i32 s{sT0}, s{sT0}, {16*1280}
            s_mul_i32 s{sT1}, s{sC2}, 160
            s_add_u32 s{sT0}, s{sT0}, s{sT1}
            s_bitcmp1_b32 s{sC2}, 0
            s_cselect_b32 s{sT1}, 32, 0
            s_cselect_b32 s{sT2}, 0, 128
            s_add_u32 s{sQS1}, s{sT0}, s{sT1}
            s_add_u32 s{sQS2}, s{sT0}, s{sT2}
            v_mov_b32 v8, {L_CNT}''')
            k(f's_cmp_lg_u32 s{sGW}, 0\ns_cbranch_scc1 L_bw')
            s0 = k.snap()
            self.lds_wait(1, c.ogate * 0x100, 2)
            tp = k(f'buffer_load_dword v11, v10, s[{S_WS}:{S_WS+3}], 0 offen sc1')
            self.poll_check(tp, 11, 10, S_WS, '0', 5, role=False, slp=c.slp)
            k(f'v_mov_b32 v9, 0x10000\ns_mov_b64 exec, 1\nds_add_u32 v8, v9 offset:4\ns_mov_b64 exec, -1')
            k.nvm, k.dvm = s0[1], s0[2]
            k.label('L_bw')
            self.lds_wait(1, 0x10000, 2)
            self.stamp()
            for q in range(4):
                for f in self.ldA(q, q, A[q]): f[2]()
            XR = A[0][0]
            def lx():
                k(f'buffer_load_dwordx4 {vr(XR,4)}, v1, s[{S_X}:{S_X+3}], s{sQS1} offen')
                k(f'buffer_load_dwordx4 {vr(XR+4,4)}, v1, s[{S_X}:{S_X+3}], s{sQS1} offen offset:64')
                toks['x'] = k(f'buffer_load_dwordx2 {vr(XR+8,2)}, v2, s[{S_X}:{S_X+3}], s{sQS2} offen')
            for q in range(5):
                k.wait(vm=toks[('a', q)])
                self.kstep(W[q], A[q], q == 0, (self.ldA(4, 4, A[4], mid=True) + [lx]) if q == 1 else [])
            self.stamp()
            if c.ogate < 4: self.lds_wait(1, 0x10400, 1)
            self.red_write(L_RS)
            XU = W[1][0]
            k.wait(vm=toks['x'])
            for T in range(5):
                src = XR + (4*(T>>1) + 2*(T&1) if T < 4 else 8)
                for e in range(2):
                    k(f'v_lshlrev_b32 v{XU+4*T+2*e}, 16, v{src+e}\nv_and_b32 v{XU+4*T+2*e+1}, 0xffff0000, v{src+e}')
            k(f's_mul_i32 s{sT1}, s{sGW}, 15360\ns_add_u32 s{sT1}, s{sT1}, {L_RF}\nv_add_u32 v9, s{sT1}, v{aL16}')
            k.wait(lg='all')
            k('s_barrier')
            self.stamp()
            GR = W[2][0]
            for T in range(5): k(f'ds_read_b128 {vr(GR+4*T,4)}, v9 offset:{T*1024}')
            tr = self.red_read(L_RS)
            for T in range(5):
                k.wait(lg=tr[T]); self.sum4(T)
                for e in range(4): k(f'v_fmac_f32 v{XU+4*T+e}, v{vACC+4*T+e}, v{GR+4*T+e}')
                for e in range(2): k(f'v_cvt_pk_bf16_f32 v{XR+2*T+e}, v{XU+4*T+2*e}, v{XU+4*T+2*e+1}')
                if T == 1: k(f'buffer_store_dwordx4 {vr(XR,4)}, v1, s[{S_OUT}:{S_OUT+3}], s{sQS1} offen {c.outf}')
                if T == 3: k(f'buffer_store_dwordx4 {vr(XR+4,4)}, v1, s[{S_OUT}:{S_OUT+3}], s{sQS1} offen offset:64 {c.outf}')
                if T == 4: k(f'buffer_store_dwordx2 {vr(XR+8,2)}, v2, s[{S_OUT}:{S_OUT+3}], s{sQS2} offen {c.outf}')

    def finish(self):
        k = self.k; c = self.cfg
        if c.stamps:
            k('s_waitcnt vmcnt(0)')
            self.stamp('fin')
            k(f's_waitcnt lgkmcnt(0)\ns_mov_b32 s{sST0 + self.nst - 1}, s{sSTT}')
            k(f's_lshl3_add_u32 s{sT0}, s2, s{sW}\ns_lshl_b32 s{sT0}, s{sT0}, 6\ns_add_u32 s{sT0}, s{sT0}, {STAMP}\nv_mov_b32 v1, 0\ns_mov_b64 exec, 1')
            for n in range(self.nst):
                k(f'v_mov_b32 v2, s{sST0+n}\nbuffer_store_dword v2, v1, s[{S_WS}:{S_WS+3}], s{sT0} offen offset:{4*n}')
        k('s_endpgm')

    def build(self):
        k = self.k
        self.prologue()
        pre = k.snap(); nst = self.nst
        st = []
        for S in (0, 1):
            self.S = S; k.restore(pre); self.nst = nst; self.stok = {}
            if S: k.label('L_setB')
            self.prologue2()
            (self.phase0B if S else self.phase0A)()
            k.flush_hazards()
            if not S: k('s_branch L_mainA')
            st.append((k.snap(), self.nst, self.stok, self.t_a))
        for S in (1, 0):
            self.S = S
            snap, self.nst, self.stok, self.t_a = st[S]; k.restore(snap)
            if not S: k.label('L_mainA')
            self.gemm1()
            self.back_half()
            self.finish()
        self.tail.append(self.fallback)
        for t in self.tail:
            k.win = []
            t(k)
        k.label('L_end')
        k('s_endpgm')
        return self.wrap()

    def wrap(self):
        hdr = ''.join(open('recurrent_scan__sliding_block__swiglu_ffn__prompt.s.ref').readlines()[:11]) if self.cfg.header else ''
        return f'''{hdr}; @launch grid=(256,1,1) block=(512,1,1) lds={LDS_BYTES}
.amdgcn_target "amdgcn-amd-amdhsa--gfx950"
.text
.globl {KN}
.p2align 8
.type {KN},@function
{KN}:
{self.k.text()}.section .rodata,"a"
.p2align 6
.amdhsa_kernel {KN}
  .amdhsa_next_free_vgpr 256
  .amdhsa_next_free_sgpr 102
  .amdhsa_accum_offset 256
  .amdhsa_group_segment_fixed_size 0
  .amdhsa_kernarg_size 80
  .amdhsa_user_sgpr_count 2
  .amdhsa_user_sgpr_kernarg_segment_ptr 1
  .amdhsa_system_sgpr_workgroup_id_x 1
.end_amdhsa_kernel
'''
Cfg.nopf = 0; Cfg.alast = 0; Cfg.nslot = 4; Cfg.dp1 = 3; Cfg.dp2 = 3; Cfg.dpx = 8; Cfg.bprio = 1; Cfg.w0early = 1; Cfg.dm1 = 0; Cfg.dm2 = 0; Cfg.skip = ''; Cfg.bh_skew = 0; Cfg.bdefer = 10; Cfg.ogate = 0; Cfg.outf = ''

def make(**kw):
    c = Cfg()
    for a, b in kw.items():
        assert hasattr(c, a), a
        setattr(c, a, b)
    g = Gen(c)
    return g.build(), g

if __name__ == '__main__':
    s, g = make(stamps=True)
    open('k.s', 'w').write(s)
    print(g.k.count, 'nops', g.k.nops)
```

```python
import sys, math, struct
from emit import *

KN = 'recurrent_scan__sliding_block__swiglu_ffn__prompt_kernel'

FL   = 0x0
STATS= 0x10000
WEXT = 0x20000
STAMP= 0x60000
QKV  = 0x100000
HIM  = 0x900000
OIM  = 0x1000000
W2P  = 0x1400000
WS_BYTES = 0x1800000
OOB  = 0x7f000000

L_RING = 0
L_X    = 65536
CH     = 6208
L_KV   = 65536
L_ONES = L_KV + 10 * CH + 64
L_EXT  = 65536 + 68608
L_PACK = L_EXT + 10240
LDS_BYTES = 163840
L_CNT = 162816; L_RF = 0; L_WO = 61440
assert L_EXT == L_WO + 71 * 1024
assert 10 * CH + 64 + 6400 <= 68608 and LDS_BYTES <= 163840

S_X, S_Q, S_G, S_U, S_WS, S_DBG, S_WD, S_WO, S_OUT, S_TMP = 4, 8, 12, 16, 20, 24, 28, 32, 36, 40
S_U0, S_U1 = 36, 64
sI, sG, sW, sGW, sXO, sWO_, sM0X, sM0W = 44, 45, 46, 47, 48, 49, 50, 51
sFLAG, sPOLL, sQF, sHE, sHL, sQS1, sQS2 = 52, 53, 54, 55, 56, 57, 3
sT0, sT1, sT2, sT3, sT4, sT5 = 58, 59, 60, 61, 62, 63
sPKS, sPKL, sPKD0, sPKD1, sPKD2 = 78, 79, 80, 81, 82
sAI, sAJ, sR2, sC2, sCNT = 69, 70, 71, 72, 73
sCO, sCD, sC2O, sC3O = 74, 75, 76, 77
sWB, sPL2, sKVS, sKVM, sSTG = 78, 79, 81, 82, 83
sSTR, sADV, sC1, sSLOT = 68, 84, 85, 53
sAM = 40
sSTT = 86; sST0 = 88

vL = 0
vWR0, vWR1, vWR2 = 1, 2, 3
vDA, vDB = 4, 5
aL16, aL16b = 6, 7
vEX, vP = 8, 9
vST = 10
vMEAN = 12
vRS, vC1, vHO, vQO = 16, 17, 18, 19
vT = 20
vFR = 32
vA0 = 48
vA1 = 80
vX = 96
vSEL = vA1 + 8; vCSA = vA1 + 12; vCSO = vA1 + 7; vCSG = vA1 + 6
aK0, aK1, aV, aO0, aO1, aL8 = 86, 87, 3, 4, 5, 3
vQ = 80; vM = 88; vS0 = 48; vS1 = 64; vS2 = 112; vO = 96; vPP = 32
vKB = ((20, 24), (28, 26)); vVB = (40, 12)
vACC = 32
EARLY = (0, 1, 2, 3); LATE = (4, 5, 6, 7, 8, 9, 10, 11)

LOG2E = 1.4426950408889634
def f2u(x): return struct.unpack('<I', struct.pack('<f', x))[0]

class Cfg:
    header = False
    stamps = False; clock = 's_memtime'; grps = ['main', 'fin']
    spin = 4000
    g2map = 1
    fa = 3; pa = 6
    cb = 0; cbd = 2
    pk = 1; pkd = 2
    c2 = 7
    fb = 9; pb = 11
    fq = 18; pq = 21
    w0early = 0
    hoist_hi = 22
    hoist = 2
    kvn = 5
    bh_at = 3
    epf = 12
    bo_at = 2
    slp = 8; slp0 = 16
    prio = 3

class Gen:
    def __init__(self, cfg):
        self.cfg = cfg; self.k = K(); self.tail = []; self.nst = 0; self.uid = 0

    def stamp(self, grp='main'):
        if not self.cfg.stamps or grp not in self.cfg.grps: return
        k = self.k
        if self.nst > 0: k(f's_mov_b32 s{sST0 + self.nst - 1}, s{sSTT}')
        k(f'{self.cfg.clock} s[{sSTT}:{sSTT+1}]')
        self.nst += 1
        assert self.nst <= 14
    def poll_check(self, tok, vd, voff, srd, soff, thr, role=True, wide=False, slp=6):
        k = self.k; self.uid += 1; u = self.uid
        if role:
            k(f's_cmp_lg_u32 s{sGW}, 0\ns_cbranch_scc1 L_pok{u}\ns_waitcnt vmcnt({k.nvm - tok})')
        else: k.wait(vm=tok)
        mn = f'v_min3_u32 v{vd}, v{vd}, v{vd+1}, v{vd+2}\nv_min_u32 v{vd}, v{vd}, v{vd+3}\n' if wide else ''
        ld = f'buffer_load_dwordx4 v[{vd}:{vd+3}]' if wide else f'buffer_load_dword v{vd}'
        k(f'{mn}v_cmp_le_u32 vcc, {thr}, v{vd}\ns_cmp_eq_u64 vcc, -1\ns_cbranch_scc0 L_pslow{u}')
        k.label(f'L_pok{u}')
        def slow(k):
            k.label(f'L_pslow{u}')
            k(f's_mov_b32 s{sCNT}, 0')
            k.label(f'L_ploop{u}')
            k(f's_sleep {slp}\n{ld}, v{voff}, s[{srd}:{srd+3}], {soff} offen sc1\ns_waitcnt vmcnt(0)')
            k(f'{mn}v_cmp_le_u32 vcc, {thr}, v{vd}\ns_cmp_eq_u64 vcc, -1\ns_cbranch_scc1 L_pok{u}')
            k(f's_add_u32 s{sCNT}, s{sCNT}, 1\ns_cmp_lt_u32 s{sCNT}, {self.cfg.spin}\ns_cbranch_scc1 L_ploop{u}\ns_branch L_pok{u}')
        self.tail.append(slow)
    def flag_store(self, val, t=vT+10, test=None, srd=S_WS):
        k = self.k; self.uid += 1; u = self.uid
        k(test or f's_cmp_lg_u32 s{sGW}, 0')
        k(f's_cbranch_scc1 L_nf{u}\nv_mov_b32 v{t}, {val}\nv_mov_b32 v{t+1}, 0\ns_mov_b64 exec, 1')
        k(f"buffer_store_dword v{t}, v{t+1}, s[{srd}:{srd+3}], {f's{sT3}' if test else f's{sFLAG}'} offen sc1")
        k.nvm -= 1
        k('s_mov_b64 exec, -1')
        k.label(f'L_nf{u}')

    def prologue(self):
        k = self.k; c = self.cfg
        k('s_cmp_ge_u32 s2, 256\ns_cbranch_scc1 L_end')
        k(f"""s_load_dwordx2 s[{S_X}:{S_X+1}], s[0:1], 0
        s_bitcmp1_b32 s2, 6
        s_cselect_b32 s{sT0}, 8, 32
        s_cselect_b32 s{sT1}, 8, 40
        s_load_dwordx2 s[{S_U0}:{S_U0+1}], s[0:1], s{sT0}
        s_load_dwordx2 s[{S_U1}:{S_U1+1}], s[0:1], s{sT1}
        s_load_dwordx2 s[{S_WS}:{S_WS+1}], s[0:1], 72
        s_load_dwordx2 s[{S_DBG}:{S_DBG+1}], s[0:1], 64""")
        if c.stamps: k(f'{c.clock} s[{sSTT}:{sSTT+1}]'); self.nst = 1
        k(f'v_lshrrev_b32 v1, 6, v0\nv_and_b32 v{vL}, 63, v0\nv_readfirstlane_b32 s{sW}, v1')
        k(f's_cmp_ge_u32 s{sW}, 4\ns_cbranch_scc1 L_setB')

    def prologue2(self):
        k = self.k; t = vT
        k(f"""s_and_b32 s{sI}, s2, 1
        s_bfe_u32 s{sT0}, s2, 0x30003
        s_lshl3_add_u32 s{sI}, s{sI}, s{sT0}
        s_bfe_u32 s{sT1}, s2, 0x20001
        s_lshr_b32 s{sT0}, s2, 6
        s_lshl2_add_u32 s{sG}, s{sT1}, s{sT0}
        s_and_b32 s{sGW}, s{sW}, 3
        s_mov_b32 s{S_X+2}, {2048*1280}
        s_mov_b32 s{S_X+3}, 0x20000
        s_mul_i32 s{sC3O}, s{sT1}, 768
        s_and_b32 s{sT2}, s2, 128
        s_add_u32 s{sT2}, s{sT2}, s{sC3O}
        s_and_b32 s{sT3}, s{sG}, 14
        s_lshl_b32 s{sT3}, s{sT3}, 7
        s_movk_i32 s{sT4}, 3072
        s_bitcmp1_b32 s2, 6
        s_cselect_b32 s{sC1}, s{sT3}, s{sT2}
        s_cselect_b32 s{sSTR}, 3840, s{sT4}
        s_cselect_b32 s{sT5}, 0xa0, 32
        s_mul_i32 s{S_U0+2}, s{sSTR}, 640
        s_mov_b32 s{S_U0+3}, 0x20000
        s_mov_b32 s{S_U1+2}, s{S_U0+2}
        s_mov_b32 s{S_U1+3}, 0x20000""")
        k(f"""v_lshrrev_b32 v{t}, 3, v{vL}
        v_and_b32 v{t+1}, 7, v{vL}
        v_lshlrev_b32 v{t+1}, 4, v{t+1}""")
    def prologue3(self):
        k = self.k; t = vT
        k(f"""s_lshl_b32 s{sM0X}, s{sW}, 11
        s_lshl3_add_u32 s{sXO}, s{sI}, s{sW}
        s_mul_i32 s{sXO}, s{sXO}, {16*1280}
        v_and_b32 v{t+3}, 48, v{vL}
        v_xor_b32 v{t+3}, v{t+1}, v{t+3}
        v_mul_u32_u24 v{vA1+4}, 1280, v{t}
        v_add_u32 v{vA1+4}, v{vA1+4}, v{t+3}
        v_xor_b32 v{vA1+5}, 64, v{vA1+4}
        v_add_u32 v{vA1+5}, {10240-1024}, v{vA1+5}""")
        if self.cfg.rot:
            a, b, m = self.cfg.rot
            k(f's_and_b32 s{sCNT}, s{sI}, 7\ns_mul_i32 s{sM0W}, s{sCNT}, {a}\ns_and_b32 s{sCNT}, s{sG}, 3\ns_mul_i32 s{sCNT}, s{sCNT}, {b}\ns_add_u32 s{sM0W}, s{sM0W}, s{sCNT}')
            k(f's_mul_i32 s{sCNT}, s{sM0W}, {-(-65536 // m)}\ns_lshr_b32 s{sCNT}, s{sCNT}, 16\ns_mul_i32 s{sCNT}, s{sCNT}, {m}\ns_sub_u32 s{sM0W}, s{sM0W}, s{sCNT}')
            if m == 5: k(f's_lshl_b32 s{sM0W}, s{sM0W}, 1')
            k(f's_lshl_b32 s{sCNT}, s{sM0W}, 7\ns_add_u32 s{sXO}, s{sXO}, s{sCNT}')
    def prologue4(self):
        k = self.k; t = vT
        k(f"""s_mul_i32 s{sWO_}, s{sW}, s{sSTR}
        s_lshl3_add_u32 s{sWO_}, s{sWO_}, s{sC1}
        s_lshl_b32 s{sADV}, s{sSTR}, 6
        v_and_b32 v{t+2}, 16, v{vL}
        v_lshlrev_b32 v{t+2}, 2, v{t+2}
        v_xor_b32 v{vT+7}, v{t+1}, v{t+2}
        v_mad_u32_u24 v{vDA}, v{t}, s{sSTR}, v{vT+7}
        v_xor_b32 v{vDB}, s{sT5}, v{vDA}""")
        if self.cfg.rot: k(f's_mul_i32 s{sCNT}, s{sM0W}, s{sADV}\ns_add_u32 s{sWO_}, s{sWO_}, s{sCNT}')

    def late_srds(self):
        k = self.k
        L = ((S_Q, 8, 640*3840), (S_G, 32, 640*3072), (S_U, 40, 640*3072)) + (((S_WD, 48, 1536*1280), (S_WO, 16, 640*1280)) if self.S else ())
        for d, off, size in L: k(f's_load_dwordx2 s[{d}:{d+1}], s[0:1], {off}')
        if self.S: k(f's_load_dwordx2 s[{S_TMP}:{S_TMP+1}], s[0:1], 56')
        for d, off, size in L: k(f's_mov_b32 s{d+2}, {size}\ns_mov_b32 s{d+3}, 0x20000')
        k(f's_cmp_lt_u32 s{sG}, 14\ns_cselect_b32 s{S_Q+2}, s{S_Q+2}, 0')

    def dma_stage(self, n):
        k = self.k; slot = (n & 3) * 16384
        steps = []
        if n < 10:
            def x():
                k(f's_add_u32 m0, s{sM0X}, {L_X + slot}')
                k(f'buffer_load_dwordx4 v{vA1+4}, s[{S_X}:{S_X+3}], s{sXO} offen lds')
                k(f'buffer_load_dwordx4 v{vA1+5}, s[{S_X}:{S_X+3}], s{sXO} offen offset:1024 lds')
                k(f's_add_u32 s{sXO}, s{sXO}, 128')
                if self.cfg.rot: k(f's_cmp_eq_u32 s{sM0W}, {9 - n}\ns_cselect_b32 s{sCNT}, 1280, 0\ns_sub_u32 s{sXO}, s{sXO}, s{sCNT}')
            steps.append(x)
        def w():
            if n == 10:
                k(f"""v_lshrrev_b32 v{vDA}, 3, v{vL}
                v_mul_u32_u24 v{vDA}, 3840, v{vDA}
                v_add_u32 v{vDA}, v{vDA}, v{vT+7}
                v_add_u32 v{vDB}, {8*3840 - 1024}, v{vDA}
                s_mul_i32 s{sWO_}, s{sW}, {16*3840}
                s_add_u32 s{sWO_}, s{sWO_}, s{sC2O}""")
            if n == 15:
                k(f"""v_lshrrev_b32 v{vDA}, 3, v{vL}
                v_mul_u32_u24 v{vDA}, 3072, v{vDA}
                v_add_u32 v{vDA}, v{vDA}, v{vT+7}
                v_xor_b32 v{vDB}, 32, v{vDA}
                s_mul_i32 s{sWO_}, s{sW}, {8*3072}
                s_add_u32 s{sWO_}, s{sWO_}, s{sC3O}""")
            k(f's_add_u32 m0, s{sM0X}, {L_RING + slot}')
            if 10 <= n < 15:
                k(f'buffer_load_dwordx4 v{vDA}, s[{S_Q}:{S_Q+3}], s{sWO_} offen lds')
                self.stok[n] = k(f'buffer_load_dwordx4 v{vDB}, s[{S_Q}:{S_Q+3}], s{sWO_} offen offset:1024 lds')
                k(f's_add_u32 s{sWO_}, s{sWO_}, {128*3840}')
            else:
                s0, s1, adv = (S_U0, S_U1, f's{sADV}') if n < 10 else (S_G, S_U, 64*3072)
                k(f'buffer_load_dwordx4 v{vDA}, s[{s0}:{s0+3}], s{sWO_} offen lds')
                k(f's_add_u32 m0, s{sM0X}, {L_RING + slot + 1024}')
                self.stok[n] = k(f'buffer_load_dwordx4 v{vDB}, s[{s1}:{s1+3}], s{sWO_} offen lds')
                k(f's_add_u32 s{sWO_}, s{sWO_}, {adv}')
                if self.cfg.rot and n < 10: k(f's_cmp_eq_u32 s{sM0W}, {9 - n}\ns_cselect_b32 s{sCNT}, s{S_U0+2}, 0\ns_sub_u32 s{sWO_}, s{sWO_}, s{sCNT}')
        steps.append(w)
        return steps

    def cs_sel(self):
        k = self.k; sel = vSEL; t = vT + 10
        k(f"""v_and_b32 v{t}, 1, v{vL}
        v_lshlrev_b32 v{t}, 4, v{t}
        s_movk_i32 s{sT3}, 0x3f80
        v_lshlrev_b32 v{t}, v{t}, s{sT3}""")
        for d in range(4):
            m = hex((3 << (2*d)) * 0x10001)
            k(f's_mov_b32 vcc_lo, {m}\ns_mov_b32 vcc_hi, {m}\nv_cndmask_b32 v{sel+d}, 0, v{t}, vcc')
        k(f"""v_and_b32 v{vCSO}, 7, v{vL}
        v_lshlrev_b32 v{vCSO}, 4, v{vCSO}
        v_bfe_u32 v{t}, v{vL}, 4, 1
        v_lshl_add_u32 v{vCSO}, v{t}, 3, v{vCSO}
        v_and_b32 v{t}, 8, v{vL}
        v_lshl_add_u32 v{vCSO}, v{t}, 4, v{vCSO}
        v_and_b32 v{t}, 32, v{vL}
        v_lshl_add_u32 v{vCSO}, v{t}, 24, v{vCSO}""")
    def cs_run(self, buf, acc):
        k = self.k; h = buf
        for j in range(10):
            k(f"v_mfma_f32_16x16x32_bf16 {vr(acc,4)}, {vr(vSEL,4)}, {vr(buf+4*j,4)}, {'0' if j == 0 else vr(acc,4)}")
        for e in range(4): k(f'v_add_f32_dpp v{h+4+e}, v{acc+e}, v{acc+e} row_ror:8 row_mask:0xf bank_mask:0xf')
        for e in range(2): k(f'v_cvt_pk_bf16_f32 v{acc+e}, v{h+4+2*e}, v{h+5+2*e}')
        for e in range(2): k(f'v_lshlrev_b32 v{h+2*e}, 16, v{acc+e}\nv_and_b32 v{h+2*e+1}, 0xffff0000, v{acc+e}')
        for e in range(4): k(f'v_sub_f32 v{h+e}, v{h+4+e}, v{h+e}')
        k(f's_mov_b32 vcc_lo, 0xff00ff00\ns_mov_b32 vcc_hi, 0xff00ff00')
        for e in range(2): k(f'v_cvt_pk_bf16_f32 v{acc+2+e}, v{h+2*e}, v{h+2*e+1}')
        for e in range(2): k(f'v_cndmask_b32 v{acc+e}, v{acc+e}, v{acc+2+e}, vcc')

    def phase0A(self):
        k = self.k; X = vX; t = vT; c = self.cfg
        k(f"""s_lshr_b32 s{sT0}, s{sI}, 1
        s_mul_i32 s{sT1}, s{sT0}, 80
        s_mul_i32 s{sT1}, s{sT1}, s{sSTR}
        s_add_u32 s{sT1}, s{sT1}, s{sC1}
        s_and_b32 s{sT2}, s{sT5}, 128
        s_bitcmp1_b32 s{sI}, 0
        s_cselect_b32 s{sT2}, s{sT2}, 0
        s_add_u32 s{sT1}, s{sT1}, s{sT2}
        s_lshl_b32 s{sT2}, s{sSTR}, 3
        v_mad_u32_u24 v{X+60}, v{t}, s{sSTR}, v{t+1}
        s_mov_b32 s{S_TMP+2}, s{S_U0+2}
        s_mov_b32 s{S_TMP+3}, 0x20000
        s_mov_b32 s{S_WS+2}, {WS_BYTES}
        s_mov_b32 s{S_WS+3}, 0x20000""")
        self.prologue3()
        k(f"""s_bitcmp1_b32 s{sI}, 0
        s_waitcnt lgkmcnt(0)
        s_cselect_b64 s[{S_TMP}:{S_TMP+1}], s[{S_U1}:{S_U1+1}], s[{S_U0}:{S_U0+1}]
        s_cmp_lg_u32 s{sW}, {99 if 'a' in c.skip else 0}
        s_cbranch_scc1 L_nocs""")
        s0 = k.snap()
        for j in range(10):
            k(f'buffer_load_dwordx4 v[{X+4*j}:{X+4*j+3}], v{X+60}, s[{S_TMP}:{S_TMP+3}], s{sT1} offen')
            if j < 9: k(f's_add_u32 s{sT1}, s{sT1}, s{sT2}')
        k.label('L_nocs')
        clr = f's_and_b32 s{sT4}, s2, 0xe7\ns_lshl3_add_u32 s{sT4}, s{sT4}, s{sW}\ns_cmp_lg_u32 s{sT4}, {c.clrwg*8 + 3}'
        k(clr + '\ns_cbranch_scc1 L_noclr')
        k(f'v_lshlrev_b32 v{X+60}, 7, v{vL}\nv_mov_b32 v{X+64}, 0\ns_lshl_b32 s{sT4}, s{sI}, 13')
        k(f'buffer_store_dword v{X+64}, v{X+60}, s[{S_WS}:{S_WS+3}], s{sT4} offen sc1')
        k.label('L_noclr')
        k(f's_cmp_lg_u32 s{sW}, 2\ns_cbranch_scc1 L_nopf\ns_getpc_b64 s[{sT2}:{sT3}]')
        k.label('L_pc')
        k(f's_lshr_b32 s{sT4}, s2, 3\ns_lshl_b32 s{sT4}, s{sT4}, 11\nv_and_b32 v{X+60}, 15, v{vL}\nv_lshl_add_u32 v{X+60}, v{X+60}, 7, s{sT4}\nv_min_u32 v{X+60}, L_end-L_pc, v{X+60}')
        k(f's_mov_b64 exec, 0xffff\nglobal_load_dword v{X+61}, v{X+60}, s[{sT2}:{sT3}]\ns_mov_b64 exec, -1')
        k.label('L_nopf')
        k.nvm = s0[1]
        self.stamp('p0')
        d0 = self.dma_stage(0)
        d0[0]()
        self.prologue4()
        if c.w0early: d0[1]()
        self.late_srds()
        k(f's_mov_b32 s{S_DBG+2}, 256\ns_mov_b32 s{S_DBG+3}, 0x20000')
        self.cs_sel()
        k(f"""s_mul_i32 s{sT1}, s{sG}, 10240
        s_add_u32 s{sT1}, s{sT1}, {WEXT}
        s_lshl_b32 s{sT3}, s{sT0}, 8
        s_add_u32 s{sPL2}, s{sT1}, s{sT3}
        s_and_b32 s{sT4}, s{sT3}, 1024
        s_add_u32 s{sT1}, s{sPL2}, s{sT4}
        s_and_b32 s{sT3}, s{sI}, 1
        s_lshl_b32 s{sT3}, s{sT3}, 10
        s_add_u32 s{sCD}, s{sT1}, s{sT3}
        s_mov_b32 s{sWB}, s{sCD}
        s_and_b32 s{sT3}, s{sI}, 3
        s_lshl_b32 s{sT3}, s{sT3}, 5
        s_cmp_eq_u32 s{sW}, 2
        s_cselect_b32 s{sT4}, 64, 0x60
        s_and_b32 s{sT3}, s{sT3}, s{sT4}
        v_xor_b32 v{vCSO}, s{sT3}, v{vCSO}""")
        self.consts0(); self.consts1()
        k('s_waitcnt lgkmcnt(0)')
        self.csb_setup()
        if not c.w0early: d0[1]()
        self.stamp('p0')
        k(f's_waitcnt vmcnt({k.nvm - s0[1]})')
        self.stamp('p0')
        self.flag_store(1, X+58, f's_lshl_b32 s{sT3}, s{sI}, 6\n' + clr, S_DBG)
        k(f's_cmp_lg_u32 s{sW}, 0\ns_cbranch_scc1 L_nocs2')
        self.cs_run(X, vCSA)
        k(f'buffer_store_dwordx2 {vr(vCSA,2)}, v{vCSO}, s[{S_WS}:{S_WS+3}], s{sWB} offen sc1')
        k.nvm -= 1; self.t_a = Tok(k.nvm + 1)
        k.cond.append((k.nvm, 1, lambda nw: f's_cmp_eq_u32 s{sW}, 0', -1))
        k.flush_hazards()
        k.label('L_nocs2')
        for f in self.dma_stage(1): f()
        self.stamp('p0')

    def phase0B(self):
        k = self.k; X = vX; c = self.cfg
        k(f"""s_lshl4_add_u32 s{sT0}, s{sI}, s{sG}
        s_lshl2_add_u32 s{sT0}, s{sT0}, s{sGW}
        s_mul_i32 s{sT1}, s{sT0}, 2560
        v_lshrrev_b32 v{X+62}, 5, v{vL}
        v_mul_u32_u24 v{X+61}, 1280, v{X+62}
        v_and_b32 v{X+63}, 31, v{vL}
        v_lshl_add_u32 v{X+60}, v{X+63}, 4, v{X+61}
        v_lshl_add_u32 v{X+61}, v{X+63}, 3, v{X+61}""")
        self.prologue3()
        k('s_waitcnt lgkmcnt(0)')
        if 'a' in c.skip: k(f's_mov_b32 s{sT1}, {OOB}')
        k(f'buffer_load_dwordx4 v[{X}:{X+3}], v{X+60}, s[{S_X}:{S_X+3}], s{sT1} offen')
        k(f'buffer_load_dwordx4 v[{X+4}:{X+7}], v{X+60}, s[{S_X}:{S_X+3}], s{sT1} offen offset:512')
        tl = k(f'buffer_load_dwordx2 v[{X+8}:{X+9}], v{X+61}, s[{S_X}:{S_X+3}], s{sT1} offen offset:1024')
        self.stamp('p0')
        d0 = self.dma_stage(0)
        d0[0]()
        self.prologue4()
        if c.w0early: d0[1]()
        self.late_srds()
        k(f's_mov_b32 s{S_WS+2}, {WS_BYTES}\ns_mov_b32 s{S_WS+3}, 0x20000')
        k(f's_lshl_b32 s{sCO}, s{sT0}, 4\ns_add_u32 s{sCO}, s{sCO}, {STATS}\nv_lshlrev_b32 v{X+62}, 3, v{X+62}')
        self.consts0(); self.consts1()
        self.pack_setup()
        k('s_waitcnt lgkmcnt(0)')
        if not c.w0early: d0[1]()
        a, b, m = X + 10, X + 11, X + 12
        k(f'v_mov_b32 v{a}, 0\nv_mov_b32 v{b}, 0\ns_mov_b32 s{sT2}, 0x3f803f80')
        self.stamp('p0')
        k.wait(vm=tl)
        self.stamp('p0')
        for d in range(10): k(f'v_dot2c_f32_bf16 v{a}, s{sT2}, v{X+d}\nv_dot2c_f32_bf16 v{b}, v{X+d}, v{X+d}')
        k('s_nop 2')
        for ctl in ('quad_perm:[1,0,3,2]', 'quad_perm:[2,3,0,1]', 'row_half_mirror', 'row_mirror'):
            for r in (a, b): k(f'v_add_f32_dpp v{r}, v{r}, v{r} {ctl} row_mask:0xf bank_mask:0xf')
        k(f"""v_mov_b32 v{X}, v{a}
        v_mov_b32 v{X+1}, v{b}
        v_permlane16_swap_b32 v{a}, v{X}
        v_permlane16_swap_b32 v{b}, v{X+1}
        v_add_f32 v{a}, v{a}, v{X}
        v_add_f32 v{b}, v{b}, v{X+1}
        v_mul_f32 v{m}, {hex(f2u(-1.0/640))}, v{a}
        v_mul_f32 v{b}, {hex(f2u(1.0/640))}, v{b}
        v_fma_f32 v{b}, -v{m}, v{m}, v{b}
        v_max_f32 v{b}, 0, v{b}
        v_add_f32 v{m+1}, {hex(f2u(1e-5))}, v{b}
        v_cvt_pk_bf16_f32 v{m}, v{m}, v{m}
        s_mov_b32 exec_lo, 1
        s_mov_b32 exec_hi, 1""")
        self.t_a = k(f'buffer_store_dwordx2 v[{m}:{m+1}], v{X+62}, s[{S_WS}:{S_WS+3}], s{sCO} offen sc1')
        k('s_mov_b64 exec, -1')
        for f in self.dma_stage(1): f()
        self.stamp('p0')

    def consts0(self):
        k = self.k; t = vT; S = self.S
        k(f'''v_bfe_u32 v{t}, v{vL}, 2, 2
        v_and_b32 v{t+1}, 1, v{vL}
        v_lshlrev_b32 v{t+1}, 4, v{t+1}
        v_and_b32 v{t+2}, 2, v{vL}
        v_lshl_add_u32 v{t+1}, v{t+2}, 2, v{t+1}
        v_bfe_u32 v{t+2}, v{vL}, 4, 1
        v_lshrrev_b32 v{t+4}, 5, v{vL}
        v_lshl_add_u32 v{t+1}, v{t}, 7, v{t+1}
        v_and_b32 v{t+3}, 2, v{t}
        v_or_b32 v{t+3}, v{t+3}, v{t+2}
        v_lshl_add_u32 v{t+1}, v{t+3}, 5, v{t+1}
        v_lshrrev_b32 v{t+3}, 4, v{vL}
        v_lshl_add_u32 v{vWR0}, v{t+3}, 10, v{t+1}
        v_lshl_add_u32 v{vWR2}, v{t+4}, 10, v{t+1}''')
        if S: k(f'v_xor_b32 v{vWR0}, 64, v{vWR0}\nv_xor_b32 v{vWR2}, 64, v{vWR2}')
        k(f'''v_xor_b32 v{vWR1}, 32, v{vWR0}
        v_and_b32 v{t}, 31, v{vL}
        v_bfe_u32 v{t+1}, v{vL}, 1, 3
        v_xor_b32 v{t+1}, v{t+1}, v{t+4}
        v_lshlrev_b32 v{t+1}, 4, v{t+1}
        v_lshl_add_u32 v{t+1}, v{t}, 7, v{t+1}
        s_lshl_b32 s{sT0}, s{sGW}, 12
        s_add_u32 s{sT0}, s{sT0}, {L_X}
        v_add_u32 v{vA1}, s{sT0}, v{t+1}
        v_xor_b32 v{vA1+1}, 32, v{vA1}
        v_xor_b32 v{vA1+2}, 64, v{vA1}
        v_xor_b32 v{vA1+3}, 0x60, v{vA1}''')
    def consts1(self):
        k = self.k; t = vT + 8; S = self.S; c = self.cfg
        k(f'''v_and_b32 v{t}, 31, v{vL}
        v_lshrrev_b32 v{t+2}, 5, v{vL}
        v_lshlrev_b32 v{vQO}, 11, v{t+2}
        v_lshl_add_u32 v{vQO}, v{t}, 4, v{vQO}
        v_bfe_u32 v{t+1}, v{vL}, 4, 1
        v_mul_u32_u24 v{vHO}, 49152, v{t+1}
        v_lshl_add_u32 v{vHO}, v{t+2}, 8, v{vHO}
        v_and_b32 v{t+1}, 15, v{vL}
        v_lshl_add_u32 v{vHO}, v{t+1}, 4, v{vHO}
        v_lshlrev_b32 v{aL16}, 4, v{vL}
        v_add_u32 v{aL16b}, 4096, v{aL16}''')
        k(f"""s_add_u32 s{sC2O}, s{sG}, 16
        s_lshl_b32 s{sC2O}, s{sC2O}, 7
        s_and_b32 s{sT1}, s{sG}, 3
        s_lshl_b32 s{sT1}, s{sT1}, 7
        s_add_u32 s{sC3O}, s{sC3O}, s{sT1}
        s_add_u32 s{sC3O}, s{sC3O}, 256
        s_lshl2_add_u32 s{sT1}, s{sI}, s{sGW}
        s_mul_i32 s{sT1}, s{sT1}, {2*49152}
        s_add_u32 s{sT1}, s{sT1}, {HIM + S*1024}
        s_lshl4_add_u32 s{sHE}, s{sC1}, s{sT1}
        s_lshl4_add_u32 s{sHL}, s{sC3O}, s{sT1}
        s_mul_i32 s{sT2}, s{sI}, {240*2048}
        s_lshl_b32 s{sT1}, s{sGW}, 9
        s_add_u32 s{sT2}, s{sT2}, s{sT1}
        s_add_u32 s{sT2}, s{sT2}, {QKV + S*8192}
        s_lshl_b32 s{sT1}, s{sC1}, 7
        s_add_u32 s{sQS1}, s{sT2}, s{sT1}
        s_lshl_b32 s{sT1}, s{sC2O}, 7
        s_add_u32 s{sQS2}, s{sT2}, s{sT1}
        s_cmp_lt_u32 s{sG}, 14
        s_cselect_b32 s{sQS2}, s{sQS2}, {OOB}
        s_cmp_lt_u32 s{sG}, 10
        s_cselect_b32 s{sQF}, {hex(f2u(LOG2E / math.sqrt(20.0)))}, 1.0
        s_lshl_b32 s{sFLAG}, s2, 7""")
    def consts2(self):
        k = self.k; S = self.S; c = self.cfg
        k(f'''s_bfe_u32 s{sAI}, s2, 0x40003
        s_and_b32 s{sT0}, s2, 7
        s_lshr_b32 s{sT1}, s2, 7
        s_lshl1_add_u32 s{sAJ}, s{sT0}, s{sT1}''')
        if c.g2map == 0:
            k(f's_bfe_u32 s{sT1}, s2, 0x20003\ns_lshl2_add_u32 s{sR2}, s{sT0}, s{sT1}\ns_lshr_b32 s{sC2}, s2, 5')
        else:
            k(f'''s_lshr_b32 s{sT1}, s{sT0}, 1
            s_bfe_u32 s{sT2}, s2, 0x30003
            s_lshl3_add_u32 s{sR2}, s{sT1}, s{sT2}
            s_and_b32 s{sT1}, s2, 1
            s_lshr_b32 s{sT2}, s2, 6
            s_lshl2_add_u32 s{sC2}, s{sT1}, s{sT2}''')
        k(f'''s_mul_i32 s{sT0}, s{sC2}, 68
        s_mul_i32 s{sT1}, s{sGW}, 12
        s_add_u32 s{sT1}, s{sT0}, s{sT1}
        s_mul_i32 s{sWB}, s{sT1}, 5120
        s_add_u32 s{sWB}, s{sWB}, {W2P}
        s_mul_i32 s{sSTG}, s{sGW}, 20480
        s_cmp_eq_u32 s{sGW}, 3
        s_cselect_b32 s{sSTG}, {L_EXT}, s{sSTG}
        s_lshr_b32 s{sPL2}, s{sR2}, 1''')
        if S:
            k(f"""s_mul_i32 s{sCD}, s{sT0}, 5120
            s_add_u32 s{sCD}, s{sCD}, {W2P + 48*5120}
            s_mov_b64 s[{S_OUT}:{S_OUT+1}], s[{S_TMP}:{S_TMP+1}]
            s_mov_b32 s{S_OUT+2}, {2048*1280}
            s_mov_b32 s{S_OUT+3}, 0x20000""")
    def consts3(self):
        k = self.k; S = self.S
        if S:
            k(f's_lshl2_add_u32 s{sT1}, s{sR2}, s{sGW}\ns_mul_i32 s{sAM}, s{sT1}, 20480\ns_add_u32 s{sAM}, s{sAM}, {OIM}\ns_lshl_b32 s{sAM+1}, s{sGW}, 10\ns_add_u32 s{sAM+2}, s{sAM+1}, s{sCD}')
        else:
            k(f's_mul_i32 s{sT1}, s{sR2}, {4*49152}\ns_mul_i32 s{sT0}, s{sGW}, 12288\ns_add_u32 s{sT1}, s{sT1}, s{sT0}\ns_add_u32 s{sT1}, s{sT1}, {HIM}')
            for d in range(4):
                k(f's_add_u32 s{sT0}, s{sGW}, {d}\ns_and_b32 s{sT0}, s{sT0}, 3\ns_mul_i32 s{sT0}, s{sT0}, 49152\ns_add_u32 s{sAM+d}, s{sT0}, s{sT1}')
        k(f'''s_mul_i32 s{sKVS}, s{sAI}, {240*2048}
        s_mul_i32 s{sT1}, s{sAJ}, {5*2048}
        s_add_u32 s{sKVS}, s{sKVS}, s{sT1}
        s_mul_i32 s{sKVM}, s{sW}, 768''')

    def fg(self, d, src, t):
        self.k(f'v_bfe_u32 v{t}, v{src}, 2, 2\nv_and_b32 v{d}, 3, v{src}\nv_lshlrev_b32 v{d}, 13, v{d}\nv_lshl_add_u32 v{d}, v{t}, 8, v{d}')
    def fi(self, d, src, t):
        self.k(f'v_bfe_u32 v{t}, v{src}, 3, 1\nv_and_b32 v{d}, 7, v{src}\nv_lshlrev_b32 v{d}, 10, v{d}\nv_lshl_add_u32 v{d}, v{t}, 7, v{d}')
    def poll(self, kind, thr):
        k = self.k; a = vEX; st = {}
        srd = S_DBG if kind == 'dbg' else S_WS
        def addr():
            t = vT + 10
            if kind == 'dbg': k(f'v_and_b32 v{a}, 3, v{vL}\nv_lshlrev_b32 v{a}, 6, v{a}')
            elif kind == 'rc':
                self.fg(a, vL, t); self.fi(t + 1, vL, t)
                k(f"""s_lshl_b32 s{sT1}, s2, 7
                s_and_b32 s{sT2}, s{sT1}, {0x39 << 7}
                s_and_b32 s{sT1}, s{sT1}, {0xc6 << 7}
                v_add_u32 v{a}, s{sT2}, v{a}
                v_add_u32 v{t+1}, s{sT1}, v{t+1}
                s_mov_b32 vcc_lo, 0xffff0000
                s_mov_b32 vcc_hi, 0xffff0000
                v_cndmask_b32 v{a}, v{a}, v{t+1}, vcc""")
            elif kind == 'pk':
                self.fi(t + 1, vL, t)
                k(f"""s_lshl_b32 s{sT1}, s2, 7
                s_and_b32 s{sT1}, s{sT1}, {0xc6 << 7}
                v_add_u32 v{t+1}, s{sT1}, v{t+1}
                s_mul_i32 s{sT1}, s{sC2}, 5
                s_lshr_b32 s{sT1}, s{sT1}, 2
                v_lshrrev_b32 v{a}, 1, v{vL}
                v_lshl_add_u32 v{a}, v{a}, 3, v{vL}
                v_add_lshl_u32 v{a}, v{a}, s{sT1}, 7
                s_mov_b32 vcc_lo, 0
                s_mov_b32 vcc_hi, 0xffff0000
                v_cndmask_b32 v{a}, v{a}, v{t+1}, vcc""")
            elif kind == 'kv':
                k(f"""v_lshrrev_b32 v{t}, 4, v{vL}
                v_sub_u32 v{t}, s{sAI}, v{t}
                v_max_i32 v{t}, 0, v{t}
                v_mov_b32 v{t+1}, s{sPL2}
                s_mov_b32 vcc_lo, 0
                s_mov_b32 vcc_hi, 0xffff0000
                v_cndmask_b32 v{t+1}, v{t}, v{t+1}, vcc""")
                self.fi(t + 1, t + 1, t); self.fg(a, vL, t)
                k(f'v_add_u32 v{a}, v{a}, v{t+1}')
        def issue():
            self.uid += 1; u = self.uid
            k(f's_cmp_lg_u32 s{sGW}, 0\ns_cbranch_scc1 L_np{u}')
            k(f'buffer_load_dword v{vP}, v{a}, s[{srd}:{srd+3}], 0 offen sc1')
            k.nvm -= 1; st['t'] = k.nvm
            k.label(f'L_np{u}')
        def check(): self.poll_check(st['t'], vP, a, srd, '0', thr)
        return addr, issue, check
    def ext_a(self):
        k = self.k
        if self.S:
            k(f'''s_lshl_b32 s{sT2}, s{sGW}, 10
            s_add_u32 m0, s{sT2}, {L_EXT}
            s_mul_i32 s{sT1}, s{sG}, 10240
            s_add_u32 s{sT1}, s{sT1}, s{sT2}
            s_add_u32 s{sT1}, s{sT1}, {WEXT}''')
            k(f'buffer_load_dwordx4 v{aL16}, s[{S_WS}:{S_WS+3}], s{sT1} offen sc1 lds')
        k(f'''v_and_b32 v{vT+10}, 31, v{vL}
        v_lshlrev_b32 v{vT+10}, 3, v{vT+10}
        s_lshl2_add_u32 s{sT1}, s{sI}, s{sGW}
        s_lshl_b32 s{sT1}, s{sT1}, 8
        s_add_u32 s{sT1}, s{sT1}, {STATS}''')
        self.t_ea = k(f'buffer_load_dwordx2 v[{vST}:{vST+1}], v{vT+10}, s[{S_WS}:{S_WS+3}], s{sT1} offen sc1')
    def ext_b(self):
        k = self.k
        k(f'''s_lshl_b32 s{sT2}, s{sGW}, 9
        s_add_u32 m0, s{sT2}, {L_EXT + 8192}
        s_mul_i32 s{sT1}, s{sG}, 10240
        s_add_u32 s{sT1}, s{sT1}, s{sT2}
        s_add_u32 s{sT3}, s{sT1}, {WEXT + 8192}
        s_mov_b32 exec_hi, 0''')
        k(f'buffer_load_dwordx4 v{aL16}, s[{S_WS}:{S_WS+3}], s{sT3} offen sc1 lds')
        k(f'''s_mov_b32 exec_hi, -1
        s_lshl1_add_u32 m0, s{sT2}, {L_EXT + 4096}
        s_add_u32 s{sT1}, s{sT1}, s{sT2}
        s_add_u32 s{sT1}, s{sT1}, {WEXT + 4096}''')
        self.t_eb = k(f'buffer_load_dwordx4 v{aL16}, s[{S_WS}:{S_WS+3}], s{sT1} offen sc1 lds')
    def stats_prep(self):
        k = self.k
        k(f'v_rsq_f32 v{vRS}, v{vST+1}')
        for e in range(4): k(f'v_mov_b32 v{vMEAN+e}, v{vST}')
        k(f'v_mul_f32 v{vC1}, {hex(f2u(-LOG2E))}, v{vRS}\nv_mul_f32 v{vST}, s{sQF}, v{vRS}')
    def job_gu(self, acc, soff, imm):
        k = self.k; J = []; out = vT
        def one(s): J.append(lambda: k(s))
        for e0 in (0, 4):
            for e in range(e0, e0 + 4): one(f'v_mul_f32 v{acc+8+e}, v{acc+e}, v{acc+8+e}')
            for e in range(e0, e0 + 4): one(f'v_mul_f32 v{acc+e}, v{vC1}, v{acc+e}')
            for e in range(e0, e0 + 4): one(f'v_exp_f32 v{acc+e}, v{acc+e}')
            for e in range(e0, e0 + 4): one(f'v_fma_f32 v{acc+e}, v{acc+e}, v{vST+1}, v{vST+1}')
            for e in range(e0, e0 + 4): one(f'v_rcp_f32 v{acc+e}, v{acc+e}')
            for e in range(e0, e0 + 4): one(f'v_mul_f32 v{acc+e}, v{acc+e}, v{acc+8+e}')
            for e in range(e0, e0 + 4, 2): one(f'v_cvt_pk_bf16_f32 v{out+e//2}, v{acc+e}, v{acc+e+1}')
        def st(): self.t_store = k(f'buffer_store_dwordx4 v[{out}:{out+3}], v{vHO}, s[{S_WS}:{S_WS+3}], s{soff} offen offset:{imm} sc1')
        J.append(st)
        return J
    def qkv_half(self, acc, scale, soff, off):
        k = self.k
        for e in range(8): k(f'v_mul_f32 v{acc+e}, v{scale}, v{acc+e}')
        k(f's_add_u32 s{sT1}, s{soff}, {off}')
        for e in range(0, 8, 2): k(f'v_cvt_pk_bf16_f32 v{acc+e//2}, v{acc+e}, v{acc+e+1}')
        self.t_store = k(f'buffer_store_dwordx4 {vr(acc,4)}, v{vQO}, s[{S_WS}:{S_WS+3}], s{sT1} offen sc1')
    def job_e1(self, j):
        k = self.k
        def f():
            self.uid += 1; u = self.uid
            tt, half = j >> 1, j & 1; acc = vA0 + 16 * tt
            k(f's_bitcmp1_b32 s2, 6\ns_cbranch_scc1 L_eq{u}')
            s0 = k.snap()
            J = self.job_gu(acc, sHE, tt * 512)
            for x in (J[26:] if half else J[:26]): x()
            k.flush_hazards()
            k(f's_branch L_ed{u}')
            k.restore(s0)
            k.label(f'L_eq{u}')
            self.qkv_half(acc + 8 * half, vST, sQS1, tt * 4096 + half * 16384)
            if not half: k.nvm -= 1
            k.flush_hazards()
            k.label(f'L_ed{u}')
        return f
    def csb_setup(self):
        k = self.k; tmp = vT + 11
        k(f"""s_bitcmp1_b32 s{sI}, 0
        s_cselect_b64 s[{sT2}:{sT3}], s[{S_U}:{S_U+1}], s[{S_G}:{S_G+1}]
        s_cselect_b32 s{sT4}, 0, s{S_Q+2}
        s_cselect_b32 s{sPL2}, {OOB}, s{sPL2}
        s_add_u32 s{sPL2}, s{sPL2}, 4096
        s_movk_i32 s{sT1}, 3072
        s_cmp_eq_u32 s{sW}, 2
        s_cselect_b64 s[{S_WD}:{S_WD+1}], s[{S_Q}:{S_Q+1}], s[{sT2}:{sT3}]
        s_cselect_b32 s{S_WD+2}, s{sT4}, 0
        s_cselect_b32 s{sT4}, s{sPL2}, {OOB}
        s_cselect_b32 s{sT1}, 3840, s{sT1}
        s_cselect_b32 s{sCO}, s{sC2O}, s{sC3O}
        s_cmp_eq_u32 s{sW}, 1
        s_cselect_b32 s{S_WD+2}, {640*3072}, s{S_WD+2}
        s_cselect_b32 s{sCD}, s{sCD}, s{sT4}
        s_add_u32 s{sCD}, s{sCD}, 4096
        s_mov_b32 s{S_WD+3}, 0x20000
        s_bfe_u32 s{sSLOT}, s2, {hex(0x4 | ((self.cfg.nslot.bit_length()-1) << 16))}
        s_cmp_ge_u32 s{sCD}, {OOB}
        s_cselect_b32 s{sSLOT}, 9, s{sSLOT}
        s_lshr_b32 s{sT2}, s{sI}, 1
        s_mul_i32 s{sT2}, s{sT2}, 80
        s_mul_i32 s{sT2}, s{sT2}, s{sT1}
        s_add_u32 s{sCO}, s{sCO}, s{sT2}
        s_lshl_b32 s{sKVM}, s{sT1}, 3
        v_lshrrev_b32 v{tmp}, 3, v{vL}
        v_and_b32 v{vCSG}, 7, v{vL}
        v_lshlrev_b32 v{vCSG}, 4, v{vCSG}
        v_mad_u32_u24 v{vCSG}, v{tmp}, s{sT1}, v{vCSG}""")
    def slot_test(self, newer):
        return f's_sub_u32 s{sCNT}, s{sSLOT}, {newer[0][3]}\ns_cmp_le_u32 s{sCNT}, {newer[-1][3] - newer[0][3]}'
    def job_csb(self, lump):
        k = self.k; c = self.cfg
        buf = vX + 120
        st = {}
        def ld(p):
            def f():
                if 'c' in c.skip: k(f's_mov_b32 s{sSLOT}, 9')
                k(f's_cmp_lg_u32 s{sSLOT}, {p}\ns_cbranch_scc1 L_ncb{p}')
                for j in range(10):
                    k(f'buffer_load_dwordx4 {vr(buf+4*j,4)}, v{vCSG}, s[{S_WD}:{S_WD+3}], s{sCO} offen')
                    if j < 9: k(f's_add_u32 s{sCO}, s{sCO}, s{sKVM}')
                k.nvm -= 10; k.cond.append((k.nvm, 10, self.slot_test, p)); st['t'] = Tok(k.nvm + 1)
                k.label(f'L_ncb{p}')
            return f
        def use():
            k.wait(vm=st['t'])
            k(f's_cmp_ge_u32 s{sSLOT}, 8\ns_cbranch_scc1 L_csb')
            self.cs_run(buf, vCSA)
            k(f'buffer_store_dwordx2 {vr(vCSA,2)}, v{vCSO}, s[{S_WS}:{S_WS+3}], s{sCD} offen sc1')
            k.nvm -= 1; self.t_b = Tok(k.nvm + 1)
            k.flush_hazards()
            k.label('L_csb')
        for p in range(c.nslot): lump[c.cb + p].append(('first', ld(p)))
        u = c.cb + c.nslot - 1 + c.cbd
        lump[u].append(('first', use))
        assert u <= 6
    def pack_setup(self):
        k = self.k
        a0, a1, go = vA1 + 6, vA1 + 7, vA1 + 8
        d = vT; x, y = vT + 10, vT + 11
        k(f"""s_mul_i32 s{sT1}, s2, 52429
        s_lshr_b32 s{sT1}, s{sT1}, 19
        s_mul_i32 s{sT3}, s{sT1}, 10
        s_sub_u32 s{sPKL}, s2, s{sT3}
        s_lshl2_add_u32 s{sT2}, s{sT1}, s{sGW}
        s_mul_i32 s{sPKS}, s{sT2}, 10240
        s_lshl_b32 s{sT3}, s{sPKL}, 7
        s_add_u32 s{sPKS}, s{sPKS}, s{sT3}
        s_mul_i32 s{sT3}, s{sT1}, 5120
        s_lshl_b32 s{sT4}, s{sGW}, 8
        s_add_u32 s{sT3}, s{sT3}, s{sT4}
        s_add_u32 s{sT3}, s{sT3}, {W2P}
        s_cmp_lt_u32 s{sT2}, 96
        s_cselect_b32 s{sPKD0}, s{sT3}, {OOB}
        s_cselect_b32 s{sPKS}, s{sPKS}, {OOB}
        s_add_u32 s{sPKD1}, s{sPKD0}, {24*5120}
        s_mul_i32 s{sT1}, s{sT2}, 52429
        s_lshr_b32 s{sT1}, s{sT1}, 18
        s_mul_i32 s{sT3}, s{sT1}, 5
        s_sub_u32 s{sT3}, s{sT2}, s{sT3}
        s_and_b32 s{sT4}, s{sT1}, 3
        s_lshr_b32 s{sT1}, s{sT1}, 2
        s_mul_i32 s{sT1}, s{sT1}, 5
        s_cmp_gt_u32 s{sT3}, 2
        s_subb_u32 s{sT5}, s{sT3}, 0
        s_cmp_eq_u32 s{sT3}, 2
        s_cselect_b32 s{sT5}, s{sT4}, s{sT5}
        s_cselect_b32 s{sT4}, 4, s{sT4}
        s_add_u32 s{sT1}, s{sT1}, s{sT4}
        s_mul_i32 s{sT1}, s{sT1}, 5120
        s_lshl_b32 s{sT5}, s{sT5}, 8
        s_add_u32 s{sT1}, s{sT1}, s{sT5}
        s_add_u32 s{sT1}, s{sT1}, {W2P + 48*5120}
        s_cmp_lt_u32 s{sT2}, 80
        s_cselect_b32 s{sPKD2}, s{sT1}, {OOB}
        s_bfe_u32 s{sSLOT}, s2, {hex(0x4 | ((self.cfg.nslot.bit_length()-1) << 16))}
        v_lshrrev_b32 v{go}, 3, v{vL}
        v_mul_u32_u24 v{go}, 1280, v{go}
        v_and_b32 v{x}, 7, v{vL}
        v_lshl_add_u32 v{go}, v{x}, 4, v{go}""")
    def job_pack(self, lump):
        k = self.k; c = self.cfg
        a0, a1, go = vA1 + 6, vA1 + 7, vA1 + 8
        d = vT; x, y = vT + 4, vT + 5
        def issue(p):
            def f():
                if 'p' in c.skip: k(f's_mov_b32 s{sSLOT}, 9')
                if 's' in c.skip: k(f's_mov_b32 s{sPKD0}, {OOB}\ns_mov_b32 s{sPKD1}, {OOB}\ns_mov_b32 s{sPKD2}, {OOB}')
                k(f"""s_cmp_lg_u32 s{sSLOT}, {p}
                s_cbranch_scc1 L_npk{p}
                s_mul_i32 s{sT2}, s{sGW}, 3072
                s_add_u32 m0, s{sT2}, {L_PACK}
                s_add_u32 s{sT1}, s{sPKS}, {96*10240 - 1024}""")
                k(f'buffer_load_dwordx4 v{go}, s[{S_WD}:{S_WD+3}], s{sPKS} offen lds')
                k(f'buffer_load_dwordx4 v{go}, s[{S_WD}:{S_WD+3}], s{sT1} offen offset:1024 lds')
                k(f's_add_u32 m0, s{sT2}, {L_PACK + 2048}')
                k(f'buffer_load_dwordx4 v{go}, s[{S_WO}:{S_WO+3}], s{sPKS} offen lds')
                k.nvm -= 3; k.cond.append((k.nvm, 3, self.slot_test, p)); self.t_pk = Tok(k.nvm + 1)
                k.label(f'L_npk{p}')
            return f
        def addr1():
            k(f"""s_lshl_b32 s{sT1}, s{sPKL}, 1
            v_lshrrev_b32 v{x}, 5, v{vL}
            v_add_u32 v{x}, s{sT1}, v{x}
            v_mul_u32_u24 v{y}, 52, v{x}
            v_lshrrev_b32 v{y}, 8, v{y}
            v_mul_u32_u24 v{a0}, 5, v{y}
            v_sub_u32 v{x}, v{x}, v{a0}
            v_bfe_u32 v{d}, v{vL}, 4, 1
            v_lshl_add_u32 v{d+1}, v{x}, 1, v{d}
            v_cmp_lt_u32 vcc, 4, v{d+1}
            v_mul_u32_u24 v{y}, {2*340}, v{y}
            v_add_u32 v{a1}, {340-6}, v{d+1}
            v_cndmask_b32 v{a1}, v{d+1}, v{a1}, vcc
            v_cmp_eq_u32 vcc, 5, v{d+1}
            v_mov_b32 v{d+2}, {340+4}
            v_and_b32 v{d+3}, 15, v{vL}
            v_cndmask_b32 v{a1}, v{a1}, v{d+2}, vcc
            v_add_lshl_u32 v{a1}, v{a1}, v{y}, 10
            v_lshl_add_u32 v{a1}, v{d+3}, 4, v{a1}""")
        def addr2():
            k(f"""v_and_b32 v{d+1}, 3, v{vL}
            v_lshlrev_b32 v{d+2}, 4, v{d+1}
            v_lshl_add_u32 v{d+2}, v{d}, 3, v{d+2}
            v_cmp_eq_u32 vcc, 2, v{x}
            v_lshlrev_b32 v{d+1}, 3, v{d+1}
            v_lshl_add_u32 v{d+1}, v{d}, 5, v{d+1}
            v_cndmask_b32 v{a0}, v{d+2}, v{d+1}, vcc
            v_bfe_u32 v{x}, v{vL}, 2, 2
            v_lshl_add_u32 v{a0}, v{x}, 7, v{a0}
            v_lshrrev_b32 v{x}, 5, v{vL}
            v_lshl_add_u32 v{a0}, v{x}, 6, v{a0}
            s_mul_i32 s{sT1}, s{sGW}, 3072
            s_add_u32 s{sT1}, s{sT1}, {L_PACK}
            v_add_u32 v{a0}, s{sT1}, v{a0}""")
        D = (vT, 12, vA1 + 12)
        def rd():
            k.wait(vm=self.t_pk)
            for it in range(3):
                k(f'ds_read_b64_tr_b16 {vr(D[it],2)}, v{a0} offset:{it*1024}')
                self.t_pr = k(f'ds_read_b64_tr_b16 {vr(D[it]+2,2)}, v{a0} offset:{it*1024+512}')
        def st():
            k.wait(lg=self.t_pr)
            for it, sd in enumerate((sPKD0, sPKD1, sPKD2)):
                self.t_b = k(f'buffer_store_dwordx4 {vr(D[it],4)}, v{a1}, s[{S_WS}:{S_WS+3}], s{sd} offen sc1')
        n = c.pk
        for p in range(c.nslot): lump[n + p].append(('first', issue(p)))
        u = n + c.nslot - 1 + c.pkd
        lump[1].append(addr1); lump[2].append(addr2); lump[u].append(rd); lump[u + 1].append(st)
        assert 3 <= u and u + 1 <= 8 and u + 1 < c.pa + 4
    def job_ones(self):
        k = self.k
        d = vT; tk = vT + 10; a = vT + 11
        k(f'''s_mul_i32 s{sT1}, s{sW}, 48
        v_add_u32 v{tk}, s{sT1}, v{vL}
        s_sub_i32 s{sT1}, 2, s{sAI}
        s_lshl_b32 s{sT1}, s{sT1}, 7
        v_cmp_le_i32 vcc, s{sT1}, v{tk}
        v_mov_b32 v{d+1}, 0x3f803f80
        v_lshlrev_b32 v{a}, 4, v{tk}
        v_cndmask_b32 v{d}, 0, v{d+1}, vcc
        v_lshrrev_b32 v{d+2}, 7, v{tk}
        v_mul_u32_u24 v{d+2}, {240*2048 - 2048}, v{d+2}
        v_add_u32 v{d+2}, v{d+2}, v{a}
        v_mov_b32 v{d+3}, {OOB}
        v_cndmask_b32 v{vT+8}, v{d+3}, v{d+2}, vcc
        v_mov_b32 v{d+1}, v{d}
        v_mov_b32 v{d+2}, v{d}
        v_mov_b32 v{d+3}, v{d}
        v_add_u32 v{a}, {L_ONES}, v{a}
        ds_write_b128 v{a}, v[{d}:{d+3}]''')
        if self.S: k(f'v_mov_b32 v{tk}, 0\nv_lshlrev_b32 v{a}, 2, v{vL}\nv_add_u32 v{a}, {L_CNT}, v{a}\nds_write_b32 v{a}, v{tk}')
    def job_kv(self):
        k = self.k; J = []; S = self.S
        for e in range(10):
            def f(e=e):
                src = QKV - 2*240*2048 + ((80 if e < 5 else 155) + e) * 2048
                k(f's_add_u32 m0, s{sKVM}, {L_KV + e*CH}\ns_add_u32 s{sT1}, s{sKVS}, {src}\ns_mov_b32 exec_hi, 0xffff')
                self.t_kv = k(f'buffer_load_dwordx4 v{vT+8}, s[{S_WS}:{S_WS+3}], s{sT1} offen sc1 lds')
                k('s_mov_b32 exec_hi, -1')
            J.append(f)
        def q():
            k(f'''s_lshl_b32 s{sT1}, s{sGW}, 9
            s_add_u32 s{sT1}, s{sT1}, s{sKVS}
            s_add_u32 s{sT2}, s{sT1}, {QKV + S*3*2048}
            s_add_u32 s{sT1}, s{sT1}, {QKV + 4096 + 8*S}
            v_lshrrev_b32 v{vT+10}, 5, v{vL}
            v_lshl_add_u32 v{vT+10}, v{vT+10}, 30, v{vQO}''')
            k(f'buffer_load_dwordx4 v[{vQ}:{vQ+3}], v{vQO}, s[{S_WS}:{S_WS+3}], s{sT2} offen sc1')
            self.t_kv = k(f'buffer_load_dwordx2 v[{vQ+4}:{vQ+5}], v{vT+10}, s[{S_WS}:{S_WS+3}], s{sT1} offen sc1')
        J.append(q)
        return J
    def job_touch(self, gw):
        k = self.k; c = self.cfg
        nsh = 8 if c.g2map else 4; per = -(-2720 // (8 * nsh))
        def f():
            self.uid += 1; u = self.uid
            k(f"""s_cmp_lg_u32 s{sGW}, {gw}
            s_cbranch_scc1 L_nt{u}
            s_and_b32 s{sT1}, s{sR2}, {nsh-1}
            s_lshl3_add_u32 s{sT1}, s{sT1}, s{sW}
            s_mul_i32 s{sT1}, s{sT1}, {per}
            v_min_u32 v{vT+5}, {min(per,64)-1}, v{vL}
            v_add_u32 v{vT+5}, s{sT1}, v{vT+5}
            v_min_u32 v{vT+5}, 2719, v{vT+5}
            v_lshlrev_b32 v{vT+5}, 7, v{vT+5}
            s_mul_i32 s{sT1}, s{sC2}, {68*5120}
            s_add_u32 s{sT1}, s{sT1}, {W2P}""")
            k(f'buffer_load_dword v{vT+6}, v{vT+5}, s[{S_WS}:{S_WS+3}], s{sT1} offen sc1')
            k.nvm -= 1
            k.label(f'L_nt{u}')
        return f
    def dmask(self, r):
        n0 = 8 * (r >> 2) + (r & 3)
        return f's_lshl_b32 s{sT2}, -1, {n0}\ns_lshl_b32 s{sT3}, -1, {n0+4}'
    def job_masks(self, lo, hi):
        k = self.k
        def f():
            k(f'v_mov_b32 v{vT+10}, 0xffff')
            for j in range(lo, hi):
                k(self.dmask(2*j) + f'\nv_cndmask_b32 v{vM+j}, 0, v{vT+10}, s[{sT2}:{sT3}]')
                k(self.dmask(2*j+1) + f'\nv_cndmask_b32 v{vM+j}, v{vM+j}, -1, s[{sT2}:{sT3}]')
        return f

    def frag_list(self):
        c = self.cfg; F = []
        ea, eb = c.pa + 4, c.pb + 4
        for n in range(25):
            slot = (n & 3) * 16384
            for q in range(8):
                f = dict(stage=n, first=(q == 0))
                if 10 <= n < 15:
                    kk = 8 * (n - 10) + q
                    f.update(addr=vWR2, off=slot + q * 2048, d2=512, acc=vA1, b=vX + 4 * kk, zero=(kk == 0))
                else:
                    t, tt = q >> 1, q & 1
                    kk = 4 * (n if n < 10 else n - 15) + t
                    f.update(addr=(vWR0, vWR1)[tt], off=slot + t * 4096, d2=512, acc=vA0 + 16 * tt, b=vX + 4 * kk, zero=(kk == 0))
                    if n < 10 and tt == 0: f['xread'] = (vX + 4 * kk, vA1 + t, slot)
                F.append(f)
                def ext(addr, off, acc, d2):
                    F.append(dict(stage=n, first=False, addr=addr, off=0, d2=d2, acc=acc, b=vMEAN, zero=False, ext=L_EXT + off))
                if n == ea and q == 1: ext(vWR0, 0, vA0, 512); ext(vWR1, 0, vA0 + 16, 512)
                if n == eb and q == 1: ext(vWR2, 8192, vA1, 512)
                if n == 20 and q == 1: ext(vWR0, 4096, vA0, 512)
                if n == 21 and q == 1: ext(vWR1, 4096, vA0 + 16, 512)
        return F
    def issue_reads(self, F, i):
        k = self.k; f = F[i]
        if f['first']: self.barrier(f['stage'])
        if 'xread' in f:
            d, a, off = f['xread']
            k(f'ds_read_b128 {vr(d,4)}, v{a} offset:{off}')
        fr = vFR + 4 * (i & 3); a = f['addr']
        if 'ext' in f:
            k(f"v_add_u32 v{vT+9}, {f['ext']}, v{a}"); a = vT + 9
        k(f"ds_read_b64_tr_b16 {vr(fr,2)}, v{a} offset:{f['off']}")
        f['tok'] = k(f"ds_read_b64_tr_b16 {vr(fr+2,2)}, v{a} offset:{f['off']+f['d2']}")
        if f['first'] and self.S: self.run_lump(f['stage'])
    def run_lump(self, n):
        k = self.k
        if self.cfg.prio == 1: k('s_setprio 0')
        if self.cfg.prio == 3 and self.S: k('s_setprio 1')
        for j in self.lump[n]: j()
        self.lump[n] = []
        if self.cfg.prio == 1: k('s_setprio 1')
        if self.cfg.prio == 3 and self.S: k('s_setprio 0')
    def barrier(self, n):
        k = self.k
        if not self.S: self.run_lump(n - 1)
        toks = [self.stok[n]] + [g() for g in self.pre[n]]
        k.wait(vm=max(t.n for t in toks), lg='all' if n in self.drain else None)
        k('s_barrier')
        if n in (0, 10, 15): self.stamp()
        if n in (0, 1, 2, 3): self.stamp('p0')
        if n <= 10: self.stamp('p1')
        if 8 <= n <= 19: self.stamp('p2')
        if n >= 14: self.stamp('p3')
        for g in self.post[n]: g()

    def gemm1(self):
        k = self.k; c = self.cfg; S = self.S
        L = self.lump = {n: [] for n in range(-1, 26)}
        pre = self.pre = {n: [] for n in range(26)}
        post = self.post = {n: [] for n in range(26)}
        ea, eb = c.pa + 4, c.pb + 4
        if S:
            for n, v in ((c.fa, 1), (c.fb, 2), (c.fq, 3)):
                L[n].append(lambda v=v: self.flag_store(v))
        else:
            for n, kind, thr in ((c.fa - 2, 'dbg', 1), (c.pa, 'rc', 1), (c.pb, 'pk', 2), (c.pq, 'kv', 3)):
                a_, i_, c_ = self.poll(kind, thr)
                L[n + 1].append(c_)
                L[n - 1 if n else 0].append(('late', a_))
                L[n].append(('late', i_))
            assert c.fa >= 2 and c.pa >= c.fa and c.pb >= max(c.pa + 2, c.c2 + 1)
        self.inter = {n: [] for n in range(26)}; self.drain = set(); self.rr = {n: [] for n in range(26)}
        nxt = 2
        for n in range(24):
            depth = c.dp1 if n < c.dpx else c.dp2
            mode = c.dm1 if n < 8 else c.dm2
            while nxt <= min(n + depth, 24):
                if mode == 0 and not S and c.alast: L[n] += [('late', f) for f in self.dma_stage(nxt)]
                elif mode == 0 or (mode == 1 and S): L[n] += self.dma_stage(nxt)
                elif mode == 1: post[n] += self.dma_stage(nxt)
                elif mode == 2: self.inter[n] += self.dma_stage(nxt)
                else: self.rr[n] += self.dma_stage(nxt)
                if nxt == n + 3 and nxt >= 4: self.drain.add(n)
                nxt += 1
        pre[c.fa].append(lambda: self.t_a)
        if S: self.job_pack(L)
        else: self.job_csb(L)
        L[9 if S else c.c2].append(self.consts2); L[10 if S else c.c2 + 1].append(self.consts3)
        pre[c.fb].append(lambda: self.t_b)
        L[c.pa + 2].append(self.ext_a); pre[ea].append(lambda: self.t_ea); post[ea].append(self.stats_prep)
        if S: L[c.pb + 2].append(self.ext_b); pre[eb].append(lambda: self.t_eb)
        q0 = max(10, ea) + S
        for j in range(4): L[q0 + j].append(self.job_e1(j))
        assert q0 + 3 <= 14 + S
        g0 = max(15, eb) + S
        def e2():
            self.qkv_half(vA1, vRS, sQS2, 0); self.qkv_half(vA1 + 8, vRS, sQS2, 4096)
            self.t_q = self.t_store
        L[g0].append(e2); pre[c.fq].append(lambda: self.t_q)
        assert c.fq > g0
        L[g0 + 1].append(self.job_ones)
        L[g0 + 2].append(self.job_masks(0, 4)); L[g0 + 3].append(self.job_masks(4, 8))
        L[g0 + 4].append(self.attn_c1); L[g0 + 5].append(self.attn_c2); L[23].append(self.attn_c3)
        kv = self.job_kv(); n = c.pq + 2
        while kv:
            assert n <= 24
            if len(kv) <= c.kvn or n == 24: assert n > g0 + 1
            take = len(kv) if n == 24 else c.kvn
            L[n] += kv[:take]; kv = kv[take:]; n += 1
        if c.touch:
            assert c.touch >= c.pb + 2 and c.g2map
            for gw in range(4): L[c.touch + c.tstep * gw + (S if c.tstep > 1 else 0)].append(('late', self.job_touch(gw)))
        self.g2_plan()
        for n in range(c.pb + 2, 25):
            for _ in range(c.hoist if n <= c.hoist_hi else 0):
                if self.pf and self.pf[0][0] == 'w' and self.pf[0][1] + 3 < vX + 16 * (n - 15 - S):
                    L[n].append(self.pf.pop(0)[2])
        for n in L:
            late = [j[1] for j in L[n] if isinstance(j, tuple) and j[0] == 'late']
            first = [j[1] for j in L[n] if isinstance(j, tuple) and j[0] == 'first']
            L[n] = first + [j for j in L[n] if not isinstance(j, tuple)] + late
        F = self.frag_list()
        if S and c.prio == 2: k('s_setprio 1')
        if S: self.run_lump(-1)
        for i in range(3): self.issue_reads(F, i)
        pos = 0
        for i, f in enumerate(F):
            k.wait(lg=f['tok'])
            cin = '0' if f['zero'] else vr(f['acc'], 16)
            k(f"v_mfma_f32_32x32x16_bf16 {vr(f['acc'],16)}, {vr(vFR + 4*(i&3),4)}, {vr(f['b'],4)}, {cin}")
            if i + 3 < len(F):
                self.issue_reads(F, i + 3)
                q = self.inter[F[i + 3]['stage']]
                if q and (i % 2 == 0 or len(q) > 2): q.pop(0)()
                if F[i + 3]['first']: pos = -1
                pos += 1
                q = self.rr[F[i + 3]['stage']]
                P = (c.rrB if S else c.rrA) if F[i + 3]['stage'] else (1, 2, 3, 4)
                if q and pos in P:
                    for p in [p for p in range(4) if P[p] == pos]:
                        self.uid += 1; n0 = k.nvm
                        k(f's_cmp_lg_u32 s{sGW}, {p}\ns_cbranch_scc1 L_rr{self.uid}')
                        u = self.uid
                        for j in q: j()
                        k.label(f'L_rr{u}')
                        if p < 3: k.nvm = n0
        if not S: self.run_lump(24)
        if c.prio: k('s_setprio 0')
        assert not any(L.values())
        self.stamp()

    def attn_c1(self):
        k = self.k; t = vT; S = self.S
        k(f"""v_and_b32 v{t}, 31, v{vL}
        v_lshrrev_b32 v{t+1}, 5, v{vL}
        s_lshl_b32 s{sT0}, s{sGW}, 9
        s_add_u32 s{sT2}, s{sT0}, {L_KV + S*3*CH}
        v_mul_u32_u24 v{aK0}, {CH}, v{t+1}
        v_lshl_add_u32 v{aK0}, v{t}, 4, v{aK0}
        v_add_u32 v{aK0}, s{sT2}, v{aK0}
        s_add_u32 s{sT3}, s{sT0}, {L_KV + 2*CH + 8*S}
        v_lshl_add_u32 v{aK1}, v{t}, 4, s{sT3}
        s_lshl2_add_u32 s{sT0}, s{sAI}, s{sGW}
        s_lshr_b32 s{sT1}, s{sAJ}, 2
        s_lshl3_add_u32 s{sT0}, s{sT0}, s{sT1}
        s_mul_i32 s{sT0}, s{sT0}, 5120
        s_add_u32 s{sT0}, s{sT0}, {OIM + S*512}
        s_and_b32 s{sT1}, s{sAJ}, 3
        s_lshl_b32 s{sT2}, s{sT1}, 10
        s_add_u32 s{sQS1}, s{sT0}, s{sT2}
        s_lshl_b32 s{sT2}, s{sT1}, 7
        s_add_u32 s{sQS2}, s{sT0}, s{sT2}
        s_add_u32 s{sQS2}, s{sQS2}, 4096""")
    def attn_c2(self):
        k = self.k; t = vT; S = self.S
        k(f"""v_lshrrev_b32 v{t+1}, 5, v{vL}
        s_lshl_b32 s{sT0}, s{sGW}, 9
        v_bfe_u32 v{t}, v{vL}, 2, 2
        v_lshl_add_u32 v{t}, v{t+1}, 2, v{t}
        v_lshlrev_b32 v{t}, 4, v{t}
        v_and_b32 v{aV}, 1, v{vL}
        v_mul_u32_u24 v{aV}, {CH}, v{aV}
        v_and_b32 v{t+2}, 2, v{vL}
        v_lshl_add_u32 v{aV}, v{t+2}, 2, v{aV}
        s_add_u32 s{sT1}, s{sT0}, {L_KV + (5 + 3*S)*CH}
        v_add3_u32 v{aV}, v{aV}, v{t}, s{sT1}
        s_add_u32 s{sT2}, s{sT0}, {L_KV + 7*CH + 8*S}
        v_add_u32 v{t}, s{sT2}, v{t}
        s_mov_b32 vcc_lo, 0x33330000
        s_mov_b32 vcc_hi, 0x33330000
        v_cndmask_b32 v{aV}, v{aV}, v{t}, vcc
        s_add_u32 s{sT1}, s{sT0}, {L_ONES + 8 - 8*S}
        v_lshl_add_u32 v{t}, v{t+1}, 6, s{sT1}
        s_lshl_b64 vcc, vcc, 2
        v_cndmask_b32 v{aV}, v{aV}, v{t}, vcc""")
    def attn_c3(self):
        k = self.k; t = vT
        k(f"""v_lshrrev_b32 v{t+1}, 5, v{vL}
        v_bfe_u32 v{t}, v{vL}, 4, 1
        v_mul_u32_u24 v{t}, 20480, v{t}
        v_and_b32 v{t+2}, 15, v{vL}
        v_lshl_add_u32 v{aO0}, v{t+2}, 4, v{t}
        v_lshl_add_u32 v{aO0}, v{t+1}, 8, v{aO0}
        v_lshl_add_u32 v{aO1}, v{t+2}, 3, v{t}
        v_lshl_add_u32 v{aO1}, v{t+1}, 30, v{aO1}""")
    def rdK(self, t, buf, a0=None, a1=None):
        k = self.k; k0, k1 = vKB[buf]
        k(f'ds_read_b128 {vr(k0,4)}, v{a0 or aK0} offset:{t*512}')
        return k(f'ds_read_b64 {vr(k1,2)}, v{a1 or aK1} offset:{t*512}')
    def rdV(self, t, buf, a=None):
        k = self.k; v = vVB[buf]
        for q in range(4): r = k(f'ds_read_b64_tr_b16 {vr(v+2*q,2)}, v{a or aV} offset:{t*512 + q*128}')
        return r
    def qk(self, buf, S):
        k = self.k; k0, k1 = vKB[buf]
        k(f'v_mfma_f32_32x32x16_bf16 {vr(S,16)}, {vr(k0,4)}, {vr(vQ,4)}, 0')
        k(f'v_mfma_f32_32x32x8_bf16 {vr(S,16)}, {vr(k1,2)}, {vr(vQ+4,2)}, {vr(S,16)}')
    def pv(self, buf, half, P, first=False):
        self.k(f"v_mfma_f32_32x32x16_bf16 {vr(vO,16)}, {vr(vVB[buf]+4*half,4)}, {vr(P+4*half,4)}, {'0' if first else vr(vO,16)}")
    def attention(self, pf, hook=None):
        k = self.k; c = self.cfg
        npf = len(pf); pts = [0]; NP = c.bnp if self.S else 30
        def sp():
            pts[0] += 1
            while npf - len(pf) < (npf * pts[0] + NP - 1) // NP and pf: pf.pop(0)()
        def ex(Sb, lo, hi):
            for r in range(lo, hi): k(f'v_exp_f32 v{Sb+r}, v{Sb+r}')
        def cv(Sb, half):
            for r in range(8*half, 8*half + 8, 2): k(f'v_cvt_pk_bf16_f32 v{vPP+r//2}, v{Sb+r}, v{Sb+r+1}')
        def qa(buf, Sb): k(f'v_mfma_f32_32x32x16_bf16 {vr(Sb,16)}, {vr(vKB[buf][0],4)}, {vr(vQ,4)}, 0')
        def qb(buf, Sb): k(f'v_mfma_f32_32x32x8_bf16 {vr(Sb,16)}, {vr(vKB[buf][1],2)}, {vr(vQ+4,2)}, {vr(Sb,16)}')
        def rv(t, buf, q): return k(f'ds_read_b64_tr_b16 {vr(vVB[buf]+2*q,2)}, v{aV} offset:{t*512 + q*128}')
        def merge(far, diag, lo=0, hi=16):
            for r in range(lo, hi):
                k(self.dmask(r) + f'\nv_cndmask_b32 v{far+r}, v{far+r}, v{diag+r}, s[{sT2}:{sT3}]')
        first = [True]
        def pv(buf, half, P):
            self.pv(buf, half, P, first[0]); first[0] = False
        nb = [0]
        def mid():
            nb[0] += 1
            self.stamp('at')
            if nb[0] == c.bh_at - (c.bh_skew if self.S else 0):
                k.wait(vm=self.t_hl)
                k(f'v_mov_b32 v2, {L_CNT}')
                self.lds_add(6, 1, 2)
            if self.S and nb[0] == c.bh_chk:
                k(f's_cmp_lg_u32 s{sGW}, 0\ns_cbranch_scc1 L_nh')
                s0 = k.snap()
                self.lds_wait(6, 8, 1, 2)
                k.nlg, k.dlg = s0[3], s0[4]
                k.label('L_nh')
                self.flag_store(4, 8)
            if nb[0] == 8 and hook: hook()
        def block(Sb, vb, tv, nq, nk, nv, nq2=None):
            mid(); tk = tvn = None
            ex(Sb, 0, 4)
            if nq: k.wait(lg=nq[2]); qa(nq[0], nq[1])
            if nv: rv(nv[0], nv[1], 0); rv(nv[0], nv[1], 1)
            sp()
            ex(Sb, 4, 8)
            if nq: qb(nq[0], nq[1])
            if nv: rv(nv[0], nv[1], 2); tvn = rv(nv[0], nv[1], 3)
            cv(Sb, 0); ex(Sb, 8, 10)
            k.wait(lg=tv); pv(vb, 0, vPP)
            sp()
            if nq2:
                ex(Sb, 10, 13); k.wait(lg=nq2[2]); qa(nq2[0], nq2[1]); ex(Sb, 13, 16); qb(nq2[0], nq2[1]); cv(Sb, 1)
            else:
                ex(Sb, 10, 16); cv(Sb, 1)
            if nk: tk = self.rdK(*nk)
            sp()
            pv(vb, 1, vPP)
            sp()
            return tk, tvn
        def merged(Sb, bfar, bdiag, tv, nq=None, nk=None):
            mid(); tk = None
            ex(Sb, 0, 4)
            if nq: k.wait(lg=nq[2]); qa(nq[0], nq[1])
            ex(Sb, 4, 8)
            if nq: qb(nq[0], nq[1])
            if nk: tk = self.rdK(*nk)
            for half in range(2):
                cv(Sb, half)
                for j in range(4*half, 4*half + 4): k(f'v_and_b32 v{vM+j}, v{vM+j}, v{vPP+j}')
                for j in range(4*half, 4*half + 4): k(f'v_xor_b32 v{vPP+j}, v{vM+j}, v{vPP+j}')
                k.wait(lg=tv); pv(bdiag, half, vM)
                if half == 0: ex(Sb, 8, 12)
                sp()
                pv(bfar, half, vPP)
                if half == 0: ex(Sb, 12, 16)
            return tk
        S = (vS0, vS1)
        self.stamp('at')
        if not (self.S and c.blast):
            t0 = self.rdK(0, 0); t8 = self.rdK(8, 1)
            self.rdV(0, 0); tv8 = self.rdV(8, 1)
            k.wait(lg=t0); self.qk(0, S[0])
            k.wait(lg=t8); self.qk(1, S[1])
            tk = self.rdK(1, 0)
            merge(S[0], S[1])
            tk = merged(S[0], 0, 1, tv8, (0, S[1], tk), (2, 1))
            tv = self.rdV(1, 1)
            for t in range(1, 8):
                tk, tv = block(S[t & 1], t & 1, tv, (t & 1, S[(t+1) & 1], tk) if t < 7 else None,
                               (t + 2, (t+1) & 1) if t < 6 else None, (t + 1, (t+1) & 1) if t < 7 else None)
        else:
            t1 = self.rdK(1, 0); tk = self.rdK(2, 1); tv = self.rdV(1, 1)
            k.wait(lg=t1); self.qk(0, S[1])
            for t in range(1, 7):
                tk, tv = block(S[t & 1], t & 1, tv, (t & 1, S[(t+1) & 1], tk), (t + 2 if t < 6 else 0, (t+1) & 1), (t + 1, (t+1) & 1))
            t8 = self.rdK(8, 0)
            _, tv0 = block(S[1], 1, tv, (1, S[0], tk), None, (0, 0), (0, vS2, t8))
            merge(S[0], vS2, 0, 4)
            tv8 = self.rdV(8, 1)
            merge(S[0], vS2, 4, 16)
            merged(S[0], 0, 1, tv8)
        assert not pf
        self.stamp('at')
        tag = 'AB'[self.S]
        k(f'v_mov_b32 v8, {hex(f2u(2.0**-40))}\nv_mov_b32 v9, {hex(f2u(2.0**40))}\nv_med3_f32 v8, v{vO+12}, v8, v9')
        k(f'v_cmp_eq_f32 vcc, v8, v{vO+12}\ns_cmp_eq_u64 vcc, -1\ns_cbranch_scc1 L_aok{tag}')
        k(f's_call_b64 s[{sT4}:{sT5}], L_fallback')
        k.label(f'L_aok{tag}')
        k(f'v_rcp_f32 v8, v{vO+12}')
        for r in range(12): k(f'v_mul_f32 v{vO+r}, v8, v{vO+r}')
        for j in range(6): k(f'v_cvt_pk_bf16_f32 v{vS0+j}, v{vO+2*j}, v{vO+2*j+1}')
        k(f'buffer_store_dwordx4 {vr(vS0,4)}, v{aO0}, s[{S_WS}:{S_WS+3}], s{sQS1} offen sc1')
        self.t_o = k(f'buffer_store_dwordx2 {vr(vS0+4,2)}, v{aO1}, s[{S_WS}:{S_WS+3}], s{sQS2} offen sc1')
    def fallback(self, k):
        sB, sXr, sOr = sT0, sHE, sQF
        mx, ninf, a0, a1, a2 = 8, 9, vM, vM + 1, vM + 2
        k.label('L_fallback')
        k('s_nop 7\ns_nop 7')
        k(f'v_mov_b32 v{ninf}, 0xff800000\nv_mov_b32 v{mx}, 0xff800000')
        for ps in range(2):
            k(f's_lshl2_add_u32 s{sB}, s{sAI}, s{sGW}\ns_sub_i32 s{sB}, 8, s{sB}\ns_max_i32 s{sB}, s{sB}, 0')
            k.label(f'L_fb{ps}')
            k(f's_lshl_b32 s{sT1}, s{sB}, 9\nv_add_u32 v{a0}, s{sT1}, v{aK0}\nv_add_u32 v{a1}, s{sT1}, v{aK1}\nv_add_u32 v{a2}, s{sT1}, v{aV}')
            self.rdK(0, 0, a0, a1)
            if ps: self.rdV(0, 0, a2)
            k(f's_cmp_eq_u32 s{sB}, 0\ns_cselect_b32 s{sXr}, -1, 0\ns_and_b32 s{sT1}, s{sB}, 7\ns_cselect_b32 s{sOr}, -1, 0\ns_waitcnt lgkmcnt(0)')
            self.qk(0, vS0)
            for r in range(16):
                k(self.dmask(r) + f'''
                s_xor_b32 s{sT2}, s{sT2}, s{sXr}
                s_xor_b32 s{sT3}, s{sT3}, s{sXr}
                s_or_b32 s{sT2}, s{sT2}, s{sOr}
                s_or_b32 s{sT3}, s{sT3}, s{sOr}
                v_cndmask_b32 v{vS0+r}, v{ninf}, v{vS0+r}, s[{sT2}:{sT3}]''')
            if ps == 0:
                for r in range(0, 16, 2): k(f'v_max3_f32 v{mx}, v{mx}, v{vS0+r}, v{vS0+r+1}')
            else:
                for r in range(16): k(f'v_sub_f32 v{vS0+r}, v{vS0+r}, v{mx}')
                for r in range(16): k(f'v_exp_f32 v{vS0+r}, v{vS0+r}')
                for r in range(0, 16, 2): k(f'v_cvt_pk_bf16_f32 v{vPP+r//2}, v{vS0+r}, v{vS0+r+1}')
                self.pv(0, 0, vPP); self.pv(0, 1, vPP)
            k.flush_hazards()
            k(f's_add_u32 s{sB}, s{sB}, 1\ns_cmp_le_u32 s{sB}, 8\ns_cbranch_scc1 L_fb{ps}')
            if ps == 0:
                k(f'v_mov_b32 v{a0}, v{mx}\nv_permlane32_swap_b32 v{mx}, v{a0}\nv_max_f32 v{mx}, v{mx}, v{a0}')
                for r in range(16): k(f'v_mov_b32 v{vO+r}, 0')
        k(f's_setpc_b64 s[{sT4}:{sT5}]')

    def ldW(self, q, kap, regs):
        k = self.k; J = []
        for T in range(5):
            def f(T=T):
                k(f's_add_u32 s{sT0}, s{sWB}, {kap*5120}')
                a, off = (aL16, T*1024) if T < 4 else (aL16b, 0)
                self.toks[('w', q)] = k(f'buffer_load_dwordx4 {vr(regs[T],4)}, v{a}, s[{S_WS}:{S_WS+3}], s{sT0} offen offset:{off} sc1')
            J.append(('w', regs[T], f))
        return J
    def ldA(self, q, kap, regs, mid=False):
        k = self.k; J = []
        for d in range(4):
            def f(d=d):
                so = sAM + d; off = kap * 1024
                if off > 3500:
                    k(f's_add_u32 s{sT0}, s{so}, {off & ~4095}'); so = sT0; off &= 4095
                if mid:
                    k(f'buffer_load_dwordx2 {vr(regs[d],2)}, v{aL8}, s[{S_WS}:{S_WS+3}], s{so} offen offset:{off} sc1')
                    self.toks[('a', q)] = k(f'buffer_load_dwordx2 {vr(regs[d]+2,2)}, v{aL8}, s[{S_WS}:{S_WS+3}], s{so} offen offset:{off+512} sc1')
                else:
                    self.toks[('a', q)] = k(f'buffer_load_dwordx4 {vr(regs[d],4)}, v{aL16}, s[{S_WS}:{S_WS+3}], s{so} offen offset:{off} sc1')
            J.append(('a', regs[d], f))
        return J
    def stage_w(self):
        k = self.k; J = []
        for q in range(4):
            for T in range(5):
                def f(q=q, T=T):
                    o = T * 1024
                    k(f's_add_u32 m0, s{sSTG}, {q*5120 + o}\ns_add_u32 s{sT0}, s{sWB}, {LATE[q]*5120 + o}')
                    k(f'buffer_load_dwordx4 v{aL16}, s[{S_WS}:{S_WS+3}], s{sT0} offen sc1 lds')
                J.append(f)
        return J
    def wo_round(self, a):
        k = self.k
        def f():
            k(f's_add_u32 m0, s{sAM+1}, {L_WO + a*4096}\ns_add_u32 s{sT0}, s{sAM+2}, {a*4096}')
            if a == 24:
                k(f's_cmp_eq_u32 s{sGW}, 3\ns_cselect_b32 s{sT1}, 1024, 0\ns_sub_u32 s{sT0}, s{sT0}, s{sT1}\ns_sub_u32 m0, m0, s{sT1}')
            self.t_wo = k(f'buffer_load_dwordx4 v{aL16}, s[{S_WS}:{S_WS+3}], s{sT0} offen sc1 lds')
        return f
    def g2_plan(self):
        self.toks = {}
        if self.S: self.pf = []
        else:
            self.W = [[112 + 20*(q&3) + 4*T for T in range(5)] if not 4 <= q < 8 else [12 + 4*T for T in range(5)] for q in range(12)]
            self.A = [[192 + 16*(q&3) + 4*m for m in range(4)] for q in range(12)]
            self.pf = sum((self.ldW(q, EARLY[q], self.W[q]) for q in range(4)), []) + sum((self.ldA(q, EARLY[q], self.A[q]) for q in range(4)), [])
    def lds_add(self, word, val, a=8):
        self.k(f'v_mov_b32 v9, {val}\ns_mov_b64 exec, 1\nds_add_u32 v{a}, v9 offset:{4*word}\ns_mov_b64 exec, -1')
    def kstep(self, wregs, aregs, first, q, lds=None):
        k = self.k
        q = [j[2] if isinstance(j, tuple) else j for j in q]
        for T in range(5):
            if lds: k.wait(lg=lds[0][T])
            for mt in range(4):
                acc = vACC + 4 * (5 * mt + T)
                k(f"v_mfma_f32_16x16x32_bf16 {vr(acc,4)}, {vr(wregs[T],4)}, {vr(aregs[mt],4)}, {'0' if first else vr(acc,4)}")
                if q and (mt % 2 == 1 or len(q) > 10): q.pop(0)()
                if lds and lds[1] is not None and mt == 0 and T > 0: lds[0][T-1] = lds[1](T - 1)
        while q: q.pop(0)()
        if lds and lds[1] is not None: lds[0][4] = lds[1](4)
    def red_write(self, base):
        k = self.k
        for d in range(1, 4):
            k(f'''s_add_u32 s{sT0}, s{sGW}, {d}
            s_and_b32 s{sT0}, s{sT0}, 3
            s_mul_i32 s{sT0}, s{sT0}, 15360
            s_add_u32 s{sT0}, s{sT0}, {base + (d-1)*5120}
            v_add_u32 v8, s{sT0}, v{aL16}''')
            for T in range(5): r = k(f'ds_write_b128 v8, {vr(vACC + 4*(5*d+T),4)} offset:{T*1024}')
        return r
    def red_read(self, base):
        k = self.k
        k(f's_mul_i32 s{sT0}, s{sGW}, 15360\ns_add_u32 s{sT0}, s{sT0}, {base}\nv_add_u32 v8, s{sT0}, v{aL16}')
        toks = []
        for T in range(5):
            for d in range(3): r = k(f'ds_read_b128 {vr(vACC + 20 + 4*(5*d+T),4)}, v8 offset:{d*5120 + T*1024}')
            toks.append(r)
        return toks
    def sum4(self, T):
        k = self.k
        for e in range(4):
            a = vACC + 4*T + e
            k(f'v_add_f32 v{a}, v{a}, v{a+20}\nv_add_f32 v{a+40}, v{a+40}, v{a+60}')
        for e in range(4):
            a = vACC + 4*T + e
            k(f'v_add_f32 v{a}, v{a}, v{a+40}')
    def lds_wait(self, word, thr, slp, a=8):
        k = self.k; self.uid += 1; u = self.uid
        k.label(f'L_lw{u}')
        k(f'ds_read_b32 v9, v{a} offset:{4*word}\ns_waitcnt lgkmcnt(0)\nv_readfirstlane_b32 s{sT0}, v9\ns_cmp_ge_u32 s{sT0}, {thr}\ns_cbranch_scc1 L_lwd{u}')
        if slp: k(f's_sleep {slp}')
        k(f's_branch L_lw{u}')
        k.label(f'L_lwd{u}')
        k.dlg = k.nlg

    def back_half(self):
        k = self.k; c = self.cfg; S = self.S
        toks = self.toks
        pf = [j[2] for j in self.pf]
        if S and c.bprio: k('s_setprio 1')
        J = self.job_gu(vA0, sHL, 0) + self.job_gu(vA0 + 16, sHL, 512)
        for n, j in enumerate(J):
            j()
            if c.epf and n % c.epf == c.epf - 1 and pf: pf.pop(0)()
        self.t_hl = self.t_store
        k.wait(vm=self.t_kv, lg='all')
        k('s_barrier')
        self.stamp()
        if S:
            pf = self.stage_w() + [self.wo_round(0), self.wo_round(23), self.wo_round(24)]
            self.attention(pf)
            self.stamp()
            self.setB()
        else:
            st = {}
            def hook():
                k(f"""v_lshrrev_b32 v10, 4, v{vL}
                v_lshlrev_b32 v10, 13, v10
                s_lshr_b32 s{sT0}, s{sPL2}, 3
                s_lshl1_add_u32 s{sT0}, s{sGW}, s{sT0}
                s_and_b32 s{sT1}, s{sPL2}, 7
                s_lshl3_add_u32 s{sT0}, s{sT1}, s{sT0}
                s_lshl_b32 s{sPL2}, s{sT0}, 7
                v_add_u32 v1, s{sSTG}, v{aL16}""")
                if c.hp < 0: self.t_hp = k(f'buffer_load_dword v11, v10, s[{S_WS}:{S_WS+3}], s{sPL2} offen sc1')
            self.attention(pf, hook)
            self.stamp()
            self.setA()

    def setA(self):
        k = self.k; c = self.cfg
        W, A, toks = self.W, self.A, self.toks
        KAP = EARLY + LATE
        k(f'v_mov_b32 v8, {L_CNT}')
        def bo():
            k.wait(vm=self.t_o)
            self.lds_add(5, 1)
        pend = []
        for q in range(5):
            self.stamp('g2')
            if q == c.bo_at: bo()
            if q == c.hp: self.t_hp = k(f'buffer_load_dword v11, v10, s[{S_WS}:{S_WS+3}], s{sPL2} offen sc1')
            if q == c.hc: self.poll_check(self.t_hp, 11, 10, S_WS, f's{sPL2}', 4, role=False, slp=c.slp)
            J = []
            if q >= 1:
                pend += self.ldA(q + 3, KAP[q + 3], A[q + 3])
                if q >= c.hc: J += pend; pend = []
                J += self.ldW(q + 7, KAP[q + 7], W[q + 7])
            if q < 4:
                k.wait(vm=toks[('a', q)])
                self.kstep(W[q], A[q], q == 0, J)
            else:
                self.lds_wait(5, 8, 1)
                rd = lambda q: (lambda T: k(f'ds_read_b128 {vr(12+4*T,4)}, v1 offset:{(q-4)*5120 + T*1024}'))
                lt = [rd(4)(T) for T in range(5)]
                carry = J
        self.stamp()
        for q in range(4, 11):
            nx = q + 3
            J = carry if q == 4 else (self.ldA(nx, KAP[nx], A[nx]) if nx < 12 else [])
            if ('a', q) not in toks:
                for f in J: f[2]()
                J = []
            k.wait(vm=max(toks[('a', q)].n, toks[('w', q)].n if q >= 8 else 0))
            self.kstep(W[q], A[q], False, J, lds=(lt, rd(q + 1) if q < 7 else None) if q < 8 else None)
            if q == 7: self.lds_add(1, 0x100)
            if q in (4, 5, 7, 9, 10): self.stamp('g2')
        for d in range(1, 4):
            k(f's_add_u32 s{sT0}, s{sGW}, {d}\ns_and_b32 s{sT0}, s{sT0}, 3\ns_mul_i32 s{sT0}, s{sT0}, 15360\ns_add_u32 s{sT0}, s{sT0}, {L_RF + (d-1)*5120}\nv_add_u32 v{11+d}, s{sT0}, v{aL16}')
        self.lds_wait(1, 0x400, 1)
        k.wait(vm=max(toks[('a', 11)].n, toks[('w', 11)].n))
        wq = []
        for d in (1, 2, 3, 0):
            for T in range(5):
                acc = vACC + 4 * (5 * d + T)
                k(f'v_mfma_f32_16x16x32_bf16 {vr(acc,4)}, {vr(W[11][T],4)}, {vr(A[11][d],4)}, {vr(acc,4)}')
                if d: wq.append(f'ds_write_b128 v{11+d}, {vr(acc,4)} offset:{T*1024}')
                if len(wq) > 5 or (d == 0 and wq): k(wq.pop(0))
        assert not wq
        self.stamp()
        self.stamp('g2')
        self.lds_add(0, 1)
        k(f's_mul_i32 s{sT1}, s{sGW}, 15360\ns_add_u32 s{sT1}, s{sT1}, {L_RF}\nv_add_u32 v10, s{sT1}, v{aL16}')
        self.lds_wait(0, 4, 0)
        tr = []
        for T in range(5):
            for d in range(3): r = k(f'ds_read_b128 {vr(vACC + 20 + 4*(5*d+T),4)}, v10 offset:{d*5120 + T*1024}')
            tr.append(r)
        for T in range(5):
            k.wait(lg=tr[T]); self.sum4(T)
            a = vACC + 4*T; b = a + 20
            for e in range(4): k(f'v_mul_f32 v{b+e}, {hex(f2u(-LOG2E))}, v{a+e}')
            for e in range(4): k(f'v_exp_f32 v{b+e}, v{b+e}')
            for e in range(4): k(f'v_add_f32 v{b+e}, 1.0, v{b+e}')
            for e in range(4): k(f'v_rcp_f32 v{b+e}, v{b+e}')
            for e in range(4): k(f'v_mul_f32 v{a+e}, v{a+e}, v{b+e}')
            k(f'ds_write_b128 v10, {vr(a,4)} offset:{T*1024}')
        k.wait(lg='all')
        self.stamp('g2')
        k('s_barrier')
        self.stamp(); self.stamp('tl')
        if 'tl' in c.grps: k('s_waitcnt lgkmcnt(0)')

    def setB(self):
        k = self.k; c = self.cfg
        OF = [112 + 4*q for q in range(20)]
        slot = [192 + 4*j for j in range(16)] + [52 + 4*j for j in range(14)]; NS = 30
        F99 = 108; XU = 12; XR = 192
        self.stamp('g2')
        k(f"""v_lshlrev_b32 v{aL8}, 3, v{vL}
        v_lshrrev_b32 v10, 3, v{vL}
        v_bfe_u32 v11, v{vL}, 2, 1
        v_lshl_add_u32 v10, v11, 7, v10
        s_lshl_b32 s{sT0}, s{sPL2}, 3
        v_add_lshl_u32 v10, v10, s{sT0}, 7""")
        k(f"""v_lshrrev_b32 v8, 2, v{vL}
        v_mul_u32_u24 v8, 1280, v8
        v_and_b32 v9, 3, v{vL}
        v_lshl_add_u32 v1, v9, 4, v8
        v_lshl_add_u32 v2, v9, 3, v8
        s_lshl2_add_u32 s{sT0}, s{sR2}, s{sGW}
        s_mul_i32 s{sT0}, s{sT0}, {16*1280}
        s_mul_i32 s{sT1}, s{sC2}, 160
        s_add_u32 s{sT0}, s{sT0}, s{sT1}
        s_bitcmp1_b32 s{sC2}, 0
        s_cselect_b32 s{sT1}, 32, 0
        s_cselect_b32 s{sT2}, 0, 128
        s_add_u32 s{sQS1}, s{sT0}, s{sT1}
        s_add_u32 s{sQS2}, s{sT0}, s{sT2}
        s_add_u32 s{sT0}, s{sCD}, {99*1024}""")
        k(f'buffer_load_dwordx4 {vr(XR,4)}, v1, s[{S_X}:{S_X+3}], s{sQS1} offen')
        k(f'buffer_load_dwordx4 {vr(XR+4,4)}, v1, s[{S_X}:{S_X+3}], s{sQS1} offen offset:64')
        k(f'buffer_load_dwordx2 {vr(XR+8,2)}, v2, s[{S_X}:{S_X+3}], s{sQS2} offen')
        tx = k(f'buffer_load_dwordx4 {vr(F99,4)}, v{aL16}, s[{S_WS}:{S_WS+3}], s{sT0} offen sc1')
        k.wait(vm=self.t_o)
        self.stamp('g2')
        k(f'v_mov_b32 v8, {L_CNT}')
        self.lds_add(5, 1)
        self.lds_wait(5, 8, 1)
        self.flag_store(5, 4)
        self.stamp('g2')
        if c.bprio != c.bprio2: k(f's_setprio {c.bprio2}')
        k(f'v_add_u32 v4, {L_WO}, v{aL16}\nv_add_u32 v5, {L_WO + 65536}, v{aL16}')
        for a in range(1, 23):
            if a == c.bp3: k('s_setprio 1')
            if a == 8: self.stamp('g2')
            if a == c.xp:
                k.wait(vm=tx)
                k(f'v_and_b32 v9, 15, v{vL}\nv_lshrrev_b32 v7, 4, v{vL}\nv_lshl_add_u32 v9, v9, 2, v7\nv_lshlrev_b32 v9, 2, v9')
                for e in range(10): r = k(f'ds_bpermute_b32 v{XR+12+e}, v9, v{XR+e}')
                k(f'v_and_b32 v7, 3, v{vL}\nv_lshlrev_b32 v7, 6, v7\nv_and_or_b32 v7, v{vL}, 60, v7')
            if a == c.xp + 1:
                k.wait(lg=r)
                for e in range(10):
                    k(f'v_lshlrev_b32 v{XU+2*e}, 16, v{XR+12+e}\nv_and_b32 v{XU+2*e+1}, 0xffff0000, v{XR+12+e}')
            if a == 17:
                self.stamp('g2')
                t16 = self.t_wo
                self.lds_wait(1, 0x400, 2)
                self.stamp('g2')
            if a == c.op: tp = k(f'buffer_load_dword v11, v10, s[{S_WS}:{S_WS+3}], 0 offen sc1')
            self.wo_round(a)()
        self.stamp('g2')
        self.poll_check(tp, 11, 10, S_WS, '0', 5, role=False, slp=c.slp)
        self.stamp()
        self.stamp('g2')
        ot = []
        def old(q):
            so = sAM + 3
            if q % 4 == 0: k(f's_add_u32 s{so}, s{sAM}, {q*1024}')
            off = (q & 3) * 1024
            if q % 5 == 4:
                k(f'buffer_load_dwordx2 {vr(OF[q],2)}, v{aL8}, s[{S_WS}:{S_WS+3}], s{so} offen offset:{off} sc1')
                ot.append(k(f'buffer_load_dwordx2 {vr(OF[q]+2,2)}, v{aL8}, s[{S_WS}:{S_WS+3}], s{so} offen offset:{off+512} sc1'))
            else:
                ot.append(k(f'buffer_load_dwordx4 {vr(OF[q],4)}, v{aL16}, s[{S_WS}:{S_WS+3}], s{so} offen offset:{off} sc1'))
        lt = {}
        def rd(j): lt[j] = k(f'ds_read_b128 {vr(slot[j % NS],4)}, v{4 + (j >> 6)} offset:{(j & 63)*1024}')
        nr = 0
        for q in range(c.oa):
            if q == c.rv:
                k.wait(vm=t16)
                self.lds_add(2, 1)
            if q == c.rv + 2: self.lds_wait(2, 4, 1)
            old(q)
            while q >= c.rv + 2 and nr < NS * (q - c.rv - 1) // (c.oa - c.rv - 2): rd(nr); nr += 1
        assert nr == NS
        if c.bp4 is not None: k(f's_setprio {c.bp4}')
        k.wait(vm=self.t_wo)
        self.lds_add(3, 1)
        for j in range(100):
            q, T = divmod(j, 5)
            if j in (0, 50, 99): self.stamp('g2')
            if j + NS - 1 == 68: self.lds_wait(3, 4, 0)
            if j >= 1 and j + NS - 1 < 99: rd(j + NS - 1)
            k.wait(vm=ot[q], lg=lt[min(j + 4, 98)] if T == 0 else None)
            acc = vACC + 4 * T
            k(f"v_mfma_f32_16x16x32_bf16 {vr(acc,4)}, {vr(slot[j % NS] if j < 99 else F99,4)}, {vr(OF[q],4)}, {'0' if q == 0 else vr(acc,4)}")
            if T == 4 and len(ot) < 20: old(len(ot))
        self.stamp()
        k(f's_mul_i32 s{sT1}, s{sGW}, 15360\ns_add_u32 s{sT1}, s{sT1}, {L_RF}\nv_add_u32 v9, s{sT1}, v{aL16}')
        k('s_barrier')
        self.stamp()
        self.stamp('g2'); self.stamp('tl')
        GR = OF[0]
        tr = [k(f'ds_read_b128 {vr(GR+4*T,4)}, v9 offset:{T*1024}') for T in range(5)]
        tb = []
        for T in range(5):
            k.wait(lg=tr[T])
            for e in range(4): k(f'v_fmac_f32 v{XU+4*T+e}, v{vACC+4*T+e}, v{GR+4*T+e}')
            for e in range(2): k(f'v_cvt_pk_bf16_f32 v{XR+12+2*T+e}, v{XU+4*T+2*e}, v{XU+4*T+2*e+1}')
            for e in range(2): r = k(f'ds_bpermute_b32 v{XR+2*T+e}, v7, v{XR+12+2*T+e}')
            tb.append(r)
        k.wait(lg=tb[1]); k(f'buffer_store_dwordx4 {vr(XR,4)}, v1, s[{S_OUT}:{S_OUT+3}], s{sQS1} offen {c.outf}')
        k.wait(lg=tb[3]); k(f'buffer_store_dwordx4 {vr(XR+4,4)}, v1, s[{S_OUT}:{S_OUT+3}], s{sQS1} offen offset:64 {c.outf}')
        k.wait(lg=tb[4]); k(f'buffer_store_dwordx2 {vr(XR+8,2)}, v2, s[{S_OUT}:{S_OUT+3}], s{sQS2} offen {c.outf}')

    def finish(self):
        k = self.k; c = self.cfg
        if c.stamps:
            self.stamp('tl')
            if 'tl' in c.grps: k('s_waitcnt lgkmcnt(0)')
            k('s_waitcnt vmcnt(0)')
            self.stamp('fin')
            k(f's_waitcnt lgkmcnt(0)\ns_mov_b32 s{sST0 + self.nst - 1}, s{sSTT}')
            k(f's_lshl3_add_u32 s{sT0}, s2, s{sW}\ns_lshl_b32 s{sT0}, s{sT0}, 6\ns_add_u32 s{sT0}, s{sT0}, {STAMP}\nv_mov_b32 v1, 0\ns_mov_b64 exec, 1')
            for n in range(self.nst):
                k(f'v_mov_b32 v2, s{sST0+n}\nbuffer_store_dword v2, v1, s[{S_WS}:{S_WS+3}], s{sT0} offen offset:{4*n}')
        k('s_endpgm')

    def build(self):
        k = self.k
        self.prologue()
        pre = k.snap(); nst = self.nst
        st = []
        for S in (0, 1):
            self.S = S; k.restore(pre); self.nst = nst; self.stok = {}
            if S: k.label('L_setB')
            self.prologue2()
            (self.phase0B if S else self.phase0A)()
            k.flush_hazards()
            if not S: k('s_branch L_mainA')
            st.append((k.snap(), self.nst, self.stok, self.t_a))
        for S in (1, 0):
            self.S = S
            snap, self.nst, self.stok, self.t_a = st[S]; k.restore(snap)
            if not S: k.label('L_mainA')
            self.gemm1()
            self.back_half()
            self.finish()
        self.tail.append(self.fallback)
        for t in self.tail:
            k.win = []
            t(k)
        k.label('L_end')
        k('s_endpgm')
        return self.wrap()

    def wrap(self):
        hdr = ''.join(open('recurrent_scan__sliding_block__swiglu_ffn__prompt.s.ref').readlines()[:11]) if self.cfg.header else ''
        return f'''{hdr}; @launch grid=(256,1,1) block=(512,1,1) lds={LDS_BYTES}
.amdgcn_target "amdgcn-amd-amdhsa--gfx950"
.text
.globl {KN}
.p2align 8
.type {KN},@function
{KN}:
{self.k.text()}.section .rodata,"a"
.p2align 6
.amdhsa_kernel {KN}
  .amdhsa_next_free_vgpr 256
  .amdhsa_next_free_sgpr 102
  .amdhsa_accum_offset 256
  .amdhsa_group_segment_fixed_size 0
  .amdhsa_kernarg_size 80
  .amdhsa_user_sgpr_count 2
  .amdhsa_user_sgpr_kernarg_segment_ptr 1
  .amdhsa_system_sgpr_workgroup_id_x 1
.end_amdhsa_kernel
'''
Cfg.clrwg = 0xc6; Cfg.rrA = (0, 2, 4, 6); Cfg.rrB = (1, 3, 5, 7); Cfg.rot = None; Cfg.xp = 3; Cfg.rv = 2; Cfg.bp4 = 1; Cfg.bp3 = 99; Cfg.bh_chk = 5; Cfg.touch = 0; Cfg.tstep = 1; Cfg.bnp = 30; Cfg.op = 12; Cfg.oa = 14; Cfg.bprio2 = 0; Cfg.blast = 1; Cfg.hp = -1; Cfg.hc = 1; Cfg.alast = 0; Cfg.nslot = 4; Cfg.dp1 = 3; Cfg.dp2 = 3; Cfg.dpx = 8; Cfg.bprio = 1; Cfg.w0early = 1; Cfg.dm1 = 0; Cfg.dm2 = 0; Cfg.skip = ''; Cfg.bh_skew = 0; Cfg.bdefer = 10; Cfg.ogate = 0; Cfg.outf = ''

def make(**kw):
    c = Cfg()
    for a, b in kw.items():
        assert hasattr(c, a), a
        setattr(c, a, b)
    g = Gen(c)
    return g.build(), g

if __name__ == '__main__':
    s, g = make(stamps=True)
    open('k.s', 'w').write(s)
    print(g.k.count, 'nops', g.k.nops)
```

```python
import sys, math, struct
from emit import *

KN = 'recurrent_scan__sliding_block__swiglu_ffn__prompt_kernel'

FL   = 0x0
STATS= 0x10000
WEXT = 0x20000
STAMP= 0x60000
QKV  = 0x100000
HIM  = 0x900000
OIM  = 0x1000000
W2P  = 0x1400000
WS_BYTES = 0x1800000
OOB  = 0x7f000000

L_RING = 0
L_X    = 65536
CH     = 6208
L_KV   = 65536
L_ONES = L_KV + 10 * CH + 64
L_EXT  = 65536 + 68608
L_PACK = L_EXT + 10240
LDS_BYTES = 163840
L_CNT = 162816; L_RF = 0; L_WO = 61440
assert L_EXT == L_WO + 71 * 1024
assert 10 * CH + 64 + 6400 <= 68608 and LDS_BYTES <= 163840

S_X, S_Q, S_G, S_U, S_WS, S_DBG, S_WD, S_WO, S_OUT, S_TMP = 4, 8, 12, 16, 20, 24, 28, 32, 36, 40
S_U0, S_U1 = 36, 64
sI, sG, sW, sGW, sXO, sWO_, sM0X, sM0W = 44, 45, 46, 47, 48, 49, 50, 51
sFLAG, sPOLL, sQF, sHE, sHL, sQS1, sQS2 = 52, 53, 54, 55, 56, 57, 3
sT0, sT1, sT2, sT3, sT4, sT5 = 58, 59, 60, 61, 62, 63
sPKS, sPKL, sPKD0, sPKD1, sPKD2 = 51, 24, 25, 26, 27
sAI, sAJ, sR2, sC2, sCNT = 69, 70, 71, 72, 73
sCO, sCD, sC2O, sC3O = 74, 75, 76, 77
sWB, sPL2, sKVS, sKVM, sSTG = 78, 79, 81, 82, 83
sSTR, sADV, sC1, sSLOT, sRL = 68, 84, 85, 53, 82
sAM = 40
sSTT = 86; sST0 = 88

vL = 0
vWR0, vWR1, vWR2 = 1, 2, 3
vDA, vDB = 4, 5
aL16, aL16b = 6, 7
vEX, vP = 8, 9
vST = 10
vMEAN = 12
vRS, vC1, vHO, vQO = 16, 17, 18, 19
vSW = 28
vT = 20
vFR = 32
vA0 = 48
vA1 = 80
vX = 96
vSEL = vA1 + 8; vCSA = vA1 + 12; vCSO = vA1 + 7; vCSG = vA1 + 6; vCSB = vX + 120
aK0, aK1, aV, aO0, aO1, aL8 = 86, 87, 3, 4, 5, 3
vQ = 80; vM = 88; vS0 = 48; vS1 = 64; vS2 = 192; vO = 96; vPP = 32
vKB = ((20, 24), (28, 26)); vVB = (40, 12)
vACC = 32
EARLY = (0, 1, 2, 3); LATE = (4, 5, 6, 7, 8, 9, 10, 11)

LOG2E = 1.4426950408889634
def f2u(x): return struct.unpack('<I', struct.pack('<f', x))[0]

class Cfg:
    header = False
    stamps = False; clock = 's_memtime'; grps = ['main', 'fin']
    spin = 4000
    g2map = 1
    fa = 3; pa = 6
    cb = 1; cbd = 2
    pk = 4; pkd = 2
    c2 = 7
    fb = 11; pb = 14
    fq = 18; pq = 21
    w0early = 0
    hoist_hi = 22
    hoist = 2
    kvn = 5
    bh_at = 3
    epf = 12
    bo_at = 2
    slp = 8; slp0 = 16
    prio = 3

class Gen:
    def __init__(self, cfg):
        self.cfg = cfg; self.k = K(); self.tail = []; self.nst = 0; self.uid = 0

    def jitter(self):
        k = self.k; self.uid += 1; u = self.uid
        seed, mask, thr = self.cfg.jit
        h = (seed * 2654435761 + u * 40503) & 0x7fffffff | 1
        k(f'''s_lshl3_add_u32 s100, s2, s{sW}
        s_add_u32 s100, s100, {u}
        s_mul_i32 s100, s100, {h}
        s_lshr_b32 s101, s100, 13
        s_xor_b32 s100, s100, s101
        s_mul_i32 s100, s100, 0x2c1b3c6d
        s_lshr_b32 s101, s100, 24
        s_cmp_ge_u32 s101, {thr}
        s_cbranch_scc1 L_jd{u}
        s_bfe_u32 s100, s100, 0x80008
        s_and_b32 s100, s100, {mask}''')
        k.label(f'L_jl{u}')
        k(f's_sleep 1\ns_sub_u32 s100, s100, 1\ns_cbranch_scc0 L_jl{u}')
        k.label(f'L_jd{u}')
    def stamp(self, grp='main'):
        if self.cfg.jit and grp in ('p0', 'p1', 'p3', 'at', 'g2', 'jj'): self.jitter()
        if not self.cfg.stamps or grp not in self.cfg.grps: return
        k = self.k
        if self.nst > 0: k(f's_mov_b32 s{sST0 + self.nst - 1}, s{sSTT}')
        k(f'{self.cfg.clock} s[{sSTT}:{sSTT+1}]')
        self.nst += 1
        assert self.nst <= 14
    def poll_check(self, tok, vd, voff, srd, soff, thr, role=True, wide=False, slp=6):
        k = self.k; self.uid += 1; u = self.uid
        if 'n' in self.cfg.skip: return
        if role:
            k(f's_cmp_lg_u32 s{sGW}, 0\ns_cbranch_scc1 L_pok{u}\ns_waitcnt vmcnt({k.nvm - tok})')
        else: k.wait(vm=tok)
        mn = f'v_min3_u32 v{vd}, v{vd}, v{vd+1}, v{vd+2}\nv_min_u32 v{vd}, v{vd}, v{vd+3}\n' if wide else ''
        ld = f'buffer_load_dwordx4 v[{vd}:{vd+3}]' if wide else f'buffer_load_dword v{vd}'
        k(f'{mn}v_cmp_le_u32 vcc, {thr}, v{vd}\ns_cmp_eq_u64 vcc, -1\ns_cbranch_scc0 L_pslow{u}')
        k.label(f'L_pok{u}')
        def slow(k):
            k.label(f'L_pslow{u}')
            k(f's_mov_b32 s{sCNT}, 0')
            k.label(f'L_ploop{u}')
            if self.cfg.stamps: k(f's_add_u32 s101, s101, {1 << (5 * (thr if srd == S_WS else 0))}')
            k(f's_sleep {slp}\n{ld}, v{voff}, s[{srd}:{srd+3}], {soff} offen sc1\ns_waitcnt vmcnt(0)')
            k(f'{mn}v_cmp_le_u32 vcc, {thr}, v{vd}\ns_cmp_eq_u64 vcc, -1\ns_cbranch_scc1 L_pok{u}')
            k(f's_add_u32 s{sCNT}, s{sCNT}, 1\ns_cmp_lt_u32 s{sCNT}, {self.cfg.spin}\ns_cbranch_scc1 L_ploop{u}\ns_branch L_pok{u}')
        self.tail.append(slow)
    def flag_store(self, val, t=vT+10, test=None, srd=S_WS):
        k = self.k; self.uid += 1; u = self.uid
        k(test or f's_cmp_lg_u32 s{sGW}, 0')
        k(f's_cbranch_scc1 L_nf{u}\nv_mov_b32 v{t}, {val}\nv_mov_b32 v{t+1}, 0\ns_mov_b64 exec, 1')
        k(f"buffer_store_dword v{t}, v{t+1}, s[{srd}:{srd+3}], {f's{sT3}' if srd == S_DBG else f's{sFLAG}'} offen sc1")
        k.nvm -= 1
        k('s_mov_b64 exec, -1')
        k.label(f'L_nf{u}')

    def prologue(self):
        k = self.k; c = self.cfg
        k('s_cmp_ge_u32 s2, 256\ns_cbranch_scc1 L_end')
        k(f"""s_load_dwordx2 s[{S_X}:{S_X+1}], s[0:1], 0
        s_bitcmp1_b32 s2, {7 if self.cfg.g1map else 6}
        s_cselect_b32 s{sT0}, 8, 32
        s_cselect_b32 s{sT1}, 8, 40
        s_load_dwordx2 s[{S_U0}:{S_U0+1}], s[0:1], s{sT0}
        s_load_dwordx2 s[{S_U1}:{S_U1+1}], s[0:1], s{sT1}
        s_load_dwordx2 s[{S_Q}:{S_Q+1}], s[0:1], 8
        s_load_dwordx2 s[{S_WS}:{S_WS+1}], s[0:1], 72
        s_load_dwordx2 s[{S_DBG}:{S_DBG+1}], s[0:1], 64""")
        if c.stamps: k(f'{c.clock} s[{sSTT}:{sSTT+1}]\ns_mov_b32 s101, 0'); self.nst = 1
        k(f'v_lshrrev_b32 v1, 6, v0\nv_and_b32 v{vL}, 63, v0\nv_readfirstlane_b32 s{sW}, v1')
        self.prologue2(); self.prologue3()
        k(f's_cmp_lt_u32 s{sW}, 4\ns_cbranch_scc1 L_setA')

    def prologue2(self):
        k = self.k; t = vT
        if self.cfg.g1map:
            k(f"""s_bfe_u32 s{sI}, s2, 0x40003
            s_and_b32 s{sT1}, s2, 7
            s_lshr_b32 s{sT0}, s2, 7
            s_lshl1_add_u32 s{sG}, s{sT1}, s{sT0}
            s_lshl_b32 s{sT2}, s2, 7
            s_bfe_u32 s{sT1}, s2, 0x20001""")
        else:
            k(f"""s_and_b32 s{sI}, s2, 1
            s_bfe_u32 s{sT0}, s2, 0x30003
            s_lshl3_add_u32 s{sI}, s{sI}, s{sT0}
            s_bfe_u32 s{sT1}, s2, 0x20001
            s_lshr_b32 s{sT0}, s2, 6
            s_lshl2_add_u32 s{sG}, s{sT1}, s{sT0}""")
        k(f"""s_and_b32 s{sGW}, s{sW}, 3
        s_mov_b32 s{S_X+2}, {2048*1280}
        s_mov_b32 s{S_X+3}, 0x20000
        s_mul_i32 s{sC3O}, s{sT1}, 768
        s_and_b32 s{sT2}, s{sT2 if self.cfg.g1map else 2}, 128
        s_add_u32 s{sT2}, s{sT2}, s{sC3O}
        s_and_b32 s{sT3}, s{sG}, 14
        s_lshl_b32 s{sT3}, s{sT3}, 7
        s_movk_i32 s{sT4}, 3072
        s_bitcmp1_b32 s2, {7 if self.cfg.g1map else 6}
        s_cselect_b32 s{sC1}, s{sT3}, s{sT2}
        s_cselect_b32 s{sSTR}, 3840, s{sT4}
        s_cselect_b32 s{sT5}, 0xa0, 32
        s_mul_i32 s{S_U0+2}, s{sSTR}, 640
        s_mov_b32 s{S_U0+3}, 0x20000
        s_mov_b32 s{S_U1+2}, s{S_U0+2}
        s_mov_b32 s{S_U1+3}, 0x20000""")
        k(f"""v_lshrrev_b32 v{t}, 3, v{vL}
        v_and_b32 v{t+1}, 7, v{vL}
        v_lshlrev_b32 v{t+1}, 4, v{t+1}""")
    def prologue3(self):
        k = self.k; t = vT
        k(f"""s_lshl_b32 s{sM0X}, s{sW}, 11
        s_lshl3_add_u32 s{sXO}, s{sI}, s{sW}
        s_mul_i32 s{sXO}, s{sXO}, {16*1280}
        v_and_b32 v{t+3}, 48, v{vL}
        v_xor_b32 v{t+3}, v{t+1}, v{t+3}
        v_mul_u32_u24 v{vA1+4}, 1280, v{t}
        v_add_u32 v{vA1+4}, v{vA1+4}, v{t+3}
        v_xor_b32 v{vA1+5}, 64, v{vA1+4}
        v_add_u32 v{vA1+5}, {10240-1024}, v{vA1+5}""")
        if self.cfg.rot:
            a, b, m = self.cfg.rot
            k(f's_and_b32 s{sCNT}, s{sI}, 7\ns_mul_i32 s{sM0W}, s{sCNT}, {a}\ns_and_b32 s{sCNT}, s{sG}, 3\ns_mul_i32 s{sCNT}, s{sCNT}, {b}\ns_add_u32 s{sM0W}, s{sM0W}, s{sCNT}')
            k(f's_mul_i32 s{sCNT}, s{sM0W}, {-(-65536 // m)}\ns_lshr_b32 s{sCNT}, s{sCNT}, 16\ns_mul_i32 s{sCNT}, s{sCNT}, {m}\ns_sub_u32 s{sM0W}, s{sM0W}, s{sCNT}')
            if m == 5: k(f's_lshl_b32 s{sM0W}, s{sM0W}, 1')
            k(f's_lshl_b32 s{sCNT}, s{sM0W}, 7\ns_add_u32 s{sXO}, s{sXO}, s{sCNT}')
    def prologue4(self):
        k = self.k; t = vT
        k(f"""s_mul_i32 s{sWO_}, s{sW}, s{sSTR}
        s_lshl3_add_u32 s{sWO_}, s{sWO_}, s{sC1}
        s_lshl_b32 s{sADV}, s{sSTR}, 6
        v_and_b32 v{t+2}, 16, v{vL}
        v_lshlrev_b32 v{t+2}, 2, v{t+2}
        v_xor_b32 v{vSW}, v{t+1}, v{t+2}
        v_mad_u32_u24 v{vDA}, v{t}, s{sSTR}, v{vSW}
        v_xor_b32 v{vDB}, s{sT5}, v{vDA}""")
        if self.cfg.rot: k(f's_mul_i32 s{sCNT}, s{sM0W}, s{sADV}\ns_add_u32 s{sWO_}, s{sWO_}, s{sCNT}')

    def late_srds(self):
        k = self.k
        L = ((S_Q, 8, 640*3840), (S_G, 32, 640*3072), (S_U, 40, 640*3072)) + (((S_WD, 48, 1536*1280), (S_WO, 16, 640*1280)) if self.S else ())
        for d, off, size in L[1:]: k(f's_load_dwordx2 s[{d}:{d+1}], s[0:1], {off}')
        if self.S: k(f's_load_dwordx2 s[{S_TMP}:{S_TMP+1}], s[0:1], 56')
        for d, off, size in L: k(f's_mov_b32 s{d+2}, {size}\ns_mov_b32 s{d+3}, 0x20000')
        k(f's_cmp_lt_u32 s{sG}, 14\ns_cselect_b32 s{S_Q+2}, s{S_Q+2}, 0')

    def dma_stage(self, n):
        k = self.k; slot = (n & 3) * 16384
        steps = []
        if n < 10:
            def x():
                k(f's_add_u32 m0, s{sM0X}, {L_X + slot}')
                k(f'buffer_load_dwordx4 v{vA1+4}, s[{S_X}:{S_X+3}], s{sXO} offen lds')
                k(f'buffer_load_dwordx4 v{vA1+5}, s[{S_X}:{S_X+3}], s{sXO} offen offset:1024 lds')
                k(f's_add_u32 s{sXO}, s{sXO}, 128')
                if self.cfg.rot: k(f's_cmp_eq_u32 s{sM0W}, {9 - n}\ns_cselect_b32 s{sCNT}, 1280, 0\ns_sub_u32 s{sXO}, s{sXO}, s{sCNT}')
            steps.append(x)
        def w():
            if n == 10:
                k(f"""v_lshrrev_b32 v{vDA}, 3, v{vL}
                v_mul_u32_u24 v{vDA}, 3840, v{vDA}
                v_add_u32 v{vDA}, v{vDA}, v{vSW}
                v_add_u32 v{vDB}, {8*3840 - 1024}, v{vDA}
                s_mul_i32 s{sWO_}, s{sW}, {16*3840}
                s_add_u32 s{sWO_}, s{sWO_}, s{sC2O}""")
            if n == 15:
                k(f"""v_lshrrev_b32 v{vDA}, 3, v{vL}
                v_mul_u32_u24 v{vDA}, 3072, v{vDA}
                v_add_u32 v{vDA}, v{vDA}, v{vSW}
                v_xor_b32 v{vDB}, 32, v{vDA}
                s_mul_i32 s{sWO_}, s{sW}, {8*3072}
                s_add_u32 s{sWO_}, s{sWO_}, s{sC3O}""")
            k(f's_add_u32 m0, s{sM0X}, {L_RING + slot}')
            if 10 <= n < 15:
                k(f'buffer_load_dwordx4 v{vDA}, s[{S_Q}:{S_Q+3}], s{sWO_} offen lds')
                self.stok[n] = k(f'buffer_load_dwordx4 v{vDB}, s[{S_Q}:{S_Q+3}], s{sWO_} offen offset:1024 lds')
                k(f's_add_u32 s{sWO_}, s{sWO_}, {128*3840}')
            else:
                s0, s1, adv = (S_U0, S_U1, f's{sADV}') if n < 10 else (S_G, S_U, 64*3072)
                k(f'buffer_load_dwordx4 v{vDA}, s[{s0}:{s0+3}], s{sWO_} offen lds')
                k(f's_add_u32 m0, s{sM0X}, {L_RING + slot + 1024}')
                self.stok[n] = k(f'buffer_load_dwordx4 v{vDB}, s[{s1}:{s1+3}], s{sWO_} offen lds')
                k(f's_add_u32 s{sWO_}, s{sWO_}, {adv}')
                if self.cfg.rot and n < 10: k(f's_cmp_eq_u32 s{sM0W}, {9 - n}\ns_cselect_b32 s{sCNT}, s{S_U0+2}, 0\ns_sub_u32 s{sWO_}, s{sWO_}, s{sCNT}')
        steps.append(w)
        return steps

    def cs_sel(self):
        k = self.k; sel = vSEL; t = vT + 10
        k(f"""v_and_b32 v{t}, 1, v{vL}
        v_lshlrev_b32 v{t}, 4, v{t}
        s_movk_i32 s{sT3}, 0x3f80
        v_lshlrev_b32 v{t}, v{t}, s{sT3}""")
        for d in range(4):
            m = hex((3 << (2*d)) * 0x10001)
            k(f's_mov_b32 vcc_lo, {m}\ns_mov_b32 vcc_hi, {m}\nv_cndmask_b32 v{sel+d}, 0, v{t}, vcc')
        k(f"""v_and_b32 v{vCSO}, 7, v{vL}
        v_lshlrev_b32 v{vCSO}, 4, v{vCSO}
        v_bfe_u32 v{t}, v{vL}, 4, 1
        v_lshl_add_u32 v{vCSO}, v{t}, 3, v{vCSO}
        v_and_b32 v{t}, 8, v{vL}
        v_lshl_add_u32 v{vCSO}, v{t}, 4, v{vCSO}
        v_and_b32 v{t}, 32, v{vL}
        v_lshl_add_u32 v{vCSO}, v{t}, 24, v{vCSO}""")
    def cs_run(self, buf, acc):
        k = self.k; h = buf
        for j in range(10):
            k(f"v_mfma_f32_16x16x32_bf16 {vr(acc,4)}, {vr(vSEL,4)}, {vr(buf+4*j,4)}, {'0' if j == 0 else vr(acc,4)}")
        for e in range(4): k(f'v_add_f32_dpp v{h+4+e}, v{acc+e}, v{acc+e} row_ror:8 row_mask:0xf bank_mask:0xf')
        for e in range(2): k(f'v_cvt_pk_bf16_f32 v{acc+e}, v{h+4+2*e}, v{h+5+2*e}')
        for e in range(2): k(f'v_lshlrev_b32 v{h+2*e}, 16, v{acc+e}\nv_and_b32 v{h+2*e+1}, 0xffff0000, v{acc+e}')
        for e in range(4): k(f'v_sub_f32 v{h+e}, v{h+4+e}, v{h+e}')
        k(f's_mov_b32 vcc_lo, 0xff00ff00\ns_mov_b32 vcc_hi, 0xff00ff00')
        for e in range(2): k(f'v_cvt_pk_bf16_f32 v{acc+2+e}, v{h+2*e}, v{h+2*e+1}')
        for e in range(2): k(f'v_cndmask_b32 v{acc+e}, v{acc+e}, v{acc+2+e}, vcc')

    def cs_loads(self, p):
        k = self.k
        if p not in self.slots: return
        k(f's_cmp_lg_u32 s{sSLOT}, {p}\ns_cbranch_scc1 L_ncb{p}')
        for j in range(10):
            k(f'buffer_load_dwordx4 {vr(vCSB+4*j,4)}, v{vCSG}, s[{S_TMP}:{S_TMP+3}], s{sCO} offen')
            if j < 9: k(f's_add_u32 s{sCO}, s{sCO}, s{sRL}')
        k.nvm -= 10
        if k.nvm > 0: k.cond.append((k.nvm, 10, self.slot_test, p))
        self.cs_tok[p] = Tok(k.nvm + 1)
        k.label(f'L_ncb{p}')
    def cs_use(self, lo, hi, name):
        k = self.k
        def f():
            k.wait(vm=self.cs_tok[hi])
            k(f's_sub_u32 s{sT0}, s{sSLOT}, {lo}\ns_cmp_le_u32 s{sT0}, {hi - lo}\ns_cbranch_scc0 L_cu{lo}')
            self.cs_run(vCSB, vCSA)
            k(f'buffer_store_dwordx2 {vr(vCSA,2)}, v{vCSO}, s[{S_WS}:{S_WS+3}], s{sCD} offen sc1')
            k.nvm -= 1; setattr(self, name, Tok(k.nvm + 1))
            k.flush_hazards()
            k.label(f'L_cu{lo}')
        return f
    def phase0A(self):
        k = self.k; X = vX; t = vT; c = self.cfg
        self.slots = set(c.slot0) | set(c.slot1) | set(c.slot2); self.cs_tok = {}
        assert min(c.slot1) > max(max(c.slot0), max(c.slot2)) and min(c.slot1) >= 1 and min(c.slot2) >= 1
        tab = lambda L: hex(sum(v << (4*j) for j, v in enumerate(L)))
        k(f"""s_lshr_b32 s{sT0}, s{sI}, 1
        s_and_b32 s{sT2}, s{sT5}, 128
        s_bitcmp1_b32 s{sI}, 0
        s_cselect_b32 s{sT2}, s{sT2}, 0
        s_add_u32 s{sT2}, s{sT2}, s{sC1}
        s_mul_i32 s{sT1}, s{sT0}, 80
        s_mul_i32 s{sT1}, s{sT1}, s{sSTR}
        s_add_u32 s{sCO}, s{sT1}, s{sT2}
        s_lshl_b32 s{sRL}, s{sSTR}, 3
        v_mad_u32_u24 v{vCSG}, v{t}, s{sSTR}, v{t+1}
        s_mov_b32 s{S_TMP+2}, s{S_U0+2}
        s_mov_b32 s{S_TMP+3}, 0x20000
        s_mov_b32 s{S_WS+2}, {WS_BYTES}
        s_mov_b32 s{S_WS+3}, 0x20000
        s_lshl_b32 s{sT1}, s{sT0}, 2
        s_lshr_b32 s{sSLOT}, {tab(c.slot0)}, s{sT1}
        s_and_b32 s{sSLOT}, s{sSLOT}, 15
        s_cmp_eq_u32 s{sW}, 0
        s_cselect_b32 s{sSLOT}, s{sSLOT}, 15
        s_bitcmp1_b32 s{sI}, 0
        s_waitcnt lgkmcnt(0)
        s_cselect_b64 s[{S_TMP}:{S_TMP+1}], s[{S_U1}:{S_U1+1}], s[{S_U0}:{S_U0+1}]""")
        assert k.nvm == 0
        self.cs_loads(0)
        clr = f's_and_b32 s{sT4}, s2, 0xe7\ns_lshl3_add_u32 s{sT4}, s{sT4}, s{sW}\ns_cmp_lg_u32 s{sT4}, {(7 if c.g1map else c.clrwg)*8 + 3}'
        k(clr + '\ns_cbranch_scc1 L_noclr')
        k(f'v_lshlrev_b32 v{X+60}, 7, v{vL}\nv_mov_b32 v{X+64}, 0\ns_lshl_b32 s{sT4}, s{sI}, 13')
        k(f'buffer_store_dword v{X+64}, v{X+60}, s[{S_WS}:{S_WS+3}], s{sT4} offen sc1')
        k.label('L_noclr')
        k(f's_cmp_lg_u32 s{sW}, 1\ns_cbranch_scc1 L_nopf\ns_getpc_b64 s[{sT2}:{sT3}]')
        k.label('L_pc')
        k(f's_lshr_b32 s{sT4}, s2, 3\ns_lshl_b32 s{sT4}, s{sT4}, 11\nv_and_b32 v{X+60}, 15, v{vL}\nv_lshl_add_u32 v{X+60}, v{X+60}, 7, s{sT4}\nv_min_u32 v{X+60}, L_end-L_pc, v{X+60}')
        k(f's_mov_b64 exec, 0xffff\nglobal_load_dword v{X+61}, v{X+60}, s[{sT2}:{sT3}]\ns_mov_b64 exec, -1')
        k.label('L_nopf')
        k.nvm = 0
        self.stamp('p0')
        d0 = self.dma_stage(0)
        d0[0]()
        self.prologue4()
        d0[1]()
        self.late_srds()
        k(f's_mov_b32 s{S_DBG+2}, 256\ns_mov_b32 s{S_DBG+3}, 0x20000')
        self.consts1()
        k(f"""s_mul_i32 s{sT1}, s{sG}, 10240
        s_add_u32 s{sT1}, s{sT1}, {WEXT}
        s_lshl_b32 s{sT3}, s{sT0}, 8
        s_add_u32 s{sPL2}, s{sT1}, s{sT3}
        s_and_b32 s{sT4}, s{sT3}, 1024
        s_add_u32 s{sT1}, s{sPL2}, s{sT4}
        s_and_b32 s{sT3}, s{sI}, 1
        s_lshl_b32 s{sT3}, s{sT3}, 10
        s_add_u32 s{sCD}, s{sT1}, s{sT3}
        s_cmp_eq_u32 s{sW}, 2
        s_cselect_b32 s{sCD}, s{sPL2}, s{sCD}
        s_lshl_b32 s{sT1}, s{sW}, 12
        s_add_u32 s{sCD}, s{sCD}, s{sT1}
        s_sub_u32 s{sT1}, s{sW}, 1
        s_cmp_le_u32 s{sT1}, 1
        s_waitcnt lgkmcnt(0)
        s_cbranch_scc0 L_nol
        s_bitcmp1_b32 s{sI}, 0
        s_cselect_b64 s[{S_TMP}:{S_TMP+1}], s[{S_U}:{S_U+1}], s[{S_G}:{S_G+1}]
        s_cselect_b32 s{sT4}, -1, {tab(c.slot2)}
        s_cmp_lt_u32 s{sG}, 14
        s_cselect_b32 s{sT4}, s{sT4}, -1
        s_movk_i32 s{sT3}, 3072
        s_cmp_eq_u32 s{sW}, 2
        s_cselect_b64 s[{S_TMP}:{S_TMP+1}], s[{S_Q}:{S_Q+1}], s[{S_TMP}:{S_TMP+1}]
        s_cselect_b32 s{sT4}, s{sT4}, {tab(c.slot1)}
        s_cselect_b32 s{sT3}, 3840, s{sT3}
        s_cselect_b32 s{sT2}, s{sC2O}, s{sC3O}
        s_lshl_b32 s{sT1}, s{sT0}, 2
        s_lshr_b32 s{sSLOT}, s{sT4}, s{sT1}
        s_and_b32 s{sSLOT}, s{sSLOT}, 15
        s_mul_i32 s{S_TMP+2}, s{sT3}, 640
        s_mul_i32 s{sT1}, s{sT0}, 80
        s_mul_i32 s{sT1}, s{sT1}, s{sT3}
        s_add_u32 s{sCO}, s{sT1}, s{sT2}
        s_lshl_b32 s{sRL}, s{sT3}, 3
        v_mad_u32_u24 v{vCSG}, v{t}, s{sT3}, v{t+1}""")
        k.label('L_nol')
        self.cs_loads(1)
        self.cs_sel()
        k(f's_and_b32 s{sT3}, s{sI}, 3\ns_lshl_b32 s{sT3}, s{sT3}, 5\nv_xor_b32 v{vCSO}, s{sT3}, v{vCSO}')
        self.consts0()
        self.stamp('p0')
        for f in self.dma_stage(1): f()
        self.stamp('p0')
        self.cs_loads(2)
        k(f's_lshl_b32 s{sT3}, s{sI}, 6\n' + clr + f'\ns_cbranch_scc1 L_nodbg\ns_waitcnt vmcnt({k.nvm})')
        self.flag_store(1, X+58, 's_cmp_lg_u32 0, 0', S_DBG)
        k.label('L_nodbg')
        self.stamp('p0')

    def phase0B(self):
        k = self.k; X = vCSB; c = self.cfg
        k(f"""s_lshl4_add_u32 s{sT0}, s{sI}, s{sG}
        s_lshl2_add_u32 s{sT0}, s{sT0}, s{sGW}
        s_mul_i32 s{sCD}, s{sT0}, 2560
        v_lshrrev_b32 v{X+22}, 5, v{vL}
        v_mul_u32_u24 v{X+21}, 1280, v{X+22}
        v_and_b32 v{X+23}, 31, v{vL}
        v_lshl_add_u32 v{X+20}, v{X+23}, 4, v{X+21}
        v_lshl_add_u32 v{X+21}, v{X+23}, 3, v{X+21}""")
        k('s_waitcnt lgkmcnt(0)')
        LD = (f'buffer_load_dwordx4 v[{X}:{X+3}], v{X+20}, s[{S_X}:{S_X+3}], s{sCD} offen',
              f'buffer_load_dwordx4 v[{X+4}:{X+7}], v{X+20}, s[{S_X}:{S_X+3}], s{sCD} offen offset:512',
              f'buffer_load_dwordx2 v[{X+8}:{X+9}], v{X+21}, s[{S_X}:{S_X+3}], s{sCD} offen offset:1024')
        def ld(p):
            for j in range(3):
                if c.bpos[j] == p: self.t_sl = k(LD[j])
        ld(0)
        self.stamp('p0')
        d0 = self.dma_stage(0)
        d0[0]()
        self.prologue4()
        d0[1]()
        k.flush_hazards()
        k('s_branch L_setB')
        yield
        k.label('L_setB')
        self.late_srds()
        k(f's_mov_b32 s{S_WS+2}, {WS_BYTES}\ns_mov_b32 s{S_WS+3}, 0x20000')
        k(f's_lshl_b32 s{sCO}, s{sT0}, 4\ns_add_u32 s{sCO}, s{sCO}, {STATS}\nv_lshlrev_b32 v{X+22}, 3, v{X+22}')
        self.consts0(); self.consts1()
        self.pack_setup()
        k('s_waitcnt lgkmcnt(0)')
        ld(1)
        self.stamp('p0')
        for f in self.dma_stage(1): f()
        self.stamp('p0')
        ld(2)
        self.stamp('p0')
    def stats(self):
        k = self.k; X = vCSB
        a, b, m = X + 10, X + 11, X + 12
        k(f'v_mov_b32 v{a}, 0\nv_mov_b32 v{b}, 0\ns_mov_b32 s{sT2}, 0x3f803f80')
        k.wait(vm=self.t_sl)
        for d in range(10): k(f'v_dot2c_f32_bf16 v{a}, s{sT2}, v{X+d}\nv_dot2c_f32_bf16 v{b}, v{X+d}, v{X+d}')
        k('s_nop 2')
        for ctl in ('quad_perm:[1,0,3,2]', 'quad_perm:[2,3,0,1]', 'row_half_mirror', 'row_mirror'):
            for r in (a, b): k(f'v_add_f32_dpp v{r}, v{r}, v{r} {ctl} row_mask:0xf bank_mask:0xf')
        k(f"""v_mov_b32 v{X}, v{a}
        v_mov_b32 v{X+1}, v{b}
        v_permlane16_swap_b32 v{a}, v{X}
        v_permlane16_swap_b32 v{b}, v{X+1}
        v_add_f32 v{a}, v{a}, v{X}
        v_add_f32 v{b}, v{b}, v{X+1}
        v_mul_f32 v{m}, {hex(f2u(-1.0/640))}, v{a}
        v_mul_f32 v{b}, {hex(f2u(1.0/640))}, v{b}
        v_fma_f32 v{b}, -v{m}, v{m}, v{b}
        v_max_f32 v{b}, 0, v{b}
        v_add_f32 v{m+1}, {hex(f2u(1e-5))}, v{b}
        v_cvt_pk_bf16_f32 v{m}, v{m}, v{m}
        s_mov_b32 exec_lo, 1
        s_mov_b32 exec_hi, 1""")
        self.t_a = k(f'buffer_store_dwordx2 v[{m}:{m+1}], v{X+22}, s[{S_WS}:{S_WS+3}], s{sCO} offen sc1')
        k('s_mov_b64 exec, -1')

    def consts0(self):
        k = self.k; t = vT; S = self.S
        k(f'''v_bfe_u32 v{t}, v{vL}, 2, 2
        v_and_b32 v{t+1}, 1, v{vL}
        v_lshlrev_b32 v{t+1}, 4, v{t+1}
        v_and_b32 v{t+2}, 2, v{vL}
        v_lshl_add_u32 v{t+1}, v{t+2}, 2, v{t+1}
        v_bfe_u32 v{t+2}, v{vL}, 4, 1
        v_lshrrev_b32 v{t+4}, 5, v{vL}
        v_lshl_add_u32 v{t+1}, v{t}, 7, v{t+1}
        v_and_b32 v{t+3}, 2, v{t}
        v_or_b32 v{t+3}, v{t+3}, v{t+2}
        v_lshl_add_u32 v{t+1}, v{t+3}, 5, v{t+1}
        v_lshrrev_b32 v{t+3}, 4, v{vL}
        v_lshl_add_u32 v{vWR0}, v{t+3}, 10, v{t+1}
        v_lshl_add_u32 v{vWR2}, v{t+4}, 10, v{t+1}''')
        if S: k(f'v_xor_b32 v{vWR0}, 64, v{vWR0}\nv_xor_b32 v{vWR2}, 64, v{vWR2}')
        k(f'''v_xor_b32 v{vWR1}, 32, v{vWR0}
        v_and_b32 v{t}, 31, v{vL}
        v_bfe_u32 v{t+1}, v{vL}, 1, 3
        v_xor_b32 v{t+1}, v{t+1}, v{t+4}
        v_lshlrev_b32 v{t+1}, 4, v{t+1}
        v_lshl_add_u32 v{t+1}, v{t}, 7, v{t+1}
        s_lshl_b32 s{sT0}, s{sGW}, 12
        s_add_u32 s{sT0}, s{sT0}, {L_X}
        v_add_u32 v{vA1}, s{sT0}, v{t+1}
        v_xor_b32 v{vA1+1}, 32, v{vA1}
        v_xor_b32 v{vA1+2}, 64, v{vA1}
        v_xor_b32 v{vA1+3}, 0x60, v{vA1}''')
    def consts1(self):
        k = self.k; t = vT + 9; S = self.S; c = self.cfg
        k(f'''v_and_b32 v{t}, 31, v{vL}
        v_lshrrev_b32 v{t+2}, 5, v{vL}
        v_lshlrev_b32 v{vQO}, 11, v{t+2}
        v_lshl_add_u32 v{vQO}, v{t}, 4, v{vQO}
        v_bfe_u32 v{t+1}, v{vL}, 4, 1
        v_mul_u32_u24 v{vHO}, 49152, v{t+1}
        v_lshl_add_u32 v{vHO}, v{t+2}, 8, v{vHO}
        v_and_b32 v{t+1}, 15, v{vL}
        v_lshl_add_u32 v{vHO}, v{t+1}, 4, v{vHO}
        v_lshlrev_b32 v{aL16}, 4, v{vL}
        v_add_u32 v{aL16b}, 4096, v{aL16}''')
        k(f"""s_add_u32 s{sC2O}, s{sG}, 16
        s_lshl_b32 s{sC2O}, s{sC2O}, 7
        s_and_b32 s{sT1}, s{sG}, 3
        s_lshl_b32 s{sT1}, s{sT1}, 7
        s_add_u32 s{sC3O}, s{sC3O}, s{sT1}
        s_add_u32 s{sC3O}, s{sC3O}, 256
        s_lshl2_add_u32 s{sT1}, s{sI}, s{sGW}
        s_mul_i32 s{sT1}, s{sT1}, {2*49152}
        s_add_u32 s{sT1}, s{sT1}, {HIM + S*1024}
        s_lshl4_add_u32 s{sHE}, s{sC1}, s{sT1}
        s_lshl4_add_u32 s{sHL}, s{sC3O}, s{sT1}
        s_mul_i32 s{sT2}, s{sI}, {240*2048}
        s_lshl_b32 s{sT1}, s{sGW}, 9
        s_add_u32 s{sT2}, s{sT2}, s{sT1}
        s_add_u32 s{sT2}, s{sT2}, {QKV + S*8192}
        s_lshl_b32 s{sT1}, s{sC1}, 7
        s_add_u32 s{sQS1}, s{sT2}, s{sT1}
        s_lshl_b32 s{sT1}, s{sC2O}, 7
        s_add_u32 s{sQS2}, s{sT2}, s{sT1}
        s_cmp_lt_u32 s{sG}, 14
        s_cselect_b32 s{sQS2}, s{sQS2}, {OOB}
        s_cmp_lt_u32 s{sG}, 10
        s_cselect_b32 s{sQF}, {hex(f2u(LOG2E / math.sqrt(20.0)))}, 1.0
        s_lshl_b32 s{sFLAG}, s2, 7""")
    def consts2(self):
        k = self.k; S = self.S; c = self.cfg
        k(f'''s_bfe_u32 s{sAI}, s2, 0x40003
        s_and_b32 s{sT0}, s2, 7
        s_lshr_b32 s{sT1}, s2, 7
        s_lshl1_add_u32 s{sAJ}, s{sT0}, s{sT1}''')
        if c.g2map == 0:
            k(f's_bfe_u32 s{sT1}, s2, 0x20003\ns_lshl2_add_u32 s{sR2}, s{sT0}, s{sT1}\ns_lshr_b32 s{sC2}, s2, 5')
        else:
            k(f'''s_lshr_b32 s{sT1}, s{sT0}, 1
            s_bfe_u32 s{sT2}, s2, 0x30003
            s_lshl3_add_u32 s{sR2}, s{sT1}, s{sT2}
            s_and_b32 s{sT1}, s2, 1
            s_lshr_b32 s{sT2}, s2, 6
            s_lshl2_add_u32 s{sC2}, s{sT1}, s{sT2}''')
        k(f'''s_mul_i32 s{sT0}, s{sC2}, 68
        s_mul_i32 s{sT1}, s{sGW}, 12
        s_add_u32 s{sT1}, s{sT0}, s{sT1}
        s_mul_i32 s{sWB}, s{sT1}, 5120
        s_add_u32 s{sWB}, s{sWB}, {W2P}
        s_mul_i32 s{sSTG}, s{sGW}, 20480
        s_cmp_eq_u32 s{sGW}, 3
        s_cselect_b32 s{sSTG}, {L_EXT}, s{sSTG}
        s_lshr_b32 s{sPL2}, s{sR2}, 1''')
        if S:
            k(f"""s_mul_i32 s{sCD}, s{sT0}, 5120
            s_add_u32 s{sCD}, s{sCD}, {W2P + 48*5120}
            s_mov_b64 s[{S_OUT}:{S_OUT+1}], s[{S_TMP}:{S_TMP+1}]
            s_mov_b32 s{S_OUT+2}, {2048*1280}
            s_mov_b32 s{S_OUT+3}, 0x20000""")
    def consts3(self):
        k = self.k; S = self.S
        if S:
            k(f's_lshl2_add_u32 s{sT1}, s{sR2}, s{sGW}\ns_mul_i32 s{sAM}, s{sT1}, 20480\ns_add_u32 s{sAM}, s{sAM}, {OIM}\ns_lshl_b32 s{sAM+1}, s{sGW}, 10\ns_add_u32 s{sAM+2}, s{sAM+1}, s{sCD}')
        else:
            k(f's_mul_i32 s{sT1}, s{sR2}, {4*49152}\ns_mul_i32 s{sT0}, s{sGW}, 12288\ns_add_u32 s{sT1}, s{sT1}, s{sT0}\ns_add_u32 s{sT1}, s{sT1}, {HIM}')
            for d in range(4):
                k(f's_add_u32 s{sT0}, s{sGW}, {d}\ns_and_b32 s{sT0}, s{sT0}, 3\ns_mul_i32 s{sT0}, s{sT0}, 49152\ns_add_u32 s{sAM+d}, s{sT0}, s{sT1}')
        k(f'''s_mul_i32 s{sKVS}, s{sAI}, {240*2048}
        s_mul_i32 s{sT1}, s{sAJ}, {5*2048}
        s_add_u32 s{sKVS}, s{sKVS}, s{sT1}
        s_mul_i32 s{sKVM}, s{sW}, 768''')

    def fg(self, d, src, t):
        if self.cfg.g1map: self.k(f'v_bfe_u32 v{t}, v{src}, 1, 3\nv_and_b32 v{d}, 1, v{src}\nv_lshlrev_b32 v{d}, 14, v{d}\nv_lshl_add_u32 v{d}, v{t}, 7, v{d}')
        else: self.k(f'v_bfe_u32 v{t}, v{src}, 2, 2\nv_and_b32 v{d}, 3, v{src}\nv_lshlrev_b32 v{d}, 13, v{d}\nv_lshl_add_u32 v{d}, v{t}, 8, v{d}')
    def fi(self, d, src, t):
        if self.cfg.g1map: self.k(f'v_and_b32 v{d}, 15, v{src}\nv_lshlrev_b32 v{d}, 10, v{d}')
        else: self.k(f'v_bfe_u32 v{t}, v{src}, 3, 1\nv_and_b32 v{d}, 7, v{src}\nv_lshlrev_b32 v{d}, 10, v{d}\nv_lshl_add_u32 v{d}, v{t}, 7, v{d}')
    def poll(self, kind, thr):
        k = self.k; a = vEX; st = {}
        srd = S_DBG if kind == 'dbg' else S_WS
        def addr():
            t = vT + 10
            if kind == 'dbg': k(f'v_and_b32 v{a}, 3, v{vL}\nv_lshlrev_b32 v{a}, 6, v{a}')
            elif kind == 'rc':
                self.fg(a, vL, t); self.fi(t + 1, vL, t)
                k(f"""s_lshl_b32 s{sT1}, s2, 7
                s_and_b32 s{sT2}, s{sT1}, {(0x78 if self.cfg.g1map else 0x39) << 7}
                s_and_b32 s{sT1}, s{sT1}, {(0x87 if self.cfg.g1map else 0xc6) << 7}
                v_add_u32 v{a}, s{sT2}, v{a}
                v_add_u32 v{t+1}, s{sT1}, v{t+1}
                s_mov_b32 vcc_lo, 0xffff0000
                s_mov_b32 vcc_hi, 0xffff0000
                v_cndmask_b32 v{a}, v{a}, v{t+1}, vcc""")
            elif kind == 'pk':
                self.fi(t + 1, vL, t)
                k(f"""s_lshl_b32 s{sT1}, s2, 7
                s_and_b32 s{sT1}, s{sT1}, {(0x87 if self.cfg.g1map else 0xc6) << 7}
                v_add_u32 v{t+1}, s{sT1}, v{t+1}
                s_mul_i32 s{sT1}, s{sC2}, 5
                s_lshr_b32 s{sT1}, s{sT1}, 2
                v_lshrrev_b32 v{a}, 1, v{vL}
                v_lshl_add_u32 v{a}, v{a}, 3, v{vL}
                v_add_lshl_u32 v{a}, v{a}, s{sT1}, 7
                s_mov_b32 vcc_lo, 0
                s_mov_b32 vcc_hi, 0xffff0000
                v_cndmask_b32 v{a}, v{a}, v{t+1}, vcc""")
            elif kind == 'kv':
                k(f"""v_lshrrev_b32 v{t}, 4, v{vL}
                v_sub_u32 v{t}, s{sAI}, v{t}
                v_max_i32 v{t}, 0, v{t}
                v_mov_b32 v{t+1}, s{sPL2}
                s_mov_b32 vcc_lo, 0
                s_mov_b32 vcc_hi, 0xffff0000
                v_cndmask_b32 v{t+1}, v{t}, v{t+1}, vcc""")
                self.fi(t + 1, t + 1, t); self.fg(a, vL, t)
                k(f'v_add_u32 v{a}, v{a}, v{t+1}')
        def issue():
            self.uid += 1; u = self.uid
            k(f's_cmp_lg_u32 s{sGW}, 0\ns_cbranch_scc1 L_np{u}')
            k(f'buffer_load_dword v{vP}, v{a}, s[{srd}:{srd+3}], 0 offen sc1')
            k.nvm -= 1; st['t'] = k.nvm
            k.label(f'L_np{u}')
        def check(): self.poll_check(st['t'], vP, a, srd, '0', thr)
        return addr, issue, check
    def ext_a(self):
        k = self.k
        if self.S:
            k(f"""s_lshl_b32 s{sT2}, s{sGW}, 9
            s_add_u32 m0, s{sT2}, {L_EXT + 8192}
            s_mul_i32 s{sT1}, s{sG}, 10240
            s_add_u32 s{sT1}, s{sT1}, s{sT2}
            s_add_u32 s{sT3}, s{sT1}, {WEXT + 8192}
            s_mov_b32 exec_hi, 0""")
            k(f'buffer_load_dwordx4 v{aL16}, s[{S_WS}:{S_WS+3}], s{sT3} offen sc1 lds')
            k(f"""s_mov_b32 exec_hi, -1
            s_lshl1_add_u32 m0, s{sT2}, {L_EXT}
            s_add_u32 s{sT1}, s{sT1}, s{sT2}
            s_add_u32 s{sT1}, s{sT1}, {WEXT}""")
            k(f'buffer_load_dwordx4 v{aL16}, s[{S_WS}:{S_WS+3}], s{sT1} offen sc1 lds')
        k(f'''v_and_b32 v{vT+10}, 31, v{vL}
        v_lshlrev_b32 v{vT+10}, 3, v{vT+10}
        s_lshl2_add_u32 s{sT1}, s{sI}, s{sGW}
        s_lshl_b32 s{sT1}, s{sT1}, 8
        s_add_u32 s{sT1}, s{sT1}, {STATS}''')
        self.t_ea = k(f'buffer_load_dwordx2 v[{vST}:{vST+1}], v{vT+10}, s[{S_WS}:{S_WS+3}], s{sT1} offen sc1')
    def ext_b(self):
        k = self.k
        k(f"""s_lshl_b32 s{sT2}, s{sGW}, 10
        s_add_u32 m0, s{sT2}, {L_EXT + 4096}
        s_mul_i32 s{sT1}, s{sG}, 10240
        s_add_u32 s{sT1}, s{sT1}, s{sT2}
        s_add_u32 s{sT1}, s{sT1}, {WEXT + 4096}""")
        self.t_eb = k(f'buffer_load_dwordx4 v{aL16}, s[{S_WS}:{S_WS+3}], s{sT1} offen sc1 lds')
    def stats_prep(self):
        k = self.k
        k(f'v_rsq_f32 v{vRS}, v{vST+1}')
        for e in range(4): k(f'v_mov_b32 v{vMEAN+e}, v{vST}')
        k(f'v_mul_f32 v{vC1}, {hex(f2u(-LOG2E))}, v{vRS}\nv_mul_f32 v{vST}, s{sQF}, v{vRS}')
    def job_gu(self, acc, soff, imm, pk=False):
        k = self.k; J = []; out = vT
        def one(s): J.append(lambda: k(s))
        assert vC1 & 1 and (vST + 1) & 1
        for e0 in ((0, 4) if pk else ()):
            P = range(e0, e0 + 4, 2)
            for e in P: one(f'v_pk_mul_f32 {vr(acc+8+e,2)}, {vr(acc+e,2)}, {vr(acc+8+e,2)}')
            for e in P: one(f'v_pk_mul_f32 {vr(acc+e,2)}, {vr(acc+e,2)}, {vr(vC1-1,2)} op_sel:[0,1] op_sel_hi:[1,1]')
            for e in range(e0, e0 + 4): one(f'v_exp_f32 v{acc+e}, v{acc+e}')
            for e in P: one(f'v_pk_fma_f32 {vr(acc+e,2)}, {vr(acc+e,2)}, {vr(vST,2)}, {vr(vST,2)} op_sel:[0,1,1] op_sel_hi:[1,1,1]')
            for e in range(e0, e0 + 4): one(f'v_rcp_f32 v{acc+e}, v{acc+e}')
            for e in P: one(f'v_pk_mul_f32 {vr(acc+e,2)}, {vr(acc+e,2)}, {vr(acc+8+e,2)}')
            for e in P: one(f'v_cvt_pk_bf16_f32 v{out+e//2}, v{acc+e}, v{acc+e+1}')
        for e0 in (() if pk else (0, 4)):
            for e in range(e0, e0 + 4): one(f'v_mul_f32 v{acc+8+e}, v{acc+e}, v{acc+8+e}')
            for e in range(e0, e0 + 4): one(f'v_mul_f32 v{acc+e}, v{vC1}, v{acc+e}')
            for e in range(e0, e0 + 4): one(f'v_exp_f32 v{acc+e}, v{acc+e}')
            for e in range(e0, e0 + 4): one(f'v_fma_f32 v{acc+e}, v{acc+e}, v{vST+1}, v{vST+1}')
            for e in range(e0, e0 + 4): one(f'v_rcp_f32 v{acc+e}, v{acc+e}')
            for e in range(e0, e0 + 4): one(f'v_mul_f32 v{acc+e}, v{acc+e}, v{acc+8+e}')
            for e in range(e0, e0 + 4, 2): one(f'v_cvt_pk_bf16_f32 v{out+e//2}, v{acc+e}, v{acc+e+1}')
        def st(): self.t_store = k(f'buffer_store_dwordx4 v[{out}:{out+3}], v{vHO}, s[{S_WS}:{S_WS+3}], s{soff} offen offset:{imm} {self.cfg.stf}')
        J.append(st)
        return J
    def qkv_half(self, acc, scale, soff, off):
        k = self.k
        for e in range(8): k(f'v_mul_f32 v{acc+e}, v{scale}, v{acc+e}')
        k(f's_add_u32 s{sT1}, s{soff}, {off}')
        for e in range(0, 8, 2): k(f'v_cvt_pk_bf16_f32 v{acc+e//2}, v{acc+e}, v{acc+e+1}')
        self.t_store = k(f'buffer_store_dwordx4 {vr(acc,4)}, v{vQO}, s[{S_WS}:{S_WS+3}], s{sT1} offen {self.cfg.stf}')
    def job_e1(self, j):
        k = self.k
        def f():
            self.uid += 1; u = self.uid
            tt, half = j >> 1, j & 1; acc = vA0 + 16 * tt
            k(f's_bitcmp1_b32 s2, {7 if self.cfg.g1map else 6}\ns_cbranch_scc1 L_eq{u}')
            s0 = k.snap()
            J = self.job_gu(acc, sHE, tt * 512)
            for x in (J[26:] if half else J[:26]): x()
            k.flush_hazards()
            k(f's_branch L_ed{u}')
            k.restore(s0)
            k.label(f'L_eq{u}')
            self.qkv_half(acc + 8 * half, vST, sQS1, tt * 4096 + half * 16384)
            if not half: k.nvm -= 1
            k.flush_hazards()
            k.label(f'L_ed{u}')
        return f
    def slot_test(self, newer):
        return f's_sub_u32 s{sCNT}, s{sSLOT}, {newer[0][3]}\ns_cmp_le_u32 s{sCNT}, {newer[-1][3] - newer[0][3]}'
    def job_csb(self, lump):
        c = self.cfg
        for p in sorted(self.slots):
            if p >= 3: lump[p - 3].append(('first', lambda p=p: self.cs_loads(p)))
        lump[c.u1].append(('first', self.cs_use(0, max(max(c.slot0), max(c.slot2)), 't_a')))
        lump[c.u2].append(('first', self.cs_use(min(c.slot1), max(c.slot1), 't_b')))
        assert c.u2 <= 6
    def pack_setup(self):
        k = self.k
        a0, a1, go = vA1 + 6, vA1 + 7, vA1 + 8
        d = vT; x, y = vT + 10, vT + 11
        k(f"""s_mul_i32 s{sT1}, s2, 52429
        s_lshr_b32 s{sT1}, s{sT1}, 19
        s_mul_i32 s{sT3}, s{sT1}, 10
        s_sub_u32 s{sPKL}, s2, s{sT3}
        s_lshl2_add_u32 s{sT2}, s{sT1}, s{sGW}
        s_mul_i32 s{sPKS}, s{sT2}, 10240
        s_lshl_b32 s{sT3}, s{sPKL}, 7
        s_add_u32 s{sPKS}, s{sPKS}, s{sT3}
        s_mul_i32 s{sT3}, s{sT1}, 5120
        s_lshl_b32 s{sT4}, s{sGW}, 8
        s_add_u32 s{sT3}, s{sT3}, s{sT4}
        s_add_u32 s{sT3}, s{sT3}, {W2P}
        s_cmp_lt_u32 s{sT2}, 96
        s_cselect_b32 s{sPKD0}, s{sT3}, {OOB}
        s_cselect_b32 s{sPKS}, s{sPKS}, {OOB}
        s_add_u32 s{sPKD1}, s{sPKD0}, {24*5120}
        s_mul_i32 s{sT1}, s{sT2}, 52429
        s_lshr_b32 s{sT1}, s{sT1}, 18
        s_mul_i32 s{sT3}, s{sT1}, 5
        s_sub_u32 s{sT3}, s{sT2}, s{sT3}
        s_and_b32 s{sT4}, s{sT1}, 3
        s_lshr_b32 s{sT1}, s{sT1}, 2
        s_mul_i32 s{sT1}, s{sT1}, 5
        s_cmp_gt_u32 s{sT3}, 2
        s_subb_u32 s{sT5}, s{sT3}, 0
        s_cmp_eq_u32 s{sT3}, 2
        s_cselect_b32 s{sT5}, s{sT4}, s{sT5}
        s_cselect_b32 s{sT4}, 4, s{sT4}
        s_add_u32 s{sT1}, s{sT1}, s{sT4}
        s_mul_i32 s{sT1}, s{sT1}, 5120
        s_lshl_b32 s{sT5}, s{sT5}, 8
        s_add_u32 s{sT1}, s{sT1}, s{sT5}
        s_add_u32 s{sT1}, s{sT1}, {W2P + 48*5120}
        s_cmp_lt_u32 s{sT2}, 80
        s_cselect_b32 s{sPKD2}, s{sT1}, {OOB}
        s_bfe_u32 s{sSLOT}, s2, {hex(0x4 | ((self.cfg.nslot.bit_length()-1) << 16))}""")
    def job_pack(self, lump):
        k = self.k; c = self.cfg
        a0, a1, go = 8, 9, vT + 10
        d = vT; x, y = vT + 4, vT + 5
        def issue(p):
            def f():
                if 'p' in c.skip: k(f's_mov_b32 s{sSLOT}, 9')
                if 's' in c.skip: k(f's_mov_b32 s{sPKD0}, {OOB}\ns_mov_b32 s{sPKD1}, {OOB}\ns_mov_b32 s{sPKD2}, {OOB}')
                k(f"""s_cmp_lg_u32 s{sSLOT}, {p}
                s_cbranch_scc1 L_npk{p}
                v_lshrrev_b32 v{go}, 3, v{vL}
                v_mul_u32_u24 v{go}, 1280, v{go}
                v_and_b32 v{go+1}, 0x70, v{aL16}
                v_add_u32 v{go}, v{go}, v{go+1}
                s_mul_i32 s{sT2}, s{sGW}, 3072
                s_add_u32 m0, s{sT2}, {L_PACK}
                s_add_u32 s{sT1}, s{sPKS}, {96*10240 - 1024}""")
                k(f'buffer_load_dwordx4 v{go}, s[{S_WD}:{S_WD+3}], s{sPKS} offen {c.pknt} lds')
                k(f'buffer_load_dwordx4 v{go}, s[{S_WD}:{S_WD+3}], s{sT1} offen offset:1024 {c.pknt} lds')
                k(f's_add_u32 m0, s{sT2}, {L_PACK + 2048}')
                k(f'buffer_load_dwordx4 v{go}, s[{S_WO}:{S_WO+3}], s{sPKS} offen {c.pknt} lds')
                k.nvm -= 3; k.cond.append((k.nvm, 3, self.slot_test, p)); self.t_pk = Tok(k.nvm + 1)
                k.label(f'L_npk{p}')
            return f
        def addr1():
            k(f"""s_lshl_b32 s{sT1}, s{sPKL}, 1
            v_lshrrev_b32 v{x}, 5, v{vL}
            v_add_u32 v{x}, s{sT1}, v{x}
            v_mul_u32_u24 v{y}, 52, v{x}
            v_lshrrev_b32 v{y}, 8, v{y}
            v_mul_u32_u24 v{a0}, 5, v{y}
            v_sub_u32 v{x}, v{x}, v{a0}
            v_bfe_u32 v{d}, v{vL}, 4, 1
            v_lshl_add_u32 v{d+1}, v{x}, 1, v{d}
            v_cmp_lt_u32 vcc, 4, v{d+1}
            v_mul_u32_u24 v{y}, {2*340}, v{y}
            v_add_u32 v{a1}, {340-6}, v{d+1}
            v_cndmask_b32 v{a1}, v{d+1}, v{a1}, vcc
            v_cmp_eq_u32 vcc, 5, v{d+1}
            v_mov_b32 v{d+2}, {340+4}
            v_and_b32 v{d+3}, 15, v{vL}
            v_cndmask_b32 v{a1}, v{a1}, v{d+2}, vcc
            v_add_lshl_u32 v{a1}, v{a1}, v{y}, 10
            v_lshl_add_u32 v{a1}, v{d+3}, 4, v{a1}""")
        def addr2():
            k(f"""v_and_b32 v{d+1}, 3, v{vL}
            v_lshlrev_b32 v{d+2}, 4, v{d+1}
            v_lshl_add_u32 v{d+2}, v{d}, 3, v{d+2}
            v_cmp_eq_u32 vcc, 2, v{x}
            v_lshlrev_b32 v{d+1}, 3, v{d+1}
            v_lshl_add_u32 v{d+1}, v{d}, 5, v{d+1}
            v_cndmask_b32 v{a0}, v{d+2}, v{d+1}, vcc
            v_bfe_u32 v{x}, v{vL}, 2, 2
            v_lshl_add_u32 v{a0}, v{x}, 7, v{a0}
            v_lshrrev_b32 v{x}, 5, v{vL}
            v_lshl_add_u32 v{a0}, v{x}, 6, v{a0}
            s_mul_i32 s{sT1}, s{sGW}, 3072
            s_add_u32 s{sT1}, s{sT1}, {L_PACK}
            v_add_u32 v{a0}, s{sT1}, v{a0}""")
        D = vT + 4
        def rd(it):
            def f():
                k.wait(vm=self.t_pk)
                k(f'ds_read_b64_tr_b16 {vr(D,2)}, v{a0} offset:{it*1024}')
                self.t_pr = k(f'ds_read_b64_tr_b16 {vr(D+2,2)}, v{a0} offset:{it*1024+512}')
            return f
        def st(it):
            def f():
                k.wait(lg=self.t_pr)
                self.t_b = k(f'buffer_store_dwordx4 {vr(D,4)}, v{a1}, s[{S_WS}:{S_WS+3}], s{(sPKD0, sPKD1, sPKD2)[it]} offen {c.stf}')
            return f
        n = c.pk
        for p in range(c.nslot): lump[n + p].append(('first', issue(p)))
        u = n + c.nslot - 1 + c.pkd
        lump[c.pka].append(addr1); lump[c.pka + 1].append(addr2)
        for it in range(3):
            lump[u + it // c.pkn].append(('first', rd(it)) if it % c.pkn == 0 else ('late', rd(it)))
            lump[u + it // c.pkn].append(('late', st(it)))
        assert c.pka + 1 < u and c.fb > u + 2 // c.pkn and c.pka + 1 <= 9
    def job_ones(self):
        k = self.k
        d = vT; tk = vT + 10; a = vT + 11
        k(f'''s_mul_i32 s{sT1}, s{sW}, 48
        v_add_u32 v{tk}, s{sT1}, v{vL}
        s_sub_i32 s{sT1}, 2, s{sAI}
        s_lshl_b32 s{sT1}, s{sT1}, 7
        v_cmp_le_i32 vcc, s{sT1}, v{tk}
        v_mov_b32 v{d+1}, 0x3f80
        v_lshlrev_b32 v{a}, 4, v{tk}
        v_cndmask_b32 v{d}, 0, v{d+1}, vcc
        v_lshrrev_b32 v{d+2}, 7, v{tk}
        v_mul_u32_u24 v{d+2}, {240*2048 - 2048}, v{d+2}
        v_add_u32 v{d+2}, v{d+2}, v{a}
        v_mov_b32 v{d+3}, {OOB}
        v_cndmask_b32 v{vT+8}, v{d+3}, v{d+2}, vcc
        s_mov_b32 vcc_lo, 0x11111111
        s_mov_b32 vcc_hi, 0x11111111
        v_cndmask_b32 v{d}, 0, v{d}, vcc
        v_mov_b32 v{d+1}, 0
        v_mov_b32 v{d+2}, v{d}
        v_mov_b32 v{d+3}, 0
        v_add_u32 v{a}, {L_ONES}, v{a}
        ds_write_b128 v{a}, v[{d}:{d+3}]''')
        if self.S: k(f'v_mov_b32 v{tk}, 0\nv_lshlrev_b32 v{a}, 2, v{vL}\nv_add_u32 v{a}, {L_CNT}, v{a}\nds_write_b32 v{a}, v{tk}')
    def job_kv(self):
        k = self.k; J = []; S = self.S
        for e in range(10):
            def f(e=e):
                src = QKV - 2*240*2048 + ((80 if e < 5 else 155) + e) * 2048
                k(f's_add_u32 m0, s{sKVM}, {L_KV + e*CH}\ns_add_u32 s{sT1}, s{sKVS}, {src}\ns_mov_b32 exec_hi, 0xffff')
                self.t_kv = k(f'buffer_load_dwordx4 v{vT+8}, s[{S_WS}:{S_WS+3}], s{sT1} offen sc1 lds')
                k('s_mov_b32 exec_hi, -1')
            J.append(f)
        def q():
            k(f'''s_lshl_b32 s{sT1}, s{sGW}, 9
            s_add_u32 s{sT1}, s{sT1}, s{sKVS}
            s_add_u32 s{sT2}, s{sT1}, {QKV + S*3*2048}
            s_add_u32 s{sT1}, s{sT1}, {QKV + 4096 + 8*S}
            v_lshrrev_b32 v{vT+10}, 5, v{vL}
            v_lshl_add_u32 v{vT+10}, v{vT+10}, 30, v{vQO}''')
            k(f'buffer_load_dwordx4 v[{vQ}:{vQ+3}], v{vQO}, s[{S_WS}:{S_WS+3}], s{sT2} offen sc1')
            self.t_kv = k(f'buffer_load_dwordx2 v[{vQ+4}:{vQ+5}], v{vT+10}, s[{S_WS}:{S_WS+3}], s{sT1} offen sc1')
        J.append(q)
        return J
    def job_touch(self, gw):
        k = self.k; c = self.cfg
        nsh = 8 if c.g2map else 4; per = -(-2720 // (8 * nsh))
        def f():
            self.uid += 1; u = self.uid
            k(f"""s_cmp_lg_u32 s{sGW}, {gw}
            s_cbranch_scc1 L_nt{u}
            s_and_b32 s{sT1}, s{sR2}, {nsh-1}
            s_lshl3_add_u32 s{sT1}, s{sT1}, s{sW}
            s_mul_i32 s{sT1}, s{sT1}, {per}
            v_min_u32 v{vT+5}, {min(per,64)-1}, v{vL}
            v_add_u32 v{vT+5}, s{sT1}, v{vT+5}
            v_min_u32 v{vT+5}, 2719, v{vT+5}
            v_lshlrev_b32 v{vT+5}, 7, v{vT+5}
            s_mul_i32 s{sT1}, s{sC2}, {68*5120}
            s_add_u32 s{sT1}, s{sT1}, {W2P}""")
            k(f'buffer_load_dword v{vT+6}, v{vT+5}, s[{S_WS}:{S_WS+3}], s{sT1} offen sc1')
            k.nvm -= 1
            k.label(f'L_nt{u}')
        return f
    def dmask(self, r):
        n0 = 8 * (r >> 2) + (r & 3)
        return f's_lshl_b32 s{sT2}, -1, {n0}\ns_lshl_b32 s{sT3}, -1, {n0+4}'
    def job_masks(self, lo, hi):
        k = self.k
        def f():
            k(f'v_mov_b32 v{vT+10}, 0xffff')
            for j in range(lo, hi):
                k(self.dmask(2*j) + f'\nv_cndmask_b32 v{vM+j}, 0, v{vT+10}, s[{sT2}:{sT3}]')
                k(self.dmask(2*j+1) + f'\nv_cndmask_b32 v{vM+j}, v{vM+j}, -1, s[{sT2}:{sT3}]')
        return f

    def frag_list(self):
        c = self.cfg; F = []
        ea, eb = c.pa + c.ed, c.eb
        for n in range(25):
            slot = (n & 3) * 16384
            for q in range(8):
                f = dict(stage=n, first=(q == 0))
                if 10 <= n < 15:
                    kk = 8 * (n - 10) + q
                    f.update(addr=vWR2, off=slot + q * 2048, d2=512, acc=vA1, b=vX + 4 * kk, zero=(kk == 0))
                else:
                    t, tt = q >> 1, q & 1
                    kk = 4 * (n if n < 10 else n - 15) + t
                    f.update(addr=(vWR0, vWR1)[tt], off=slot + t * 4096, d2=512, acc=vA0 + 16 * tt, b=vX + 4 * kk, zero=(kk == 0))
                    if n < 10 and tt == 0: f['xread'] = (vX + 4 * kk, vA1 + t, slot)
                F.append(f)
                def ext(addr, off, acc, d2):
                    F.append(dict(stage=n, first=False, addr=addr, off=0, d2=d2, acc=acc, b=vMEAN, zero=False, ext=L_EXT + off))
                if n == ea and q == 1: ext(vWR0, 0, vA0, 512); ext(vWR1, 0, vA0 + 16, 512)
                if n == eb and q == 1: ext(vWR2, 8192, vA1, 512)
                if n == 20 and q == 1: ext(vWR0, 4096, vA0, 512)
                if n == 21 and q == 1: ext(vWR1, 4096, vA0 + 16, 512)
        return F
    def issue_reads(self, F, i):
        k = self.k; f = F[i]
        if f['first']: self.barrier(f['stage'])
        if 'xread' in f:
            d, a, off = f['xread']
            k(f'ds_read_b128 {vr(d,4)}, v{a} offset:{off}')
        fr = vFR + 4 * (i & 3); a = f['addr']
        if 'ext' in f:
            k(f"v_add_u32 v{vT+9}, {f['ext']}, v{a}"); a = vT + 9
        k(f"ds_read_b64_tr_b16 {vr(fr,2)}, v{a} offset:{f['off']}")
        f['tok'] = k(f"ds_read_b64_tr_b16 {vr(fr+2,2)}, v{a} offset:{f['off']+f['d2']}")
        if f['first'] and self.S: self.run_lump(f['stage'])
    def run_lump(self, n):
        k = self.k
        if not self.lump[n]: return
        if self.cfg.prio == 1: k('s_setprio 0')
        if self.cfg.prio == 3 and self.S: k('s_setprio 1')
        for j in self.lump[n]: j()
        self.lump[n] = []
        if self.cfg.prio == 1: k('s_setprio 1')
        if self.cfg.prio == 3 and self.S: k('s_setprio 0')
    def barrier(self, n):
        k = self.k
        if not self.S: self.run_lump(n - 1)
        self.stamp('jj')
        toks = [self.stok[n]] + ([] if 'n' in self.cfg.skip else [g() for g in self.pre[n]])
        k.wait(vm=max(t.n for t in toks), lg='all' if n in self.drain else None)
        k('s_barrier')
        if self.cfg.idle and n in self.cfg.idle[0]: k(f's_sleep {self.cfg.idle[1]}')
        if 10 < n < 14: self.stamp('jj')
        if n in (0, 10, 15): self.stamp()
        if n in (0, 1, 2, 3): self.stamp('p0')
        if n <= 10: self.stamp('p1')
        if 8 <= n <= 19: self.stamp('p2')
        if n >= 14: self.stamp('p3')
        for g in self.post[n]: g()

    def gemm1(self):
        k = self.k; c = self.cfg; S = self.S
        L = self.lump = {n: [] for n in range(-1, 26)}
        pre = self.pre = {n: [] for n in range(26)}
        post = self.post = {n: [] for n in range(26)}
        ea, eb = c.pa + c.ed, c.eb
        if S:
            for n, v in ((c.fa, 1), (c.fb, 2), (c.fq, 3)):
                L[n].append(lambda v=v: self.flag_store(v))
        else:
            for n, kind, thr in ((c.fa - 2, 'dbg', 1), (c.pa, 'rc', 1), (c.pb, 'pk', 2), (c.pq, 'kv', 3)):
                a_, i_, c_ = self.poll(kind, thr)
                L[n + 1].append(c_)
                L[n - 1 if n else 0].append(('late', a_))
                L[n].append(('late', i_))
            assert c.fa >= 2 and c.pa >= c.fa and c.pb >= max(c.pa + 2, c.c2 + 1)
        self.inter = {n: [] for n in range(26)}; self.drain = set(); self.rr = {n: [] for n in range(26)}
        nxt = 2
        for n in range(24):
            depth = c.dp1 if n < c.dpx else c.dp2
            mode = c.dm1 if n < 8 else c.dm2
            while nxt <= min(n + depth, 24):
                if mode == 0 and not S and c.alast: L[n] += [('late', f) for f in self.dma_stage(nxt)]
                elif mode == 0 or (mode == 1 and S): L[n] += self.dma_stage(nxt)
                elif mode == 1: post[n] += self.dma_stage(nxt)
                elif mode == 2: self.inter[n] += self.dma_stage(nxt)
                else: self.rr[n] += self.dma_stage(nxt)
                if nxt == n + 3 and nxt >= 4: self.drain.add(n)
                nxt += 1
        pre[c.fa].append(lambda: self.t_a)
        if S: L[c.sb].append(self.stats); self.job_pack(L)
        else: self.job_csb(L)
        L[9 if S else c.c2].append(self.consts2); L[10 if S else c.c2 + 1].append(self.consts3)
        pre[c.fb].append(lambda: self.t_b)
        (L if S or not c.eap else post)[c.pa + 2].append(self.ext_a); pre[ea].append(lambda: self.t_ea); post[ea].append(self.stats_prep)
        if S: L[c.pb + 2].append(self.ext_b); pre[20].append(lambda: self.t_eb)
        assert eb >= ea and c.pb + 2 < 20
        q0 = max(10, ea) + S
        for j in range(4): L[q0 + j].append(self.job_e1(j))
        assert q0 + 3 <= 14 + S
        g0 = max(15, eb) + S
        def e2():
            self.qkv_half(vA1, vRS, sQS2, 0); self.qkv_half(vA1 + 8, vRS, sQS2, 4096)
            self.t_q = self.t_store
        L[g0].append(e2); pre[c.fq].append(lambda: self.t_q)
        assert c.fq > g0
        L[g0 + 1].append(self.job_ones)
        L[g0 + 2].append(self.job_masks(0, 4)); L[g0 + 3].append(self.job_masks(4, 8))
        L[g0 + 4].append(self.attn_c1); L[g0 + 5].append(self.attn_c2); L[23].append(self.attn_c3)
        kv = self.job_kv(); n = c.pq + 2
        while kv:
            assert n <= 24
            if len(kv) <= c.kvn or n == 24: assert n > g0 + 1
            take = len(kv) if n == 24 else c.kvn
            L[n] += kv[:take]; kv = kv[take:]; n += 1
        if c.touch:
            assert c.touch >= c.pb + 2 and c.g2map
            for gw in range(4): L[c.touch + c.tstep * gw + (S if c.tstep > 1 else 0)].append(('late', self.job_touch(gw)))
        self.g2_plan()
        for n in range(c.pb + 2, 25):
            for _ in range((c.hoistb if S else c.hoist) if n <= c.hoist_hi else 0):
                if self.pf and self.pf[0][0] == 'w' and self.pf[0][1] + 3 < vX + 16 * (n - 15 - S):
                    L[n].append(self.pf.pop(0)[2])
        for n in L:
            late = [j[1] for j in L[n] if isinstance(j, tuple) and j[0] == 'late']
            first = [j[1] for j in L[n] if isinstance(j, tuple) and j[0] == 'first']
            L[n] = first + [j for j in L[n] if not isinstance(j, tuple)] + late
        F = self.frag_list()
        if S and c.prio == 2: k('s_setprio 1')
        if S: self.run_lump(-1)
        for i in range(3): self.issue_reads(F, i)
        pos = 0
        for i, f in enumerate(F):
            k.wait(lg=f['tok'])
            cin = '0' if f['zero'] else vr(f['acc'], 16)
            k(f"v_mfma_f32_32x32x16_bf16 {vr(f['acc'],16)}, {vr(vFR + 4*(i&3),4)}, {vr(f['b'],4)}, {cin}")
            if i + 3 < len(F):
                self.issue_reads(F, i + 3)
                q = self.inter[F[i + 3]['stage']]
                if q and (i % 2 == 0 or len(q) > 2): q.pop(0)()
                if F[i + 3]['first']: pos = -1
                pos += 1
                q = self.rr[F[i + 3]['stage']]
                P = (c.rrB if S else c.rrA) if F[i + 3]['stage'] else (1, 2, 3, 4)
                if q and pos in P:
                    for p in [p for p in range(4) if P[p] == pos]:
                        self.uid += 1; n0 = k.nvm
                        k(f's_cmp_lg_u32 s{sGW}, {p}\ns_cbranch_scc1 L_rr{self.uid}')
                        u = self.uid
                        for j in q: j()
                        k.label(f'L_rr{u}')
                        if p < 3: k.nvm = n0
        if not S: self.run_lump(24)
        if c.prio: k('s_setprio 0')
        assert not any(L.values())
        self.stamp()

    def attn_c1(self):
        k = self.k; t = vT; S = self.S
        k(f"""v_and_b32 v{t}, 31, v{vL}
        v_lshrrev_b32 v{t+1}, 5, v{vL}
        s_lshl_b32 s{sT0}, s{sGW}, 9
        s_add_u32 s{sT2}, s{sT0}, {L_KV + S*3*CH}
        v_mul_u32_u24 v{aK0}, {CH}, v{t+1}
        v_lshl_add_u32 v{aK0}, v{t}, 4, v{aK0}
        v_add_u32 v{aK0}, s{sT2}, v{aK0}
        s_add_u32 s{sT3}, s{sT0}, {L_KV + 2*CH + 8*S}
        v_lshl_add_u32 v{aK1}, v{t}, 4, s{sT3}
        s_lshl2_add_u32 s{sT0}, s{sAI}, s{sGW}
        s_lshr_b32 s{sT1}, s{sAJ}, 2
        s_lshl3_add_u32 s{sT0}, s{sT0}, s{sT1}
        s_mul_i32 s{sT0}, s{sT0}, 5120
        s_add_u32 s{sT0}, s{sT0}, {OIM + S*512}
        s_and_b32 s{sT1}, s{sAJ}, 3
        s_lshl_b32 s{sT2}, s{sT1}, 10
        s_add_u32 s{sQS1}, s{sT0}, s{sT2}
        s_lshl_b32 s{sT2}, s{sT1}, 7
        s_add_u32 s{sQS2}, s{sT0}, s{sT2}
        s_add_u32 s{sQS2}, s{sQS2}, 4096""")
    def attn_c2(self):
        k = self.k; t = vT; S = self.S
        k(f"""v_lshrrev_b32 v{t+1}, 5, v{vL}
        s_lshl_b32 s{sT0}, s{sGW}, 9
        v_bfe_u32 v{t}, v{vL}, 2, 2
        v_lshl_add_u32 v{t}, v{t+1}, 2, v{t}
        v_lshlrev_b32 v{t}, 4, v{t}
        v_and_b32 v{aV}, 1, v{vL}
        v_mul_u32_u24 v{aV}, {CH}, v{aV}
        v_and_b32 v{t+2}, 2, v{vL}
        v_lshl_add_u32 v{aV}, v{t+2}, 2, v{aV}
        s_add_u32 s{sT1}, s{sT0}, {L_KV + (5 + 3*S)*CH}
        v_add3_u32 v{aV}, v{aV}, v{t}, s{sT1}
        s_add_u32 s{sT2}, s{sT0}, {L_KV + 7*CH + 8*S}
        v_add_u32 v{t}, s{sT2}, v{t}
        s_mov_b32 vcc_lo, 0x33330000
        s_mov_b32 vcc_hi, 0x33330000
        v_cndmask_b32 v{aV}, v{aV}, v{t}, vcc
        s_add_u32 s{sT1}, s{sT0}, {L_ONES + 8 - 8*S}
        v_lshl_add_u32 v{t}, v{t+1}, 6, s{sT1}
        s_lshl_b64 vcc, vcc, 2
        v_cndmask_b32 v{aV}, v{aV}, v{t}, vcc
        v_add_u32 v{t}, 16, v{t}
        s_mov_b32 vcc_lo, 0x22220000
        s_mov_b32 vcc_hi, 0x22220000
        v_cndmask_b32 v{aV}, v{aV}, v{t}, vcc""")
    def attn_c3(self):
        k = self.k; t = vT
        k(f"""v_lshrrev_b32 v{t+1}, 5, v{vL}
        v_bfe_u32 v{t}, v{vL}, 4, 1
        v_mul_u32_u24 v{t}, 20480, v{t}
        v_and_b32 v{t+2}, 15, v{vL}
        v_lshl_add_u32 v{aO0}, v{t+2}, 4, v{t}
        v_lshl_add_u32 v{aO0}, v{t+1}, 8, v{aO0}
        v_lshl_add_u32 v{aO1}, v{t+2}, 3, v{t}
        v_lshl_add_u32 v{aO1}, v{t+1}, 30, v{aO1}""")
    def rdK(self, t, buf, a0=None, a1=None):
        k = self.k; k0, k1 = vKB[buf]
        k(f'ds_read_b128 {vr(k0,4)}, v{a0 or aK0} offset:{t*512}')
        return k(f'ds_read_b64 {vr(k1,2)}, v{a1 or aK1} offset:{t*512}')
    def rdV(self, t, buf, a=None):
        k = self.k; v = vVB[buf]
        for q in range(4): r = k(f'ds_read_b64_tr_b16 {vr(v+2*q,2)}, v{a or aV} offset:{t*512 + q*128}')
        return r
    def qk(self, buf, S):
        k = self.k; k0, k1 = vKB[buf]
        k(f'v_mfma_f32_32x32x16_bf16 {vr(S,16)}, {vr(k0,4)}, {vr(vQ,4)}, 0')
        k(f'v_mfma_f32_32x32x8_bf16 {vr(S,16)}, {vr(k1,2)}, {vr(vQ+4,2)}, {vr(S,16)}')
    def pv(self, buf, half, P, first=False):
        self.k(f"v_mfma_f32_32x32x16_bf16 {vr(vO,16)}, {vr(vVB[buf]+4*half,4)}, {vr(P+4*half,4)}, {'0' if first else vr(vO,16)}")
    def attention(self, pf, hook=None):
        k = self.k; c = self.cfg
        npf = len(pf); pts = [0]; NP = c.bnp if self.S else 30
        def sp():
            pts[0] += 1
            while npf - len(pf) < (npf * pts[0] + NP - 1) // NP and pf: pf.pop(0)()
        def ex(Sb, lo, hi):
            for r in range(lo, hi): k(f'v_exp_f32 v{Sb+r}, v{Sb+r}')
        def cv(Sb, half):
            for r in range(8*half, 8*half + 8, 2): k(f'v_cvt_pk_bf16_f32 v{vPP+r//2}, v{Sb+r}, v{Sb+r+1}')
        def qa(buf, Sb): k(f'v_mfma_f32_32x32x16_bf16 {vr(Sb,16)}, {vr(vKB[buf][0],4)}, {vr(vQ,4)}, 0')
        def qb(buf, Sb): k(f'v_mfma_f32_32x32x8_bf16 {vr(Sb,16)}, {vr(vKB[buf][1],2)}, {vr(vQ+4,2)}, {vr(Sb,16)}')
        def rv(t, buf, q): return k(f'ds_read_b64_tr_b16 {vr(vVB[buf]+2*q,2)}, v{aV} offset:{t*512 + q*128}')
        def merge(far, diag, lo=0, hi=16):
            for r in range(lo, hi):
                k(self.dmask(r) + f'\nv_cndmask_b32 v{far+r}, v{far+r}, v{diag+r}, s[{sT2}:{sT3}]')
        first = [True]
        def pv(buf, half, P):
            self.pv(buf, half, P, first[0]); first[0] = False
        nb = [0]
        def mid():
            nb[0] += 1
            self.stamp('at')
            if c.fair:
                P = c.fairB if self.S else c.fairA
                if nb[0] > 1 and P[nb[0]-1] != P[nb[0]-2]: k(f's_setprio {P[nb[0]-1]}')
            if nb[0] == c.bh_at:
                k.wait(vm=self.t_hl)
                k(f'v_mov_b32 v2, {L_CNT}')
                self.t_arr = self.arrive(6, 2, 9)
            if nb[0] == 8 and hook: hook()
        def block(Sb, vb, tv, nq, nk, nv, nq2=None):
            mid(); tk = tvn = None
            ex(Sb, 0, 4)
            if nq: k.wait(lg=nq[2]); qa(nq[0], nq[1])
            if nv: rv(nv[0], nv[1], 0); rv(nv[0], nv[1], 1)
            sp()
            ex(Sb, 4, 8)
            if nb[0] == c.bh_at: self.last_signals(self.t_arr, 9, 4, 8)
            if nq: qb(nq[0], nq[1])
            if nv: rv(nv[0], nv[1], 2); tvn = rv(nv[0], nv[1], 3)
            cv(Sb, 0); ex(Sb, 8, 10)
            k.wait(lg=tv); pv(vb, 0, vPP)
            sp()
            if nq2:
                ex(Sb, 10, 13); k.wait(lg=nq2[2]); qa(nq2[0], nq2[1]); ex(Sb, 13, 16); qb(nq2[0], nq2[1]); cv(Sb, 1)
            else:
                ex(Sb, 10, 16); cv(Sb, 1)
            if nk: tk = self.rdK(*nk)
            sp()
            pv(vb, 1, vPP)
            sp()
            return tk, tvn
        def merged(Sb, bfar, bdiag, tv, nq=None, nk=None):
            mid(); tk = None
            ex(Sb, 0, 4)
            if nq: k.wait(lg=nq[2]); qa(nq[0], nq[1])
            ex(Sb, 4, 8)
            if nq: qb(nq[0], nq[1])
            if nk: tk = self.rdK(*nk)
            for half in range(2):
                cv(Sb, half)
                for j in range(4*half, 4*half + 4): k(f'v_and_b32 v{vM+j}, v{vM+j}, v{vPP+j}')
                for j in range(4*half, 4*half + 4): k(f'v_xor_b32 v{vPP+j}, v{vM+j}, v{vPP+j}')
                k.wait(lg=tv); pv(bdiag, half, vM)
                if half == 0: ex(Sb, 8, 12)
                sp()
                pv(bfar, half, vPP)
                if half == 0: ex(Sb, 12, 16)
            return tk
        S = (vS0, vS1)
        if c.fair: k(f's_setprio {(c.fairB if self.S else c.fairA)[0]}')
        self.stamp('at')
        if not (self.S and c.blast):
            t0 = self.rdK(0, 0); t8 = self.rdK(8, 1)
            self.rdV(0, 0); tv8 = self.rdV(8, 1)
            k.wait(lg=t0); self.qk(0, S[0])
            k.wait(lg=t8); self.qk(1, S[1])
            tk = self.rdK(1, 0)
            merge(S[0], S[1])
            tk = merged(S[0], 0, 1, tv8, (0, S[1], tk), (2, 1))
            tv = self.rdV(1, 1)
            for t in range(1, 8):
                tk, tv = block(S[t & 1], t & 1, tv, (t & 1, S[(t+1) & 1], tk) if t < 7 else None,
                               (t + 2, (t+1) & 1) if t < 6 else None, (t + 1, (t+1) & 1) if t < 7 else None)
        else:
            t1 = self.rdK(1, 0); tk = self.rdK(2, 1); tv = self.rdV(1, 1)
            k.wait(lg=t1); self.qk(0, S[1])
            for t in range(1, 7):
                tk, tv = block(S[t & 1], t & 1, tv, (t & 1, S[(t+1) & 1], tk), (t + 2 if t < 6 else 0, (t+1) & 1), (t + 1, (t+1) & 1))
            t8 = self.rdK(8, 0)
            _, tv0 = block(S[1], 1, tv, (1, S[0], tk), None, (0, 0), (0, vS2, t8))
            merge(S[0], vS2, 0, 4)
            tv8 = self.rdV(8, 1)
            merge(S[0], vS2, 4, 16)
            merged(S[0], 0, 1, tv8)
        assert not pf
        self.stamp('at')
        tag = 'AB'[self.S]
        k(f'v_mov_b32 v8, {hex(f2u(2.0**-40))}\nv_mov_b32 v9, {hex(f2u(2.0**40))}\nv_med3_f32 v8, v{vO+12}, v8, v9')
        if c.fin:
            k(f'v_mul_f32 v9, 0, v{vO}')
            for r in range(1, 12): k(f'v_fmac_f32 v{8 + (r & 1)}, 0, v{vO+r}')
            k('v_add_f32 v8, v8, v9')
        k(f'v_cmp_eq_f32 vcc, v8, v{vO+12}\ns_cmp_eq_u64 vcc, -1\ns_cbranch_scc1 L_aok{tag}')
        if not c.skip: k(f's_call_b64 s[{sT4}:{sT5}], L_fallback')
        k.label(f'L_aok{tag}')
        self.lds_add(7, 1, 2)
        k(f'v_rcp_f32 v8, v{vO+12}')
        for r in range(12): k(f'v_mul_f32 v{vO+r}, v8, v{vO+r}')
        for j in range(6): k(f'v_cvt_pk_bf16_f32 v{vS0+j}, v{vO+2*j}, v{vO+2*j+1}')
        k(f'buffer_store_dwordx4 {vr(vS0,4)}, v{aO0}, s[{S_WS}:{S_WS+3}], s{sQS1} offen {self.cfg.stf}')
        self.t_o = k(f'buffer_store_dwordx2 {vr(vS0+4,2)}, v{aO1}, s[{S_WS}:{S_WS+3}], s{sQS2} offen {self.cfg.stf}')
    def fallback(self, k):
        sB, sXr, sOr = sT0, sHE, sQF
        mx, ninf, a0, a1, a2 = 8, 9, vM, vM + 1, vM + 2
        k.label('L_fallback')
        k('s_nop 7\ns_nop 7')
        k(f'v_mov_b32 v{ninf}, 0xff800000\nv_mov_b32 v{mx}, 0xff800000')
        for ps in range(2):
            k(f's_lshl2_add_u32 s{sB}, s{sAI}, s{sGW}\ns_sub_i32 s{sB}, 8, s{sB}\ns_max_i32 s{sB}, s{sB}, 0')
            k.label(f'L_fb{ps}')
            k(f's_lshl_b32 s{sT1}, s{sB}, 9\nv_add_u32 v{a0}, s{sT1}, v{aK0}\nv_add_u32 v{a1}, s{sT1}, v{aK1}\nv_add_u32 v{a2}, s{sT1}, v{aV}')
            self.rdK(0, 0, a0, a1)
            if ps: self.rdV(0, 0, a2)
            k(f's_cmp_eq_u32 s{sB}, 0\ns_cselect_b32 s{sXr}, -1, 0\ns_and_b32 s{sT1}, s{sB}, 7\ns_cselect_b32 s{sOr}, -1, 0\ns_waitcnt lgkmcnt(0)')
            self.qk(0, vS0)
            for r in range(16):
                k(self.dmask(r) + f'''
                s_xor_b32 s{sT2}, s{sT2}, s{sXr}
                s_xor_b32 s{sT3}, s{sT3}, s{sXr}
                s_or_b32 s{sT2}, s{sT2}, s{sOr}
                s_or_b32 s{sT3}, s{sT3}, s{sOr}
                v_cndmask_b32 v{vS0+r}, v{ninf}, v{vS0+r}, s[{sT2}:{sT3}]''')
            if ps == 0:
                for r in range(0, 16, 2): k(f'v_max3_f32 v{mx}, v{mx}, v{vS0+r}, v{vS0+r+1}')
            else:
                for r in range(16): k(f'v_sub_f32 v{vS0+r}, v{vS0+r}, v{mx}')
                for r in range(16): k(f'v_exp_f32 v{vS0+r}, v{vS0+r}')
                for r in range(0, 16, 2): k(f'v_cvt_pk_bf16_f32 v{vPP+r//2}, v{vS0+r}, v{vS0+r+1}')
                self.pv(0, 0, vPP); self.pv(0, 1, vPP)
            k.flush_hazards()
            k(f's_add_u32 s{sB}, s{sB}, 1\ns_cmp_le_u32 s{sB}, 8\ns_cbranch_scc1 L_fb{ps}')
            if ps == 0:
                k(f'v_mov_b32 v{a0}, v{mx}\nv_permlane32_swap_b32 v{mx}, v{a0}\nv_max_f32 v{mx}, v{mx}, v{a0}')
                for r in range(16): k(f'v_mov_b32 v{vO+r}, 0')
        k(f's_setpc_b64 s[{sT4}:{sT5}]')

    def ldW(self, q, kap, regs):
        k = self.k; J = []
        for T in range(5):
            def f(T=T):
                k(f's_add_u32 s{sT0}, s{sWB}, {kap*5120}')
                a, off = (aL16, T*1024) if T < 4 else (aL16b, 0)
                self.toks[('w', q)] = k(f'buffer_load_dwordx4 {vr(regs[T],4)}, v{a}, s[{S_WS}:{S_WS+3}], s{sT0} offen offset:{off} sc1')
            J.append(('w', regs[T], f))
        return J
    def ldA(self, q, kap, regs, mid=False):
        k = self.k; J = []
        for d in range(4):
            def f(d=d):
                so = sAM + d; off = kap * 1024
                if off > 3500:
                    k(f's_add_u32 s{sT0}, s{so}, {off & ~4095}'); so = sT0; off &= 4095
                if mid:
                    k(f'buffer_load_dwordx2 {vr(regs[d],2)}, v{aL8}, s[{S_WS}:{S_WS+3}], s{so} offen offset:{off} sc1')
                    self.toks[('a', q)] = k(f'buffer_load_dwordx2 {vr(regs[d]+2,2)}, v{aL8}, s[{S_WS}:{S_WS+3}], s{so} offen offset:{off+512} sc1')
                else:
                    self.toks[('a', q)] = k(f'buffer_load_dwordx4 {vr(regs[d],4)}, v{aL16}, s[{S_WS}:{S_WS+3}], s{so} offen offset:{off} sc1')
            J.append(('a', regs[d], f))
        return J
    def stage_w(self):
        k = self.k; J = []
        for q in range(4):
            for T in range(5):
                def f(q=q, T=T):
                    o = T * 1024
                    k(f's_add_u32 m0, s{sSTG}, {q*5120 + o}\ns_add_u32 s{sT0}, s{sWB}, {LATE[q]*5120 + o}')
                    k(f'buffer_load_dwordx4 v{aL16}, s[{S_WS}:{S_WS+3}], s{sT0} offen sc1 lds')
                J.append(f)
        return J
    def wo_round(self, a):
        k = self.k
        def f():
            k(f's_add_u32 m0, s{sAM+1}, {L_WO + a*4096}\ns_add_u32 s{sT0}, s{sAM+2}, {a*4096}')
            if a == 24:
                k(f's_cmp_eq_u32 s{sGW}, 3\ns_cselect_b32 s{sT1}, 1024, 0\ns_sub_u32 s{sT0}, s{sT0}, s{sT1}\ns_sub_u32 m0, m0, s{sT1}')
            self.t_wo = k(f'buffer_load_dwordx4 v{aL16}, s[{S_WS}:{S_WS+3}], s{sT0} offen sc1 lds')
        return f
    def g2_plan(self):
        self.toks = {}
        if self.S:
            k = self.k
            self.WS = WS = {a: (112 + 4*(a-1) if a < 15 else 168 + 4*a if a < 17 else 112 + 4*(a-3)) for a in range(1, 23)}
            self.wt = {}
            def w(a):
                def f():
                    k(f's_add_u32 s{sT0}, s{sAM+2}, {a*4096}')
                    self.wt[a] = k(f'buffer_load_dwordx4 {vr(WS[a],4)}, v{aL16}, s[{S_WS}:{S_WS+3}], s{sT0} offen sc1')
                return f
            self.pf = [('w', WS[a], w(a)) for a in sorted(WS, key=WS.get)]
        else:
            self.W = [[112 + 20*(q&3) + 4*T for T in range(5)] if not 4 <= q < 8 else [12 + 4*T for T in range(5)] for q in range(12)]
            self.A = [[192 + 16*(q&3) + 4*m for m in range(4)] for q in range(12)]
            self.pf = sum((self.ldW(q, EARLY[q], self.W[q]) for q in range(4)), []) + sum((self.ldA(q, EARLY[q], self.A[q]) for q in range(4)), [])
    def arrive(self, word, a, d):
        k = self.k
        k(f'v_mov_b32 v{d}, 1\ns_mov_b64 exec, 1')
        t = k(f'ds_add_rtn_u32 v{d}, v{a}, v{d} offset:{4*word}')
        k('s_mov_b64 exec, -1')
        return t
    def last_signals(self, tok, d, val, t):
        self.k.wait(lg=tok)
        self.flag_store(val, t, f'v_readfirstlane_b32 s{sT0}, v{d}\ns_cmp_lg_u32 s{sT0}, 7')
    def lds_add(self, word, val, a=8):
        self.k(f'v_mov_b32 v9, {val}\ns_mov_b64 exec, 1\nds_add_u32 v{a}, v9 offset:{4*word}\ns_mov_b64 exec, -1')
    def kstep(self, wregs, aregs, first, q, lds=None):
        k = self.k
        q = [j[2] if isinstance(j, tuple) else j for j in q]
        for T in range(5):
            if lds: k.wait(lg=lds[0][T])
            for mt in range(4):
                acc = vACC + 4 * (5 * mt + T)
                k(f"v_mfma_f32_16x16x32_bf16 {vr(acc,4)}, {vr(wregs[T],4)}, {vr(aregs[mt],4)}, {'0' if first else vr(acc,4)}")
                if q and (mt % 2 == 1 or len(q) > 10): q.pop(0)()
                if lds and lds[1] is not None and mt == 0 and T > 0: lds[0][T-1] = lds[1](T - 1)
        while q: q.pop(0)()
        if lds and lds[1] is not None: lds[0][4] = lds[1](4)
    def red_write(self, base):
        k = self.k
        for d in range(1, 4):
            k(f'''s_add_u32 s{sT0}, s{sGW}, {d}
            s_and_b32 s{sT0}, s{sT0}, 3
            s_mul_i32 s{sT0}, s{sT0}, 15360
            s_add_u32 s{sT0}, s{sT0}, {base + (d-1)*5120}
            v_add_u32 v8, s{sT0}, v{aL16}''')
            for T in range(5): r = k(f'ds_write_b128 v8, {vr(vACC + 4*(5*d+T),4)} offset:{T*1024}')
        return r
    def red_read(self, base):
        k = self.k
        k(f's_mul_i32 s{sT0}, s{sGW}, 15360\ns_add_u32 s{sT0}, s{sT0}, {base}\nv_add_u32 v8, s{sT0}, v{aL16}')
        toks = []
        for T in range(5):
            for d in range(3): r = k(f'ds_read_b128 {vr(vACC + 20 + 4*(5*d+T),4)}, v8 offset:{d*5120 + T*1024}')
            toks.append(r)
        return toks
    def sum4(self, T):
        k = self.k
        for e in range(4):
            a = vACC + 4*T + e
            k(f'v_add_f32 v{a}, v{a}, v{a+20}\nv_add_f32 v{a+40}, v{a+40}, v{a+60}')
        for e in range(4):
            a = vACC + 4*T + e
            k(f'v_add_f32 v{a}, v{a}, v{a+40}')
    def lds_wait(self, word, thr, slp, a=8):
        k = self.k; self.uid += 1; u = self.uid
        k.label(f'L_lw{u}')
        k(f'ds_read_b32 v9, v{a} offset:{4*word}\ns_waitcnt lgkmcnt(0)\nv_readfirstlane_b32 s{sT0}, v9\ns_cmp_ge_u32 s{sT0}, {thr}\ns_cbranch_scc1 L_lwd{u}')
        if slp: k(f's_sleep {slp}')
        k(f's_branch L_lw{u}')
        k.label(f'L_lwd{u}')
        k.dlg = k.nlg

    def back_half(self):
        k = self.k; c = self.cfg; S = self.S
        toks = self.toks
        pf = [j[2] for j in self.pf]
        if S and c.bprio: k('s_setprio 1')
        J = self.job_gu(vA0, sHL, 0, c.pkm > (0 if S else 1)) + self.job_gu(vA0 + 16, sHL, 512, c.pkm > 0)
        for n, j in enumerate(J):
            j()
            ep = c.epfb if S else c.epf
            if ep and n % ep == ep - 1 and pf: pf.pop(0)()
        self.t_hl = self.t_store
        k.wait(vm=self.t_kv, lg='all')
        k('s_barrier')
        self.stamp()
        if S:
            self.b_pre(); self.bq += pf
            pf = self.stage_w() + [self.wo_round(0), self.wo_round(23), self.wo_round(24)] + self.bq[:c.bin]
            self.bq = self.bq[c.bin:]
            self.attention(pf)
            self.stamp()
            self.setB()
        else:
            st = {}
            def hook():
                if c.g1map:
                    k(f"""v_lshrrev_b32 v10, 5, v{vL}
                    v_lshlrev_b32 v10, 7, v10
                    v_bfe_u32 v11, v{vL}, 4, 1
                    v_lshl_add_u32 v10, v11, 14, v10
                    s_lshl2_add_u32 s{sT0}, s{sPL2}, s{sGW}
                    s_lshl_b32 s{sPL2}, s{sT0}, 8""")
                else:
                    k(f"""v_lshrrev_b32 v10, 4, v{vL}
                    v_lshlrev_b32 v10, 13, v10
                    s_lshr_b32 s{sT0}, s{sPL2}, 3
                    s_lshl1_add_u32 s{sT0}, s{sGW}, s{sT0}
                    s_and_b32 s{sT1}, s{sPL2}, 7
                    s_lshl3_add_u32 s{sT0}, s{sT1}, s{sT0}
                    s_lshl_b32 s{sPL2}, s{sT0}, 7""")
                k(f'v_add_u32 v1, s{sSTG}, v{aL16}')
                if c.hp < 0: self.t_hp = k(f'buffer_load_dword v11, v10, s[{S_WS}:{S_WS+3}], s{sPL2} offen sc1')
            self.attention(pf, hook)
            self.stamp()
            self.setA()

    def setA(self):
        k = self.k; c = self.cfg
        W, A, toks = self.W, self.A, self.toks
        KAP = EARLY + LATE
        k(f'v_mov_b32 v8, {L_CNT}')
        def bo():
            k.wait(vm=self.t_o)
            self.t_arr = self.arrive(5, 8, 2)
        if c.fair: k('s_setprio 0')
        pend = []
        for q in range(5):
            self.stamp('g2')
            if q == c.bo_at: bo()
            if q == c.hp: self.t_hp = k(f'buffer_load_dword v11, v10, s[{S_WS}:{S_WS+3}], s{sPL2} offen sc1')
            if q == c.hc: self.poll_check(self.t_hp, 11, 10, S_WS, f's{sPL2}', 4, role=False, slp=c.slp)
            J = []
            if q >= 1:
                pend += self.ldA(q + 3, KAP[q + 3], A[q + 3])
                if q >= c.hc: J += pend; pend = []
                J += self.ldW(q + 7, KAP[q + 7], W[q + 7])
            if q == c.bo_at: J.insert(min(2, len(J)), lambda: self.last_signals(self.t_arr, 2, 5, 4))
            if q < 4:
                k.wait(vm=toks[('a', q)])
                self.kstep(W[q], A[q], q == 0, J)
            else:
                self.lds_wait(5, 8, 1)
                rd = lambda q: (lambda T: k(f'ds_read_b128 {vr(12+4*T,4)}, v1 offset:{(q-4)*5120 + T*1024}'))
                lt = [rd(4)(T) for T in range(5)]
                carry = J
        self.stamp()
        for q in range(4, 12 - c.nfuse):
            nx = q + 3
            J = carry if q == 4 else (self.ldA(nx, KAP[nx], A[nx]) if nx < 12 else [])
            if ('a', q) not in toks:
                for f in J: (f[2] if isinstance(f, tuple) else f)()
                J = []
            if q == 8:
                for d in range(1, 4):
                    J.append(lambda d=d: k(f's_add_u32 s{sT0}, s{sGW}, {d}\ns_and_b32 s{sT0}, s{sT0}, 3\ns_mul_i32 s{sT0}, s{sT0}, 15360\ns_add_u32 s{sT0}, s{sT0}, {L_RF + (d-1)*5120}\nv_add_u32 v{11+d}, s{sT0}, v{aL16}'))
                J.append(lambda: k(f's_mul_i32 s{sT1}, s{sGW}, 15360\ns_add_u32 s{sT1}, s{sT1}, {L_RF}\nv_add_u32 v10, s{sT1}, v{aL16}'))
            if q == 11 - c.nfuse:
                def c1(): self.t_c1 = k('ds_read_b32 v9, v8 offset:4')
                J.append(c1)
            k.wait(vm=max(toks[('a', q)].n, toks[('w', q)].n if q >= 8 else 0))
            self.kstep(W[q], A[q], False, J, lds=(lt, rd(q + 1) if q < 7 else None) if q < 8 else None)
            if q == 7: self.lds_add(1, 0x100)
            if q == c.og: self.lds_add(8, 1)
            if q in (4, 5, 6, 7, 8): self.stamp('g2')
        k.wait(lg=self.t_c1)
        k(f'v_readfirstlane_b32 s{sT0}, v9\ns_cmp_ge_u32 s{sT0}, 0x400\ns_cbranch_scc1 L_stg')
        self.lds_wait(1, 0x400, 1)
        k.label('L_stg')
        wq = []; since = 0
        for d in (1, 2, 3, 0):
            for q in range(12 - c.nfuse, 12):
                k.wait(vm=max(toks[('a', q)].n, toks[('w', q)].n))
                for T in range(5):
                    acc = vACC + 4 * (5 * d + T)
                    k(f'v_mfma_f32_16x16x32_bf16 {vr(acc,4)}, {vr(W[q][T],4)}, {vr(A[q][d],4)}, {vr(acc,4)}')
                    since += 1
                    if wq and wq[0][0] != d and since >= c.nfuse: k(wq.pop(0)[1]); since = 0
                    if d and q == 11: wq.append((d, f'ds_write_b128 v{11+d}, {vr(acc,4)} offset:{T*1024}'))
        while wq: k(wq.pop(0)[1])
        assert not wq
        self.stamp()
        self.stamp('g2')
        self.lds_add(0, 1)
        self.lds_wait(0, 4, 0)
        tr = []
        for T in range(5):
            for d in range(3): r = k(f'ds_read_b128 {vr(vACC + 20 + 4*(5*d+T),4)}, v10 offset:{d*5120 + T*1024}')
            tr.append(r)
        for T in range(5):
            k.wait(lg=tr[T]); self.sum4(T)
            a = vACC + 4*T; b = a + 20
            for e in range(4): k(f'v_mul_f32 v{b+e}, {hex(f2u(-LOG2E))}, v{a+e}')
            for e in range(4): k(f'v_exp_f32 v{b+e}, v{b+e}')
            for e in range(4): k(f'v_add_f32 v{b+e}, 1.0, v{b+e}')
            for e in range(4): k(f'v_rcp_f32 v{b+e}, v{b+e}')
            for e in range(4): k(f'v_mul_f32 v{a+e}, v{a+e}, v{b+e}')
            k(f'ds_write_b128 v10, {vr(a,4)} offset:{T*1024}')
        if c.gcnt:
            k(f's_lshl_b32 s{sT0}, s{sGW}, 2\nv_add_u32 v8, s{sT0}, v8')
            self.lds_add(12, 1)
            self.stamp('g2')
        else:
            k.wait(lg='all')
            self.stamp('g2')
            k('s_barrier')
        self.stamp(); self.stamp('tl')
        if 'tl' in c.grps: k('s_waitcnt lgkmcnt(0)')

    def b_pre(self):
        k = self.k; c = self.cfg
        XR, F99 = 208, 240
        k(f"""v_lshrrev_b32 v8, 2, v{vL}
        v_mul_u32_u24 v8, 1280, v8
        v_and_b32 v9, 3, v{vL}
        v_lshl_add_u32 v1, v9, 4, v8
        v_lshl_add_u32 v10, v9, 3, v8
        s_lshl2_add_u32 s{sT0}, s{sR2}, s{sGW}
        s_mul_i32 s{sT0}, s{sT0}, {16*1280}
        s_mul_i32 s{sT1}, s{sC2}, 160
        s_add_u32 s{sT0}, s{sT0}, s{sT1}
        s_bitcmp1_b32 s{sC2}, 0
        s_cselect_b32 s{sT1}, 32, 0
        s_cselect_b32 s{sT2}, 0, 128
        s_add_u32 s{sXO}, s{sT0}, s{sT1}
        s_add_u32 s{sWO_}, s{sT0}, s{sT2}""")
        def f99():
            k(f's_add_u32 s{sT0}, s{sCD}, {99*1024}')
            self.wt['x'] = k(f'buffer_load_dwordx4 {vr(F99,4)}, v{aL16}, s[{S_WS}:{S_WS+3}], s{sT0} offen sc1')
        self.bq = [lambda: k(f'buffer_load_dwordx4 {vr(XR,4)}, v1, s[{S_X}:{S_X+3}], s{sXO} offen'),
                   lambda: k(f'buffer_load_dwordx4 {vr(XR+4,4)}, v1, s[{S_X}:{S_X+3}], s{sXO} offen offset:64'),
                   lambda: k(f'buffer_load_dwordx2 {vr(XR+8,2)}, v10, s[{S_X}:{S_X+3}], s{sWO_} offen'),
                   f99]
    def setB(self):
        k = self.k; c = self.cfg
        OF = [112 + 4*q for q in range(20)]
        slot = [52 + 4*j for j in range(15)] + [192 + 4*j for j in range(12)] + [244, 248, 252]; NS = 30
        F99 = 240; XU = 12; XR = 208; WS = self.WS; wt = self.wt
        self.stamp('g2')
        k(f'v_mov_b32 v8, {L_CNT}')
        for f in self.bq: f()
        self.stamp('g2')
        k(f"""v_lshlrev_b32 v{aL8}, 3, v{vL}
        v_lshrrev_b32 v2, 3, v{vL}
        v_bfe_u32 v11, v{vL}, 2, 1
        v_lshl_add_u32 v2, v11, 7, v2
        s_lshl_b32 s{sT0}, s{sPL2}, 3
        v_add_lshl_u32 v2, v2, s{sT0}, 7
        v_add_u32 v4, {L_WO}, v{aL16}
        v_add_u32 v5, s{sAM+1}, v4
        v_add_u32 v11, 4096, v5""")
        k.wait(vm=wt['x'])
        k(f'v_and_b32 v9, 15, v{vL}\nv_lshrrev_b32 v7, 4, v{vL}\nv_lshl_add_u32 v9, v9, 2, v7\nv_lshlrev_b32 v9, 2, v9')
        for e in range(10): r = k(f'ds_bpermute_b32 v{vACC+e}, v9, v{XR+e}')
        k(f'v_and_b32 v7, 3, v{vL}\nv_lshlrev_b32 v7, 6, v7\nv_and_or_b32 v7, v{vL}, 60, v7')
        k.wait(lg=r)
        for e in range(10):
            k(f'v_lshlrev_b32 v{XU+2*e}, 16, v{vACC+e}\nv_and_b32 v{XU+2*e+1}, 0xffff0000, v{vACC+e}')
        def oarr():
            k.wait(vm=self.t_o)
            self.t_arr = self.arrive(5, 8, vACC)
        if c.boa == 0: oarr(); self.last_signals(self.t_arr, vACC, 5, vACC + 2)
        self.lds_wait(7, 8, 1)
        k(f's_setprio {c.bprio2}')
        self.stamp('g2')
        for a in range(1, 17):
            if a == c.boa: oarr()
            k.wait(vm=wt[a])
            k(f'ds_write_b128 v11, {vr(WS[a],4)} offset:{(a-1)*4096}')
            if a == c.boa: self.last_signals(self.t_arr, vACC, 5, vACC + 2)
        self.lds_add(2, 1)
        self.stamp('g2')
        self.lds_wait(2, 4, 1)
        lt = {}
        def rd(j):
            p = j - 68 if 68 <= j < 92 else j
            lt[j] = k(f'ds_read_b128 {vr(slot[j % NS],4)}, v{4 + (p >> 6)} offset:{(p & 63)*1024}')
        for j in range(NS): rd(j)
        self.lds_add(4, 1)
        self.stamp('g2')
        self.lds_wait(4, 4, 1)
        for a in range(17, 23):
            k.wait(vm=wt[a])
            k(f'ds_write_b128 v5, {vr(WS[a],4)} offset:{(a-17)*4096}')
        self.lds_add(3, 1)
        k(f'v_add_u32 v5, 65536, v4')
        self.stamp('g2')
        self.lds_wait(8, 4, 2)
        tp = k(f'buffer_load_dword v11, v2, s[{S_WS}:{S_WS+3}], 0 offen sc1')
        self.stamp('g2')
        self.poll_check(tp, 11, 2, S_WS, '0', 5, role=False, slp=c.slp)
        self.stamp()
        self.stamp('g2')
        ot = []
        def old(q):
            so = sAM + 3
            if q % 4 == 0: k(f's_add_u32 s{so}, s{sAM}, {q*1024}')
            off = (q & 3) * 1024
            if q % 5 == 4:
                k(f'buffer_load_dwordx2 {vr(OF[q],2)}, v{aL8}, s[{S_WS}:{S_WS+3}], s{so} offen offset:{off} sc1')
                ot.append(k(f'buffer_load_dwordx2 {vr(OF[q]+2,2)}, v{aL8}, s[{S_WS}:{S_WS+3}], s{so} offen offset:{off+512} sc1'))
            else:
                ot.append(k(f'buffer_load_dwordx4 {vr(OF[q],4)}, v{aL16}, s[{S_WS}:{S_WS+3}], s{so} offen offset:{off} sc1'))
        k(f's_setprio {c.bp5}')
        for q in range(c.oa): old(q)
        if c.bp4 is not None: k(f's_setprio {c.bp4}')
        for j in range(100):
            q, T = divmod(j, 5)
            if j in (0, 50, 99): self.stamp('g2')
            if j + NS - 1 == 68: self.lds_wait(3, 4, 0)
            if j == 80: k(f's_mul_i32 s{sT1}, s{sGW}, 15360\ns_add_u32 s{sT1}, s{sT1}, {L_RF}\nv_add_u32 v11, s{sT1}, v{aL16}\ns_lshl_b32 s{sT0}, s{sGW}, 2\nv_add_u32 v8, s{sT0}, v8')
            if j >= 1 and j + NS - 1 < 99: rd(j + NS - 1)
            k.wait(vm=ot[q], lg=lt[min(j + 4, 98)] if T == 0 else None)
            acc = vACC + 4 * T
            k(f"v_mfma_f32_16x16x32_bf16 {vr(acc,4)}, {vr(slot[j % NS] if j < 99 else F99,4)}, {vr(OF[q],4)}, {'0' if q == 0 else vr(acc,4)}")
            if T == 4 and len(ot) < 20: old(len(ot))
        self.stamp()
        if c.gcnt: self.lds_wait(12, 1, 0)
        else: k('s_barrier')
        self.stamp()
        self.stamp('g2'); self.stamp('tl')
        GR = OF[0]
        tr = [k(f'ds_read_b128 {vr(GR+4*T,4)}, v11 offset:{T*1024}') for T in range(5)]
        tb = []
        for T in range(5):
            k.wait(lg=tr[T])
            for e in range(4): k(f'v_fmac_f32 v{XU+4*T+e}, v{vACC+4*T+e}, v{GR+4*T+e}')
            for e in range(2): k(f'v_cvt_pk_bf16_f32 v{XR+12+2*T+e}, v{XU+4*T+2*e}, v{XU+4*T+2*e+1}')
            for e in range(2): r = k(f'ds_bpermute_b32 v{XR+2*T+e}, v7, v{XR+12+2*T+e}')
            tb.append(r)
        k.wait(lg=tb[1]); k(f'buffer_store_dwordx4 {vr(XR,4)}, v1, s[{S_OUT}:{S_OUT+3}], s{sXO} offen {c.outf}')
        k.wait(lg=tb[3]); k(f'buffer_store_dwordx4 {vr(XR+4,4)}, v1, s[{S_OUT}:{S_OUT+3}], s{sXO} offen offset:64 {c.outf}')
        k.wait(lg=tb[4]); k(f'buffer_store_dwordx2 {vr(XR+8,2)}, v10, s[{S_OUT}:{S_OUT+3}], s{sWO_} offen {c.outf}')

    def finish(self):
        k = self.k; c = self.cfg
        if c.stamps:
            self.stamp('tl')
            if 'tl' in c.grps: k('s_waitcnt lgkmcnt(0)')
            k('s_waitcnt vmcnt(0)')
            self.stamp('fin')
            k(f's_waitcnt lgkmcnt(0)\ns_mov_b32 s{sST0 + self.nst - 1}, s{sSTT}')
            k(f's_lshl3_add_u32 s{sT0}, s2, s{sW}\ns_lshl_b32 s{sT0}, s{sT0}, 6\ns_add_u32 s{sT0}, s{sT0}, {STAMP}\nv_mov_b32 v1, 0\ns_mov_b64 exec, 1')
            if self.nst < 14: k(f'v_mov_b32 v2, s101\nbuffer_store_dword v2, v1, s[{S_WS}:{S_WS+3}], s{sT0} offen offset:60')
            for n in range(self.nst):
                k(f'v_mov_b32 v2, s{sST0+n}\nbuffer_store_dword v2, v1, s[{S_WS}:{S_WS+3}], s{sT0} offen offset:{4*n}')
        k('s_endpgm')

    def build(self):
        k = self.k
        self.prologue()
        pre = k.snap(); nst = self.nst
        st = []
        self.S = 1; self.stok = {}
        gb = self.phase0B(); next(gb)
        mid = (k.snap(), self.nst, self.stok)
        self.S = 0; k.restore(pre); self.nst = nst; self.stok = {}
        k.label('L_setA')
        self.phase0A()
        k.flush_hazards()
        k('s_branch L_mainA')
        st.append((k.snap(), self.nst, self.stok))
        self.S = 1; k.restore(mid[0]); self.nst, self.stok = mid[1:]
        for _ in gb: pass
        k.flush_hazards()
        st.append((k.snap(), self.nst, self.stok))
        for S in (1, 0):
            self.S = S
            snap, self.nst, self.stok = st[S]; k.restore(snap)
            if not S: k.label('L_mainA')
            self.gemm1()
            self.back_half()
            self.finish()
        self.tail.append(self.fallback)
        for t in self.tail:
            k.win = []
            t(k)
        k.label('L_end')
        k('s_endpgm')
        sk = self.cfg.skip
        if 'm' in sk: k.out = [l for l in k.out if 'v_mfma' not in l]
        if 'M' in sk: k.out = [l for l in k.out if 'v_mfma_f32_16x16x32' not in l]
        if 'e' in sk: k.out = [l for l in k.out if 'v_exp_f32' not in l and 'v_rcp_f32' not in l]
        if 'S' in sk: k.out = [l for l in k.out if not ('buffer_store_dwordx4' in l and 'sc1' in l)]
        if 'L' in sk: k.out = [l for l in k.out if not ('buffer_load_dwordx4' in l and 'sc1' in l)]
        import re
        def drop(pat): k.out = [l for l in k.out if not re.search(pat, l)]
        if 'X' in sk: drop(r'buffer_load_dwordx4 v85, s\[4:7\]')
        if 'U' in sk: drop(r'buffer_load_dwordx4 v5, s\[64:67\]')
        if 'V' in sk: drop(r'buffer_load_dwordx4 v5, s\[16:19\]')
        if 'K' in sk: drop(r'buffer_load_dwordx4 v28, s\[20:23\]')
        if 'G' in sk: drop(r'buffer_load_dwordx4 v6, s\[20:23\], s58 offen sc1 lds')
        if 'H' in sk: drop(r'buffer_load_dwordx4 v\[(19[2-9]|20[0-7]|22[4-9]|23[0-9]):\d+\], v6, s\[20:23\], s\d+ offen offset')
        if 'O' in sk: drop(r'buffer_load_dwordx4 v\[\d+:\d+\], v6, s\[20:23\], s43 offen')
        if 'R' in sk: drop(r'ds_read_b64_tr_b16 v\[(34|38|42|46):')
        if 'r' in sk:
            drop(r'ds_read_b64_tr_b16 v\[(36|38|44|46):\d+\], v[1-3] offset:(?!1[0-9]{5})')
            k.out = [l.replace('v[36:39], v[', 'v[40:43], v[').replace('v[44:47], v[', 'v[32:35], v[') if 'v_mfma_f32_32x32x16' in l and 'v[96:111], v' not in l else l for l in k.out]
        if 'D' in sk: k.out = [l for l in k.out if not ('buffer_load_dwordx4' in l and 'lds' in l and 'sc1' not in l)]
        return self.wrap()

    def wrap(self):
        hdr = ''.join(open('recurrent_scan__sliding_block__swiglu_ffn__prompt.s.ref').readlines()[:11]) if self.cfg.header else ''
        return f'''{hdr}; @launch grid=(256,1,1) block=(512,1,1) lds={LDS_BYTES}
.amdgcn_target "amdgcn-amd-amdhsa--gfx950"
.text
.p2align {self.cfg.al}
{self.cfg.pad}.globl {KN}
.p2align 8
.type {KN},@function
{KN}:
{self.k.text()}.section .rodata,"a"
.p2align 6
.amdhsa_kernel {KN}
  .amdhsa_next_free_vgpr 256
  .amdhsa_next_free_sgpr 102
  .amdhsa_accum_offset 256
  .amdhsa_group_segment_fixed_size 0
  .amdhsa_kernarg_size 80
  .amdhsa_user_sgpr_count 2
  .amdhsa_user_sgpr_kernarg_segment_ptr 1
  .amdhsa_system_sgpr_workgroup_id_x 1
.end_amdhsa_kernel
'''
Cfg.clrwg = 0; Cfg.rrA = (0, 2, 4, 6); Cfg.rrB = (1, 3, 5, 7); Cfg.rot = None; Cfg.pkm = 0; Cfg.fin = 1; Cfg.pka = 2; Cfg.pkn = 1; Cfg.slot0 = (0,0,0,0,1,1,1,1); Cfg.slot2 = (2,)*8; Cfg.slot1 = (5,6)*4; Cfg.u1 = 1; Cfg.u2 = 5; Cfg.bpos = (0,1,1); Cfg.sb = 1; Cfg.jit = None; Cfg.al = 12; Cfg.pad = ''; Cfg.pknt = 'nt'; Cfg.gcnt = 1; Cfg.idle = None; Cfg.og = 6; Cfg.boa = 0; Cfg.fair = 1; Cfg.fairA = (3,3,2,2,1,1,0,0); Cfg.fairB = (3,3,3,2,2,1,1,1); Cfg.ed = 4; Cfg.eap = 1; Cfg.eb = 14; Cfg.hoistb = 2; Cfg.epfb = 0; Cfg.bp5 = 0; Cfg.nfuse = 2; Cfg.bin = 12; Cfg.bn1 = 99; Cfg.bn2 = 0; Cfg.g1map = 0; Cfg.stf = 'sc1'; Cfg.xp = 3; Cfg.rv = 2; Cfg.bp4 = 0; Cfg.bp3 = 99; Cfg.bh_chk = 5; Cfg.touch = 0; Cfg.tstep = 1; Cfg.bnp = 30; Cfg.op = 12; Cfg.oa = 10; Cfg.bprio2 = 0; Cfg.blast = 1; Cfg.hp = 0; Cfg.hc = 2; Cfg.alast = 0; Cfg.nslot = 2; Cfg.dp1 = 2; Cfg.dp2 = 3; Cfg.dpx = 8; Cfg.bprio = 1; Cfg.w0early = 1; Cfg.dm1 = 2; Cfg.dm2 = 0; Cfg.skip = ''; Cfg.bh_skew = 0; Cfg.bdefer = 10; Cfg.ogate = 0; Cfg.outf = ''

def make(**kw):
    c = Cfg()
    for a, b in kw.items():
        assert hasattr(c, a), a
        setattr(c, a, b)
    g = Gen(c)
    return g.build(), g

if __name__ == '__main__':
    s, g = make(stamps=True)
    open('k.s', 'w').write(s)
    print(g.k.count, 'nops', g.k.nops)
```

```python
import re, threading

def regs_of(tok):
    tok = tok.strip()
    tok = tok.lstrip('-')
    if tok.startswith('abs(') or tok.startswith('neg('): tok = tok[4:-1]
    if tok.startswith('|'): tok = tok.strip('|')
    m = re.fullmatch(r'([vsa])(\d+)', tok)
    if m: return {m.group(1) + m.group(2)}
    m = re.fullmatch(r'([vsa])\[(\d+):(\d+)\]', tok)
    if m: return {m.group(1) + str(i) for i in range(int(m.group(2)), int(m.group(3)) + 1)}
    if tok in ('vcc', 'vcc_lo', 'vcc_hi'): return {'vcc'}
    if tok in ('exec', 'exec_lo', 'exec_hi'): return {'exec'}
    if tok == 'm0': return {'m0'}
    return set()

TRANS = ('v_exp_f32', 'v_log_f32', 'v_rcp_f32', 'v_rsq_f32', 'v_sqrt_f32', 'v_sin_f32', 'v_cos_f32')

class I:
    __slots__ = ('text', 'op', 'kind', 'rd', 'wr', 'a', 'b', 'c', 'passes', 'ws', 'store_data', 'dpp', 'trans')
    def __init__(self, text):
        self.text = text
        body = text.split(';')[0].strip()
        parts = body.split(None, 1)
        op = parts[0]
        self.op = op
        rest = parts[1] if len(parts) > 1 else ''
        ops = [o.strip() for o in re.split(r',(?![^\[]*\])', rest)] if rest else []
        mods = ''
        if ops:
            last = ops[-1].split(None, 1)
            ops[-1] = last[0]
            mods = last[1] if len(last) > 1 else ''
        self.rd = set(); self.wr = set(); self.a = self.b = self.c = set()
        self.passes = 0; self.ws = 1; self.store_data = set(); self.dpp = False; self.trans = False
        R = [regs_of(o) for o in ops]
        base = re.sub(r'_(e32|e64|dpp|sdwa)$', '', op)
        if op.startswith('v_mfma'):
            self.kind = 'mfma'
            self.wr = R[0]; self.a = R[1]; self.b = R[2]; self.c = R[3]
            self.rd = R[1] | R[2] | R[3]
            self.passes = 8 if '32x32' in op else 4
            assert 'bf16' in op
        elif op.startswith('v_'):
            self.kind = 'valu'
            self.dpp = op.endswith('_dpp')
            self.trans = base in TRANS
            self.wr = set(R[0])
            srcs = R[1:]
            if base in ('v_add_co_u32', 'v_addc_co_u32', 'v_sub_co_u32'):
                self.wr |= R[1]; srcs = R[2:]
            for r in srcs: self.rd |= r
            if base in ('v_fmac_f32', 'v_dot2c_f32_bf16', 'v_writelane_b32'): self.rd |= R[0]
            if 'permlane' in base and 'swap' in base:
                self.wr |= R[1]; self.rd |= R[0]
            assert not base.startswith('v_cmpx')
        elif op.startswith('ds_'):
            self.kind = 'ds'
            if op.startswith('ds_read') or op.startswith('ds_bpermute') or '_rtn_' in op:
                self.wr = R[0]
                for r in R[1:]: self.rd |= r
            else:
                for r in R: self.rd |= r
                if 'addtid' in op: self.rd |= {'m0'}
        elif op.startswith('buffer_') or op.startswith('global_'):
            self.kind = 'vmem'
            lds = ' lds' in (' ' + mods) or 'load_lds' in op
            if 'load' in op and not lds:
                self.wr = R[0]
                for r in R[1:]: self.rd |= r
            else:
                for r in R: self.rd |= r
                if lds: self.rd |= {'m0'}
                if 'store' in op and ('x4' in op or 'x3' in op):
                    self.store_data = R[0] if op.startswith('buffer_') else R[1]
        elif op.startswith('s_'):
            self.kind = 'salu'
            if op == 's_nop':
                self.ws = int(ops[0], 0) + 1
            elif op.startswith(('s_cmp', 's_bitcmp', 's_waitcnt', 's_barrier', 's_branch', 's_cbranch', 's_sleep', 's_setprio', 's_endpgm', 's_setpc')):
                for r in R: self.rd |= r
            else:
                if R: self.wr = set(R[0])
                for r in R[1:]: self.rd |= r
                if 'saveexec' in op: self.wr |= {'exec'}
        else:
            raise ValueError(text)

def isv(s): return {r for r in s if r[0] == 'v' and r != 'vcc'}
def iss(s): return {r for r in s if r[0] == 's' or r == 'vcc'}

def need(p, c):
    n = 0
    if p.kind == 'valu':
        pv = isv(p.wr); ps = iss(p.wr)
        if c.kind == 'mfma' and pv & c.rd: n = max(n, 2)
        if c.kind == 'valu':
            if p.trans and not c.trans and pv & c.rd: n = max(n, 1)
            if p.trans and c.trans and pv & c.rd: n = max(n, 1)
            if 'permlane' in c.op and pv & c.rd: n = max(n, 2)
            if ('readlane' in c.op or 'readfirstlane' in c.op) and pv & c.rd: n = max(n, 1)
            if c.dpp and pv & c.rd: n = max(n, 2)
            if ps & c.rd: n = max(n, 4 if ('readlane' in c.op or 'writelane' in c.op) else 2)
        if c.kind == 'vmem' and ps & c.rd: n = max(n, 5)
        if c.kind == 'salu' and ps & c.rd: n = max(n, 1)
    if p.kind == 'mfma':
        big = 12 if p.passes == 8 else 8
        if c.kind == 'valu' and p.wr & (c.rd | c.wr): n = max(n, big)
        if c.kind in ('vmem', 'ds') and p.wr & (c.rd | c.wr): n = max(n, big)
        if c.kind == 'mfma':
            if p.wr & (c.a | c.b): n = max(n, big)
            if p.wr & (c.c | c.wr):
                same = (p.wr == c.c and p.passes == c.passes and c.wr == c.c)
                if not same: n = max(n, big - 2)
        if c.kind == 'valu' and p.c & c.wr: n = max(n, 7 if p.passes == 8 else 3)
    if p.kind == 'salu' and 'm0' in p.wr and c.kind in ('vmem', 'ds') and 'm0' in c.rd: n = max(n, 1)
    if p.store_data and p.store_data & c.wr: n = max(n, 2)
    return n

class Tok:
    __slots__ = ('n',)
    def __init__(self, n): self.n = n

class K:
    def __init__(self):
        self.out = []
        self.win = []
        self.nvm = 0; self.dvm = 0
        self.nlg = 0; self.dlg = 0
        self.nops = 0
        self.cond = []
        self.lab = 0
        self.pend = set(); self.masked = False; self.side = None
        self.count = {}
    def raw(self, s): self.out.append(s)
    def c(self, s): self.out.append('    ; ' + s)
    def label(self, n):
        self.out.append(n + ':')
        self.pend.discard(n)
    def _one(self, t):
        sd = self.side
        if sd is not None and threading.current_thread() is sd.th:
            sd.point(not self.pend and not self.masked, sd.cost(t))
            m = re.match(r's_c?branch\S* (\S+)', t)
            if m and not m.group(1).startswith('L_pslow'): self.pend.add(m.group(1))
            if re.match(r's_mov_b(32|64) exec', t): self.masked = not t.endswith(', -1')
        ins = I(t)
        d = 0; pad = 0
        for p in reversed(self.win):
            nd = need(p, ins)
            if nd - d > pad: pad = nd - d
            d += p.ws
            if d >= 20: break
        if pad > 0:
            self.nops += 1
            n = I(f's_nop {pad-1}')
            self.out.append('    ' + n.text); self.win.append(n)
        self.out.append('    ' + t); self.win.append(ins)
        if len(self.win) > 24: self.win = self.win[-24:]
        self.count[ins.kind] = self.count.get(ins.kind, 0) + 1
        if ins.kind == 'vmem':
            self.nvm += 1; return Tok(self.nvm)
        if ins.kind == 'ds':
            self.nlg += 1; return Tok(self.nlg)
        return None
    def __call__(self, s):
        r = None
        for x in s.strip('\n').split('\n'):
            x = x.strip()
            if not x: continue
            if x.endswith(':'): self.label(x[:-1])
            elif x.startswith('.'): self.out.append(x)
            elif x.startswith(';'): self.out.append('    ' + x)
            else: r = self._one(x)
        return r
    def wait(self, vm=None, lg=None):
        sd = self.side
        if sd is not None and threading.current_thread() is sd.th:
            sd.point(not self.pend and not self.masked, 0)
            self.pend.add('#wait')
            try: self._wait(vm, lg)
            finally: self.pend.discard('#wait')
        else: self._wait(vm, lg)
    def _wait(self, vm, lg):
        parts = []
        if vm is not None:
            n = vm.n if isinstance(vm, Tok) else (self.nvm if vm == 'all' else vm)
            if n > self.dvm:
                cnt = min(self.nvm - n, 63); assert cnt >= 0
                newer = [c for c in self.cond if c[0] >= n]
                self.cond = newer
                if newer:
                    big = max(newer, key=lambda c: c[1])
                    newer = [c for c in newer if c[2] == big[2]] if big[1] > 1 else [big]
                self.dvm = self.nvm - cnt
                if newer:
                    assert len({c[1] for c in newer}) == 1
                    self.lab += 1
                    self._one(f's_waitcnt vmcnt({min(cnt + newer[0][1], 63)})')
                    self(newer[0][2](newer))
                    self._one(f's_cbranch_scc1 L_cw{self.lab}')
                    self._one(f's_waitcnt vmcnt({cnt})')
                    self.label(f'L_cw{self.lab}')
                else:
                    parts.append(f'vmcnt({cnt})')
        if lg is not None:
            n = lg.n if isinstance(lg, Tok) else (self.nlg if lg == 'all' else lg)
            if n > self.dlg:
                cnt = min(self.nlg - n, 15)
                parts.append(f'lgkmcnt({cnt})'); self.dlg = self.nlg - cnt
        if parts: self._one('s_waitcnt ' + ' '.join(parts))
    def flush_hazards(self):
        d = 0; pad = 0
        for p in reversed(self.win):
            worst = 0
            if p.kind == 'mfma': worst = 12 if p.passes == 8 else 8
            elif p.kind == 'valu': worst = 5 if iss(p.wr) else 2
            elif p.store_data: worst = 2
            elif 'm0' in p.wr: worst = 1
            pad = max(pad, worst - d); d += p.ws
        if pad > 0: self._one(f's_nop {pad-1}')
    def snap(self): return (list(self.win), self.nvm, self.dvm, self.nlg, self.dlg, list(self.cond))
    def restore(self, s):
        self.win = list(s[0]); self.nvm, self.dvm, self.nlg, self.dlg = s[1:5]; self.cond = list(s[5])
    def text(self): return '\n'.join(self.out) + '\n'

def vr(b, n=1): return f'v{b}' if n == 1 else f'v[{b}:{b+n-1}]'
def sr(b, n=1): return f's{b}' if n == 1 else f's[{b}:{b+n-1}]'

class Side:
    def __init__(self, k, items, w=(1, 1, 1, 1)):
        self.w = w; self.k = k; self.items = items; self.credit = 0; self.n = 0; self.done = False; self.pos = 0; self.err = None
        self.a = threading.Semaphore(0); self.b = threading.Semaphore(0)
        self.th = threading.Thread(target=self.run, daemon=True); self.th.start()
    def run(self):
        self.a.acquire()
        try:
            for it in self.items:
                if isinstance(it, int):
                    while self.pos < it: self.b.release(); self.a.acquire()
                else: it()
        except BaseException as e: self.err = e
        self.done = True; self.b.release()
    def cost(self, t):
        w = self.w
        return w[0] if t.startswith('s_') else w[2] if t.startswith(TRANS) else w[3] if t.startswith('buffer_') else w[1]
    def point(self, may_stop, cost):
        while may_stop and self.credit <= 0: self.b.release(); self.a.acquire()
        self.credit -= cost; self.n += cost
    def give(self, n, pos):
        if self.done: return
        self.pos = pos; self.credit = min(self.credit + n, max(n, 1) * 2); self.k.side = self
        self.a.release(); self.b.acquire(); self.k.side = None
        if self.err: raise self.err
    def finish(self): self.give(10**6, 10**6); assert self.done
```

```python
import sys, math, struct
from emit import *

KN = 'recurrent_scan__sliding_block__swiglu_ffn__prompt_kernel'

FL   = 0x0
STATS= 0x10000
WEXT = 0x20000
STAMP= 0x60000
QKV  = 0x100000
HIM  = 0x900000
OIM  = 0x1000000
W2P  = 0x1400000
WS_BYTES = 0x1800000
OOB  = 0x7f000000

L_RING = 0
L_X    = 65536
CH     = 6208
L_KV   = 65536
L_ONES = L_KV + 10 * CH + 64
L_EXT  = 65536 + 68608
L_PACK = L_EXT + 10240
LDS_BYTES = 163840
L_CNT = 162816; L_RF = 0; L_WO = 61440
assert L_EXT == L_WO + 71 * 1024
assert 10 * CH + 64 + 6400 <= 68608 and LDS_BYTES <= 163840

S_X, S_Q, S_G, S_U, S_WS, S_DBG, S_WD, S_WO, S_OUT, S_TMP = 4, 8, 12, 16, 20, 24, 28, 32, 36, 40
S_U0, S_U1 = 36, 64
sI, sG, sW, sGW, sXO, sWO_, sM0X, sM0W = 44, 45, 46, 47, 48, 49, 50, 51
sFLAG, sPOLL, sQF, sHE, sHL, sQS1, sQS2 = 52, 53, 54, 55, 56, 57, 3
sT0, sT1, sT2, sT3, sT4, sT5 = 58, 59, 60, 61, 62, 63
sPKS, sPKL, sPKD0, sPKD1, sPKD2 = 51, 24, 25, 26, 27
sAI, sAJ, sR2, sC2, sCNT = 69, 70, 71, 72, 73
sCO, sCD, sC2O, sC3O = 74, 75, 76, 77
sWB, sPL2, sKVS, sKVM, sSTG = 78, 79, 81, 82, 83
sSTR, sADV, sC1, sSLOT, sRL = 68, 84, 85, 53, 82
sAM = 40
sSTT = 86; sST0 = 88

vL = 0
vWR0, vWR1, vWR2 = 1, 2, 3
vEB = 3; vVAR = 10; vCC = 16
vDA, vDB = 4, 5
aL16, aL16b = 6, 7
vEX, vP = 8, 9
vST = 10
vMEAN = 12
vRS, vC1, vHO, vQO = 16, 17, 18, 19
vSW = 28
vT = 20
vFR = 32
vA0 = 48
vA1 = 80
vX = 96
vSEL = vA1 + 8; vCSA = vA1 + 12; vCSO = vA1 + 7; vCSG = vA1 + 6; vCSB = vX + 120
aK0, aK1, aV, aO0, aO1, aL8 = 86, 87, 3, 4, 5, 3
vQ = 80; vM = 88; vS0 = 48; vS1 = 64; vS2 = 192; vO = 96; vPP = 32
vKB = ((20, 24), (28, 26)); vVB = (40, 12)
vACC = 32
EARLY = (0, 1, 2, 3); LATE = (4, 5, 6, 7, 8, 9, 10, 11)

LOG2E = 1.4426950408889634
def f2u(x): return struct.unpack('<I', struct.pack('<f', x))[0]

DOC = '\n; separate straight-line streams.  Hand-offs between workgroups use write-through stores into d_ws, one\n;  GEMM1   : 128 x 320 tile of x @ [wqkv | w_gate | w_up], x held in registers, weights through an LDS ring;\n;            LayerNorm is applied exactly as rstd * (x @ W - mean * colsum(W)); SwiGLU in the epilogue\n;  attn    : 128 queries x 2 heads, window 256.  exp2 of the raw scores is kept only when every row sum lies\n'
class Cfg:
    header = False
    stamps = False; clock = 's_memtime'; grps = ['main', 'fin']
    spin = 16000
    g2map = 1
    fa = 4; pa = 6
    cb = 1; cbd = 2
    pk = 4; pkd = 2
    c2 = 4
    fb = 11; pb = 14
    fq = 18; pq = 21
    w0early = 0
    hoist_hi = 22
    hoist = 3
    kvn = 5
    bh_at = 3
    epf = 12
    bo_at = 3
    slp = 8; slp0 = 16
    prio = 0

class Gen:
    def __init__(self, cfg):
        self.cfg = cfg; self.k = K(); self.tail = []; self.nst = 0; self.uid = 0
        self.known = {}; self.counts = {}

    def jitter(self):
        k = self.k; self.uid += 1; u = self.uid
        seed, mask, thr = self.cfg.jit
        h = (seed * 2654435761 + u * 40503) & 0x7fffffff | 1
        k(f'''s_lshl3_add_u32 s100, s2, s{sW}
        s_add_u32 s100, s100, {u}
        s_mul_i32 s100, s100, {h}
        s_lshr_b32 s101, s100, 13
        s_xor_b32 s100, s100, s101
        s_mul_i32 s100, s100, 0x2c1b3c6d
        s_lshr_b32 s101, s100, 24
        s_cmp_ge_u32 s101, {thr}
        s_cbranch_scc1 L_jd{u}
        s_bfe_u32 s100, s100, 0x80008
        s_and_b32 s100, s100, {mask}''')
        k.label(f'L_jl{u}')
        k(f's_sleep 1\ns_sub_u32 s100, s100, 1\ns_cbranch_scc0 L_jl{u}')
        k.label(f'L_jd{u}')
    def stamp(self, grp='main'):
        if self.cfg.jit and grp in ('p0', 'p1', 'p3', 'at', 'g2', 'jj'): self.jitter()
        if not self.cfg.stamps or grp not in self.cfg.grps: return
        k = self.k
        if self.nst > 0: k(f's_mov_b32 s{sST0 + self.nst - 1}, s{sSTT}')
        k(f"{self.cfg.clock if self.cfg.clock != 'dual' else ('s_memrealtime' if self.S else 's_memtime')} s[{sSTT}:{sSTT+1}]")
        self.nst += 1
        assert self.nst <= 14
    def poll_check(self, tok, vd, voff, srd, soff, thr, role=True, wide=False, slp=6):
        k = self.k; self.uid += 1; u = self.uid
        if 'n' in self.cfg.skip: return
        if role:
            k(f's_cmp_lg_u32 s{sGW}, 0\ns_cbranch_scc1 L_pok{u}\ns_waitcnt vmcnt({k.nvm - tok})')
        else: k.wait(vm=tok)
        mn = f'v_min3_u32 v{vd}, v{vd}, v{vd+1}, v{vd+2}\nv_min_u32 v{vd}, v{vd}, v{vd+3}\n' if wide else ''
        ld = f'buffer_load_dwordx4 v[{vd}:{vd+3}]' if wide else f'buffer_load_dword v{vd}'
        k(f'{mn}v_cmp_le_u32 vcc, {thr}, v{vd}\ns_cmp_eq_u64 vcc, -1\ns_cbranch_scc0 L_pslow{u}')
        k.label(f'L_pok{u}')
        def slow(k):
            k.label(f'L_pslow{u}')
            k(f's_mov_b32 s{sCNT}, 0')
            k.label(f'L_ploop{u}')
            if self.cfg.stamps: k(f's_add_u32 s101, s101, {1 << (5 * (thr if srd == S_WS else 0))}')
            k(f's_sleep {slp}\n{ld}, v{voff}, s[{srd}:{srd+3}], {soff} offen sc1\ns_waitcnt vmcnt(0)')
            k(f'{mn}v_cmp_le_u32 vcc, {thr}, v{vd}\ns_cmp_eq_u64 vcc, -1\ns_cbranch_scc1 L_pok{u}')
            k(f's_add_u32 s{sCNT}, s{sCNT}, 1\ns_cmp_lt_u32 s{sCNT}, {self.cfg.spin}\ns_cbranch_scc1 L_ploop{u}\ns_branch L_pok{u}')
        self.tail.append(slow)
    def flag_store(self, val, t=vT+10, test=None, srd=S_WS, who=None):
        k = self.k; self.uid += 1; u = self.uid
        k(test or f's_cmp_lg_u32 s{sGW}, 0')
        k(f's_cbranch_scc1 L_nf{u}\nv_mov_b32 v{t}, {val}\nv_mov_b32 v{t+1}, 0\ns_mov_b64 exec, 1')
        k(f"buffer_store_dword v{t}, v{t+1}, s[{srd}:{srd+3}], {f's{sT3}' if srd == S_DBG else f's{sFLAG}'} offen sc1")
        k.nvm -= 1
        if who and self.cfg.cnd: k.cond.append((k.nvm, 1, lambda nw: who, -1))
        k('s_mov_b64 exec, -1')
        k.label(f'L_nf{u}')

    def prologue(self):
        k = self.k; c = self.cfg
        k('s_cmp_ge_u32 s2, 256\ns_cbranch_scc1 L_end')
        k(f"""s_load_dwordx2 s[{S_X}:{S_X+1}], s[0:1], 0
        s_bitcmp1_b32 s2, {7 if self.cfg.g1map else 6}
        s_cselect_b32 s{sT0}, 8, 32
        s_cselect_b32 s{sT1}, 8, 40
        s_load_dwordx2 s[{S_U0}:{S_U0+1}], s[0:1], s{sT0}
        s_load_dwordx2 s[{S_U1}:{S_U1+1}], s[0:1], s{sT1}
        s_load_dwordx2 s[{S_Q}:{S_Q+1}], s[0:1], 8
        s_load_dwordx2 s[{S_WS}:{S_WS+1}], s[0:1], 72
        s_load_dwordx2 s[{S_DBG}:{S_DBG+1}], s[0:1], 64""")
        if c.stamps: k(f"{c.clock if c.clock != 'dual' else 's_memtime'} s[{sSTT}:{sSTT+1}]\ns_mov_b32 s101, 0"); self.nst = 1
        k(f'v_lshrrev_b32 v1, 6, v0\nv_and_b32 v{vL}, 63, v0\nv_readfirstlane_b32 s{sW}, v1')
        self.prologue2(); self.prologue3()
        k(f's_cmp_lt_u32 s{sW}, 4\ns_cbranch_scc1 L_setA')

    def prologue2(self):
        k = self.k; t = vT
        if self.cfg.g1map:
            k(f"""s_bfe_u32 s{sI}, s2, 0x40003
            s_and_b32 s{sT1}, s2, 7
            s_lshr_b32 s{sT0}, s2, 7
            s_lshl1_add_u32 s{sG}, s{sT1}, s{sT0}
            s_lshl_b32 s{sT2}, s2, 7
            s_bfe_u32 s{sT1}, s2, 0x20001""")
        else:
            k(f"""s_and_b32 s{sI}, s2, 1
            s_bfe_u32 s{sT0}, s2, 0x30003
            s_lshl3_add_u32 s{sI}, s{sI}, s{sT0}
            s_bfe_u32 s{sT1}, s2, 0x20001
            s_lshr_b32 s{sT0}, s2, 6
            s_lshl2_add_u32 s{sG}, s{sT1}, s{sT0}""")
        k(f"""s_and_b32 s{sGW}, s{sW}, 3
        s_mov_b32 s{S_X+2}, {2048*1280}
        s_mov_b32 s{S_X+3}, 0x20000
        s_mul_i32 s{sC3O}, s{sT1}, 768
        s_and_b32 s{sT2}, s{sT2 if self.cfg.g1map else 2}, 128
        s_add_u32 s{sT2}, s{sT2}, s{sC3O}
        s_and_b32 s{sT3}, s{sG}, 14
        s_lshl_b32 s{sT3}, s{sT3}, 7
        s_movk_i32 s{sT4}, 3072
        s_bitcmp1_b32 s2, {7 if self.cfg.g1map else 6}
        s_cselect_b32 s{sC1}, s{sT3}, s{sT2}
        s_cselect_b32 s{sSTR}, 3840, s{sT4}
        s_cselect_b32 s{sT5}, {'128, 0' if self.cfg.m16 else '0xa0, 32'}
        s_mul_i32 s{S_U0+2}, s{sSTR}, 640
        s_mov_b32 s{S_U0+3}, 0x20000
        s_mov_b32 s{S_U1+2}, s{S_U0+2}
        s_mov_b32 s{S_U1+3}, 0x20000""")
        k(f"""v_lshrrev_b32 v{t}, 3, v{vL}
        v_and_b32 v{t+1}, 7, v{vL}
        v_lshlrev_b32 v{t+1}, 4, v{t+1}""")
    def prologue3(self):
        k = self.k; t = vT
        k(f"""s_lshl_b32 s{sM0X}, s{sW}, 11
        s_lshl3_add_u32 s{sXO}, s{sI}, s{sW}
        s_mul_i32 s{sXO}, s{sXO}, {16*1280}
        v_and_b32 v{t+3}, 48, v{vL}
        v_xor_b32 v{t+3}, v{t+1}, v{t+3}
        v_mul_u32_u24 v{vA1+4}, 1280, v{t}
        v_add_u32 v{vA1+4}, v{vA1+4}, v{t+3}
        v_xor_b32 v{vA1+5}, 64, v{vA1+4}
        v_add_u32 v{vA1+5}, {10240-1024}, v{vA1+5}""")
        if self.cfg.rot:
            a, b, m = self.cfg.rot
            k(f's_and_b32 s{sCNT}, s{sI}, 7\ns_mul_i32 s{sM0W}, s{sCNT}, {a}\ns_and_b32 s{sCNT}, s{sG}, 3\ns_mul_i32 s{sCNT}, s{sCNT}, {b}\ns_add_u32 s{sM0W}, s{sM0W}, s{sCNT}')
            k(f's_mul_i32 s{sCNT}, s{sM0W}, {-(-65536 // m)}\ns_lshr_b32 s{sCNT}, s{sCNT}, 16\ns_mul_i32 s{sCNT}, s{sCNT}, {m}\ns_sub_u32 s{sM0W}, s{sM0W}, s{sCNT}')
            if m == 5: k(f's_lshl_b32 s{sM0W}, s{sM0W}, 1')
            k(f's_lshl_b32 s{sCNT}, s{sM0W}, 7\ns_add_u32 s{sXO}, s{sXO}, s{sCNT}')
    def prologue4(self):
        k = self.k; t = vT
        k(f"""s_mul_i32 s{sWO_}, s{sW}, s{sSTR}
        s_lshl3_add_u32 s{sWO_}, s{sWO_}, s{sC1}
        s_lshl_b32 s{sADV}, s{sSTR}, 6
        v_and_b32 v{t+2}, 16, v{vL}
        v_lshlrev_b32 v{t+2}, 2, v{t+2}
        {f's_lshl_b32 s{sCNT}, s{sW}, 5' if self.cfg.m16 else ''}
        {f'v_and_or_b32 v{t+2}, s{sCNT}, 32, v{t+2}' if self.cfg.m16 else ''}
        v_xor_b32 v{vSW}, v{t+1}, v{t+2}
        v_mad_u32_u24 v{vDA}, v{t}, s{sSTR}, v{vSW}
        v_xor_b32 v{vDB}, s{sT5}, v{vDA}""")
        if self.cfg.rot: k(f's_mul_i32 s{sCNT}, s{sM0W}, s{sADV}\ns_add_u32 s{sWO_}, s{sWO_}, s{sCNT}')

    def late_srds(self):
        k = self.k
        L = ((S_Q, 8, 640*3840), (S_G, 32, 640*3072), (S_U, 40, 640*3072)) + (((S_WD, 48, 1536*1280), (S_WO, 16, 640*1280)) if self.S else ())
        for d, off, size in L[1:]: k(f's_load_dwordx2 s[{d}:{d+1}], s[0:1], {off}')
        if self.S: k(f's_load_dwordx2 s[{S_TMP}:{S_TMP+1}], s[0:1], 56')
        for d, off, size in L: k(f's_mov_b32 s{d+2}, {size}\ns_mov_b32 s{d+3}, 0x20000')
        k(f's_cmp_lt_u32 s{sG}, 14\ns_cselect_b32 s{S_Q+2}, s{S_Q+2}, 0')

    def dma_stage(self, n):
        k = self.k; slot = (n & 3) * 16384
        steps = []
        if n < 10:
            def x():
                k(f's_add_u32 m0, s{sM0X}, {L_X + slot}')
                k(f'buffer_load_dwordx4 v{vA1+4}, s[{S_X}:{S_X+3}], s{sXO} offen lds')
                k(f'buffer_load_dwordx4 v{vA1+5}, s[{S_X}:{S_X+3}], s{sXO} offen offset:1024 lds')
                k(f's_add_u32 s{sXO}, s{sXO}, 128')
                if self.cfg.rot: k(f's_cmp_eq_u32 s{sM0W}, {9 - n}\ns_cselect_b32 s{sCNT}, 1280, 0\ns_sub_u32 s{sXO}, s{sXO}, s{sCNT}')
            steps.append(x)
        def w():
            if n == 10:
                k(f"""v_lshrrev_b32 v{vDA}, 3, v{vL}
                v_mul_u32_u24 v{vDA}, 3840, v{vDA}
                v_add_u32 v{vDA}, v{vDA}, v{vSW}
                v_add_u32 v{vDB}, {(64 if self.cfg.m16 else 8)*3840 - 1024}, v{vDA}
                s_mul_i32 s{sWO_}, s{sW}, {(8 if self.cfg.m16 else 16)*3840}
                s_add_u32 s{sWO_}, s{sWO_}, s{sC2O}""")
            if n == 15:
                k(f"""v_lshrrev_b32 v{vDA}, 3, v{vL}
                v_mul_u32_u24 v{vDA}, 3072, v{vDA}
                v_add_u32 v{vDA}, v{vDA}, v{vSW}
                v_xor_b32 v{vDB}, {0 if self.cfg.m16 else 32}, v{vDA}
                s_mul_i32 s{sWO_}, s{sW}, {8*3072}
                s_add_u32 s{sWO_}, s{sWO_}, s{sC3O}""")
            k(f's_add_u32 m0, s{sM0X}, {L_RING + slot}')
            if 10 <= n < 15:
                k(f'buffer_load_dwordx4 v{vDA}, s[{S_Q}:{S_Q+3}], s{sWO_} offen lds')
                self.stok[n] = k(f'buffer_load_dwordx4 v{vDB}, s[{S_Q}:{S_Q+3}], s{sWO_} offen offset:1024 lds')
                k(f's_add_u32 s{sWO_}, s{sWO_}, {128*3840}')
            else:
                s0, s1, adv = (S_U0, S_U1, f's{sADV}') if n < 10 else (S_G, S_U, 64*3072)
                k(f'buffer_load_dwordx4 v{vDA}, s[{s0}:{s0+3}], s{sWO_} offen lds')
                k(f's_add_u32 m0, s{sM0X}, {L_RING + slot + 1024}')
                self.stok[n] = k(f'buffer_load_dwordx4 v{vDB}, s[{s1}:{s1+3}], s{sWO_} offen lds')
                k(f's_add_u32 s{sWO_}, s{sWO_}, {adv}')
                if self.cfg.rot and n < 10: k(f's_cmp_eq_u32 s{sM0W}, {9 - n}\ns_cselect_b32 s{sCNT}, s{S_U0+2}, 0\ns_sub_u32 s{sWO_}, s{sWO_}, s{sCNT}')
        steps.append(w)
        return steps

    def cs_sel(self):
        k = self.k; sel = vSEL; t = vT + 10
        k(f"""v_and_b32 v{t}, 1, v{vL}
        v_lshlrev_b32 v{t}, 4, v{t}
        s_movk_i32 s{sT3}, 0x3f80
        v_lshlrev_b32 v{t}, v{t}, s{sT3}""")
        for d in range(4):
            m = hex((3 << (2*d)) * 0x10001)
            k(f's_mov_b32 vcc_lo, {m}\ns_mov_b32 vcc_hi, {m}\nv_cndmask_b32 v{sel+d}, 0, v{t}, vcc')
        k(f"""v_and_b32 v{vCSO}, 7, v{vL}
        v_lshlrev_b32 v{vCSO}, 4, v{vCSO}
        v_bfe_u32 v{t}, v{vL}, 4, 1
        v_lshl_add_u32 v{vCSO}, v{t}, 3, v{vCSO}
        v_and_b32 v{t}, 8, v{vL}
        v_lshl_add_u32 v{vCSO}, v{t}, 4, v{vCSO}
        v_and_b32 v{t}, 32, v{vL}
        v_lshl_add_u32 v{vCSO}, v{t}, 24, v{vCSO}""")
    def cs_run(self, buf, acc):
        k = self.k; h = buf
        for j in range(10):
            k(f"v_mfma_f32_16x16x32_bf16 {vr(acc,4)}, {vr(vSEL,4)}, {vr(buf+4*j,4)}, {'0' if j == 0 else vr(acc,4)}")
        for e in range(4): k(f'v_add_f32_dpp v{h+4+e}, v{acc+e}, v{acc+e} row_ror:8 row_mask:0xf bank_mask:0xf')
        for e in range(2): k(f'v_cvt_pk_bf16_f32 v{acc+e}, v{h+4+2*e}, v{h+5+2*e}')
        for e in range(2): k(f'v_lshlrev_b32 v{h+2*e}, 16, v{acc+e}\nv_and_b32 v{h+2*e+1}, 0xffff0000, v{acc+e}')
        for e in range(4): k(f'v_sub_f32 v{h+e}, v{h+4+e}, v{h+e}')
        k(f's_mov_b32 vcc_lo, 0xff00ff00\ns_mov_b32 vcc_hi, 0xff00ff00')
        for e in range(2): k(f'v_cvt_pk_bf16_f32 v{acc+2+e}, v{h+2*e}, v{h+2*e+1}')
        for e in range(2): k(f'v_cndmask_b32 v{acc+e}, v{acc+e}, v{acc+2+e}, vcc')

    def cs_loads(self, p):
        k = self.k
        if p not in self.slots: return
        k(f's_cmp_lg_u32 s{sSLOT}, {p}\ns_cbranch_scc1 L_ncb{p}')
        for j in range(10):
            k(f'buffer_load_dwordx4 {vr(vCSB+4*j,4)}, v{vCSG}, s[{S_TMP}:{S_TMP+3}], s{sCO} offen')
            if j < 9: k(f's_add_u32 s{sCO}, s{sCO}, s{sRL}')
        k.nvm -= 10
        if k.nvm > 0: k.cond.append((k.nvm, 10, self.slot_test, p))
        self.cs_tok[p] = Tok(k.nvm + 1)
        k.label(f'L_ncb{p}')
    def cs_use(self, lo, hi, name):
        k = self.k
        def f():
            k.wait(vm=self.cs_tok[hi])
            k(f's_sub_u32 s{sT0}, s{sSLOT}, {lo}\ns_cmp_le_u32 s{sT0}, {hi - lo}\ns_cbranch_scc0 L_cu{lo}')
            self.cs_run(vCSB, vCSA)
            k(f'buffer_store_dwordx2 {vr(vCSA,2)}, v{vCSO}, s[{S_WS}:{S_WS+3}], s{sCD} offen sc1')
            k.nvm -= 1; setattr(self, name, Tok(k.nvm + 1))
            if self.cfg.cnd: k.cond.append((k.nvm, 1, lambda nw: f's_sub_u32 s{sCNT}, s{sSLOT}, {lo}\ns_cmp_le_u32 s{sCNT}, {hi - lo}', -1))
            k.flush_hazards()
            k.label(f'L_cu{lo}')
        return f
    def phase0A(self):
        k = self.k; X = vX; t = vT; c = self.cfg
        self.slots = set(c.slot0) | set(c.slot1) | set(c.slot2); self.cs_tok = {}
        assert min(c.slot1) > max(max(c.slot0), max(c.slot2)) and min(c.slot1) >= 1 and min(c.slot2) >= 1
        tab = lambda L: hex(sum(v << (4*j) for j, v in enumerate(L)))
        k(f"""s_lshr_b32 s{sT0}, s{sI}, 1
        s_and_b32 s{sT2}, s{sT5}, 128
        s_bitcmp1_b32 s{sI}, 0
        s_cselect_b32 s{sT2}, s{sT2}, 0
        s_add_u32 s{sT2}, s{sT2}, s{sC1}
        s_mul_i32 s{sT1}, s{sT0}, 80
        s_mul_i32 s{sT1}, s{sT1}, s{sSTR}
        s_add_u32 s{sCO}, s{sT1}, s{sT2}
        s_lshl_b32 s{sRL}, s{sSTR}, 3
        v_mad_u32_u24 v{vCSG}, v{t}, s{sSTR}, v{t+1}
        s_mov_b32 s{S_TMP+2}, s{S_U0+2}
        s_mov_b32 s{S_TMP+3}, 0x20000
        s_mov_b32 s{S_WS+2}, {WS_BYTES}
        s_mov_b32 s{S_WS+3}, 0x20000
        s_lshl_b32 s{sT1}, s{sT0}, 2
        s_lshr_b32 s{sSLOT}, {tab(c.slot0)}, s{sT1}
        s_and_b32 s{sSLOT}, s{sSLOT}, 15
        s_cmp_eq_u32 s{sW}, 0
        s_cselect_b32 s{sSLOT}, s{sSLOT}, 15
        s_bitcmp1_b32 s{sI}, 0
        s_waitcnt lgkmcnt(0)
        s_cselect_b64 s[{S_TMP}:{S_TMP+1}], s[{S_U1}:{S_U1+1}], s[{S_U0}:{S_U0+1}]""")
        assert k.nvm == 0
        self.cs_loads(0)
        clr = f's_and_b32 s{sT4}, s2, 0xe7\ns_lshl3_add_u32 s{sT4}, s{sT4}, s{sW}\ns_cmp_lg_u32 s{sT4}, {(7 if c.g1map else c.clrwg)*8 + 3}'
        k(clr + '\ns_cbranch_scc1 L_noclr')
        k(f'v_lshlrev_b32 v{X+60}, 7, v{vL}\nv_mov_b32 v{X+64}, 0\ns_lshl_b32 s{sT4}, s{sI}, 13')
        k(f'buffer_store_dword v{X+64}, v{X+60}, s[{S_WS}:{S_WS+3}], s{sT4} offen sc1')
        k.label('L_noclr')
        k(f's_cmp_lg_u32 s{sW}, 1\ns_cbranch_scc1 L_nopf\ns_getpc_b64 s[{sT2}:{sT3}]')
        k.label('L_pc')
        k(f's_lshr_b32 s{sT4}, s2, 3\ns_lshl_b32 s{sT4}, s{sT4}, 11\nv_and_b32 v{X+60}, 15, v{vL}\nv_lshl_add_u32 v{X+60}, v{X+60}, 7, s{sT4}\nv_min_u32 v{X+60}, L_end-L_pc, v{X+60}')
        k(f's_mov_b64 exec, 0xffff\nglobal_load_dword v{X+61}, v{X+60}, s[{sT2}:{sT3}]\ns_mov_b64 exec, -1')
        k.label('L_nopf')
        k.nvm = 0
        self.stamp('p0')
        d0 = self.dma_stage(0)
        d0[0]()
        self.prologue4()
        d0[1]()
        self.late_srds()
        k(f's_mov_b32 s{S_DBG+2}, 256\ns_mov_b32 s{S_DBG+3}, 0x20000')
        self.consts1()
        k(f"""s_mul_i32 s{sT1}, s{sG}, 10240
        s_add_u32 s{sT1}, s{sT1}, {WEXT}
        s_lshl_b32 s{sT3}, s{sT0}, 8
        s_add_u32 s{sPL2}, s{sT1}, s{sT3}
        s_and_b32 s{sT4}, s{sT3}, {0 if c.m16 else 1024}
        s_add_u32 s{sT1}, s{sPL2}, s{sT4}
        s_and_b32 s{sT3}, s{sI}, 1
        s_lshl_b32 s{sT3}, s{sT3}, {11 if c.m16 else 10}
        s_add_u32 s{sCD}, s{sT1}, s{sT3}
        s_cmp_eq_u32 s{sW}, 2
        s_cselect_b32 s{sCD}, s{sPL2}, s{sCD}
        s_lshl_b32 s{sT1}, s{sW}, 12
        s_add_u32 s{sCD}, s{sCD}, s{sT1}
        s_sub_u32 s{sT1}, s{sW}, 1
        s_cmp_le_u32 s{sT1}, 1
        s_waitcnt lgkmcnt(0)
        s_cbranch_scc0 L_nol
        s_bitcmp1_b32 s{sI}, 0
        s_cselect_b64 s[{S_TMP}:{S_TMP+1}], s[{S_U}:{S_U+1}], s[{S_G}:{S_G+1}]
        s_cselect_b32 s{sT4}, -1, {tab(c.slot2)}
        s_cmp_lt_u32 s{sG}, 14
        s_cselect_b32 s{sT4}, s{sT4}, -1
        s_movk_i32 s{sT3}, 3072
        s_cmp_eq_u32 s{sW}, 2
        s_cselect_b64 s[{S_TMP}:{S_TMP+1}], s[{S_Q}:{S_Q+1}], s[{S_TMP}:{S_TMP+1}]
        s_cselect_b32 s{sT4}, s{sT4}, {tab(c.slot1)}
        s_cselect_b32 s{sT3}, 3840, s{sT3}
        s_cselect_b32 s{sT2}, s{sC2O}, s{sC3O}
        s_lshl_b32 s{sT1}, s{sT0}, 2
        s_lshr_b32 s{sSLOT}, s{sT4}, s{sT1}
        s_and_b32 s{sSLOT}, s{sSLOT}, 15
        s_mul_i32 s{S_TMP+2}, s{sT3}, 640
        s_mul_i32 s{sT1}, s{sT0}, 80
        s_mul_i32 s{sT1}, s{sT1}, s{sT3}
        s_add_u32 s{sCO}, s{sT1}, s{sT2}
        s_lshl_b32 s{sRL}, s{sT3}, 3
        v_mad_u32_u24 v{vCSG}, v{t}, s{sT3}, v{t+1}""")
        k.label('L_nol')
        self.cs_loads(1)
        self.cs_sel()
        if c.m16: k(f's_and_b32 s{sT3}, s{sI}, 2\ns_and_b32 s{sT4}, s{sI}, 4\ns_lshl2_add_u32 s{sT3}, s{sT3}, s{sT4}\ns_lshl_b32 s{sT3}, s{sT3}, 3\nv_xor_b32 v{vCSO}, s{sT3}, v{vCSO}')
        else: k(f's_and_b32 s{sT3}, s{sI}, 3\ns_lshl_b32 s{sT3}, s{sT3}, 5\nv_xor_b32 v{vCSO}, s{sT3}, v{vCSO}')
        self.consts0()
        self.stamp('p0')
        for f in self.dma_stage(1): f()
        self.stamp('p0')
        self.cs_loads(2)
        k(f's_lshl_b32 s{sT3}, s{sI}, 6\n' + clr + f'\ns_cbranch_scc1 L_nodbg\ns_waitcnt vmcnt({k.nvm})')
        self.flag_store(1, X+58, 's_cmp_lg_u32 0, 0', S_DBG)
        k.label('L_nodbg')
        self.stamp('p0')

    def phase0B(self):
        k = self.k; X = vCSB; c = self.cfg
        k(f"""s_lshl4_add_u32 s{sT0}, s{sI}, s{sG}
        s_lshl2_add_u32 s{sT0}, s{sT0}, s{sGW}
        s_mul_i32 s{sCD}, s{sT0}, 2560
        v_lshrrev_b32 v{X+22}, 5, v{vL}
        v_mul_u32_u24 v{X+21}, 1280, v{X+22}
        v_and_b32 v{X+23}, 31, v{vL}
        v_lshl_add_u32 v{X+20}, v{X+23}, 4, v{X+21}
        v_lshl_add_u32 v{X+21}, v{X+23}, 3, v{X+21}""")
        k('s_waitcnt lgkmcnt(0)')
        LD = (f'buffer_load_dwordx4 v[{X}:{X+3}], v{X+20}, s[{S_X}:{S_X+3}], s{sCD} offen',
              f'buffer_load_dwordx4 v[{X+4}:{X+7}], v{X+20}, s[{S_X}:{S_X+3}], s{sCD} offen offset:512',
              f'buffer_load_dwordx2 v[{X+8}:{X+9}], v{X+21}, s[{S_X}:{S_X+3}], s{sCD} offen offset:1024')
        def ld(p):
            for j in range(3):
                if c.bpos[j] == p: self.t_sl = k(LD[j])
        ld(0)
        self.stamp('p0')
        d0 = self.dma_stage(0)
        d0[0]()
        self.prologue4()
        d0[1]()
        k.flush_hazards()
        k('s_branch L_setB')
        yield
        k.label('L_setB')
        self.late_srds()
        k(f's_mov_b32 s{S_WS+2}, {WS_BYTES}\ns_mov_b32 s{S_WS+3}, 0x20000')
        k(f's_lshl_b32 s{sCO}, s{sT0}, 4\ns_add_u32 s{sCO}, s{sCO}, {STATS}\nv_lshlrev_b32 v{X+22}, 3, v{X+22}')
        self.consts0(); self.consts1()
        self.pack_setup()
        k('s_waitcnt lgkmcnt(0)')
        ld(1)
        self.stamp('p0')
        for f in self.dma_stage(1): f()
        self.stamp('p0')
        ld(2)
        self.stamp('p0')
    def stats(self):
        k = self.k; X = vCSB
        a, b, m = X + 10, X + 11, X + 12
        k(f'v_mov_b32 v{a}, 0\nv_mov_b32 v{b}, 0\ns_mov_b32 s{sT2}, 0x3f803f80')
        k.wait(vm=self.t_sl)
        for d in range(10): k(f'v_dot2c_f32_bf16 v{a}, s{sT2}, v{X+d}\nv_dot2c_f32_bf16 v{b}, v{X+d}, v{X+d}')
        k('s_nop 2')
        for ctl in ('quad_perm:[1,0,3,2]', 'quad_perm:[2,3,0,1]', 'row_half_mirror', 'row_mirror'):
            for r in (a, b): k(f'v_add_f32_dpp v{r}, v{r}, v{r} {ctl} row_mask:0xf bank_mask:0xf')
        k(f"""v_mov_b32 v{X}, v{a}
        v_mov_b32 v{X+1}, v{b}
        v_permlane16_swap_b32 v{a}, v{X}
        v_permlane16_swap_b32 v{b}, v{X+1}
        v_add_f32 v{a}, v{a}, v{X}
        v_add_f32 v{b}, v{b}, v{X+1}
        v_mul_f32 v{m}, {hex(f2u(-1.0/640))}, v{a}
        v_mul_f32 v{b}, {hex(f2u(1.0/640))}, v{b}
        v_fma_f32 v{b}, -v{m}, v{m}, v{b}
        v_max_f32 v{b}, 0, v{b}
        v_add_f32 v{m+1}, {hex(f2u(1e-5))}, v{b}
        v_cvt_pk_bf16_f32 v{m}, v{m}, v{m}
        s_mov_b32 exec_lo, 1
        s_mov_b32 exec_hi, 1""")
        self.t_a = k(f'buffer_store_dwordx2 v[{m}:{m+1}], v{X+22}, s[{S_WS}:{S_WS+3}], s{sCO} offen sc1')
        k('s_mov_b64 exec, -1')

    def consts0(self):
        k = self.k; t = vT; S = self.S
        if self.cfg.m16:
            k(f'''v_lshrrev_b32 v{t+4}, 4, v{vL}
            v_bfe_u32 v{t}, v{vL}, 2, 2
            v_and_b32 v{t+1}, 3, v{vL}
            v_lshlrev_b32 v{t+1}, 3, v{t+1}
            v_lshl_add_u32 v{t+1}, v{t}, 7, v{t+1}
            v_and_b32 v{t+2}, 1, v{t+4}
            v_and_or_b32 v{t+2}, v{t}, 2, v{t+2}
            v_lshl_add_u32 v{t+1}, v{t+2}, 5, v{t+1}
            v_lshl_add_u32 v{vWR0}, v{t+4}, 11, v{t+1}''')
            if S: k(f'v_xor_b32 v{vWR0}, 64, v{vWR0}')
            k(f'''v_xor_b32 v{vWR1}, 32, v{vWR0}
            v_mul_u32_u24 v{vEB}, 1536, v{t+4}
            v_sub_u32 v{vEB}, {L_EXT}, v{vEB}
            v_and_b32 v{t}, 15, v{vL}
            v_bfe_u32 v{t+1}, v{vL}, 1, 3
            v_xor_b32 v{t+1}, v{t+1}, v{t+4}
            v_lshlrev_b32 v{t+1}, 4, v{t+1}
            v_lshl_add_u32 v{t+1}, v{t}, 7, v{t+1}
            s_lshl_b32 s{sT0}, s{sGW}, 12
            s_add_u32 s{sT0}, s{sT0}, {L_X}
            v_add_u32 v{vA1}, s{sT0}, v{t+1}
            v_xor_b32 v{vA1+1}, 64, v{vA1}''')
            return
        k(f'''v_bfe_u32 v{t}, v{vL}, 2, 2
        v_and_b32 v{t+1}, 1, v{vL}
        v_lshlrev_b32 v{t+1}, 4, v{t+1}
        v_and_b32 v{t+2}, 2, v{vL}
        v_lshl_add_u32 v{t+1}, v{t+2}, 2, v{t+1}
        v_bfe_u32 v{t+2}, v{vL}, 4, 1
        v_lshrrev_b32 v{t+4}, 5, v{vL}
        v_lshl_add_u32 v{t+1}, v{t}, 7, v{t+1}
        v_and_b32 v{t+3}, 2, v{t}
        v_or_b32 v{t+3}, v{t+3}, v{t+2}
        v_lshl_add_u32 v{t+1}, v{t+3}, 5, v{t+1}
        v_lshrrev_b32 v{t+3}, 4, v{vL}
        v_lshl_add_u32 v{vWR0}, v{t+3}, 10, v{t+1}
        v_lshl_add_u32 v{vWR2}, v{t+4}, 10, v{t+1}''')
        if S: k(f'v_xor_b32 v{vWR0}, 64, v{vWR0}\nv_xor_b32 v{vWR2}, 64, v{vWR2}')
        k(f'''v_xor_b32 v{vWR1}, 32, v{vWR0}
        v_and_b32 v{t}, 31, v{vL}
        v_bfe_u32 v{t+1}, v{vL}, 1, 3
        v_xor_b32 v{t+1}, v{t+1}, v{t+4}
        v_lshlrev_b32 v{t+1}, 4, v{t+1}
        v_lshl_add_u32 v{t+1}, v{t}, 7, v{t+1}
        s_lshl_b32 s{sT0}, s{sGW}, 12
        s_add_u32 s{sT0}, s{sT0}, {L_X}
        v_add_u32 v{vA1}, s{sT0}, v{t+1}
        v_xor_b32 v{vA1+1}, 32, v{vA1}
        v_xor_b32 v{vA1+2}, 64, v{vA1}
        v_xor_b32 v{vA1+3}, 0x60, v{vA1}''')
    def consts1(self):
        k = self.k; t = vT + 9; S = self.S; c = self.cfg
        if c.m16:
            k(f'''v_lshrrev_b32 v{t}, 5, v{vL}
            v_bfe_u32 v{t+1}, v{vL}, 4, 1
            v_lshl_add_u32 v{t}, v{t+1}, 1, v{t}
            v_and_b32 v{t+1}, 15, v{vL}
            v_lshlrev_b32 v{t+1}, 4, v{t+1}
            v_lshl_add_u32 v{vQO}, v{t}, 11, v{t+1}
            v_lshl_add_u32 v{vHO}, v{t}, 8, v{t+1}
            v_lshlrev_b32 v{aL16}, 4, v{vL}
            v_add_u32 v{aL16b}, 4096, v{aL16}''')
        else: k(f'''v_and_b32 v{t}, 31, v{vL}
        v_lshrrev_b32 v{t+2}, 5, v{vL}
        v_lshlrev_b32 v{vQO}, 11, v{t+2}
        v_lshl_add_u32 v{vQO}, v{t}, 4, v{vQO}
        v_bfe_u32 v{t+1}, v{vL}, 4, 1
        v_mul_u32_u24 v{vHO}, {c.hs}, v{t+1}
        v_lshl_add_u32 v{vHO}, v{t+2}, 8, v{vHO}
        v_and_b32 v{t+1}, 15, v{vL}
        v_lshl_add_u32 v{vHO}, v{t+1}, 4, v{vHO}
        v_lshlrev_b32 v{aL16}, 4, v{vL}
        v_add_u32 v{aL16b}, 4096, v{aL16}''')
        k(f"""s_add_u32 s{sC2O}, s{sG}, 16
        s_lshl_b32 s{sC2O}, s{sC2O}, 7
        s_and_b32 s{sT1}, s{sG}, 3
        s_lshl_b32 s{sT1}, s{sT1}, 7
        s_add_u32 s{sC3O}, s{sC3O}, s{sT1}
        s_add_u32 s{sC3O}, s{sC3O}, 256
        s_lshl2_add_u32 s{sT1}, s{sI}, s{sGW}
        s_mul_i32 s{sT1}, s{sT1}, {2*self.cfg.hs}
        s_add_u32 s{sT1}, s{sT1}, {HIM + S*1024}
        s_lshl4_add_u32 s{sHE}, s{sC1}, s{sT1}
        s_lshl4_add_u32 s{sHL}, s{sC3O}, s{sT1}
        s_mul_i32 s{sT2}, s{sI}, {240*2048}
        s_lshl_b32 s{sT1}, s{sGW}, 9
        s_add_u32 s{sT2}, s{sT2}, s{sT1}
        s_add_u32 s{sT2}, s{sT2}, {QKV + S*8192}
        s_lshl_b32 s{sT1}, s{sC1}, 7
        s_add_u32 s{sQS1}, s{sT2}, s{sT1}
        s_lshl_b32 s{sT1}, s{sC2O}, 7
        s_add_u32 s{sQS2}, s{sT2}, s{sT1}
        s_cmp_lt_u32 s{sG}, 14
        s_cselect_b32 s{sQS2}, s{sQS2}, {OOB}
        s_cmp_lt_u32 s{sG}, 10
        s_mov_b32 s{sQF}, {hex(f2u(-1.0 / LOG2E if c.m16 else 1.0))}
        s_cselect_b32 s{sQF}, {hex(f2u((-1.0 if c.m16 else LOG2E) / math.sqrt(20.0)))}, s{sQF}
        s_lshl_b32 s{sFLAG}, s2, 7""")
    def consts2(self):
        k = self.k; S = self.S; c = self.cfg
        k(f'''s_bfe_u32 s{sAI}, s2, 0x40003
        s_and_b32 s{sT0}, s2, 7
        s_lshr_b32 s{sT1}, s2, 7
        s_lshl1_add_u32 s{sAJ}, s{sT0}, s{sT1}''')
        if c.g2map == 0:
            k(f's_bfe_u32 s{sT1}, s2, 0x20003\ns_lshl2_add_u32 s{sR2}, s{sT0}, s{sT1}\ns_lshr_b32 s{sC2}, s2, 5')
        else:
            k(f'''s_lshr_b32 s{sT1}, s{sT0}, 1
            s_bfe_u32 s{sT2}, s2, 0x30003
            s_lshl3_add_u32 s{sR2}, s{sT1}, s{sT2}
            s_and_b32 s{sT1}, s2, 1
            s_lshr_b32 s{sT2}, s2, 6
            s_lshl2_add_u32 s{sC2}, s{sT1}, s{sT2}''')
        k(f'''s_mul_i32 s{sT0}, s{sC2}, 68
        s_mul_i32 s{sT1}, s{sGW}, 12
        s_add_u32 s{sT1}, s{sT0}, s{sT1}
        s_mul_i32 s{sWB}, s{sT1}, 5120
        s_add_u32 s{sWB}, s{sWB}, {W2P}
        s_mul_i32 s{sSTG}, s{sGW}, 20480
        s_cmp_eq_u32 s{sGW}, 3
        s_cselect_b32 s{sSTG}, {L_EXT}, s{sSTG}
        s_lshr_b32 s{sPL2}, s{sR2}, 1''')
        if S:
            k(f"""s_mul_i32 s{sCD}, s{sT0}, 5120
            s_add_u32 s{sCD}, s{sCD}, {W2P + 48*5120}
            s_mov_b64 s[{S_OUT}:{S_OUT+1}], s[{S_TMP}:{S_TMP+1}]
            s_mov_b32 s{S_OUT+2}, {2048*1280}
            s_mov_b32 s{S_OUT+3}, 0x20000""")
    def consts3(self):
        k = self.k; S = self.S
        if S and self.cfg.s5k:
            k(f's_mul_i32 s{sT0}, s{sGW}, 25600\ns_add_u32 s{sCD}, s{sCD}, s{sT0}\ns_lshl4_add_u32 s{sT1}, s{sR2}, s{sGW}\ns_mul_i32 s{sT1}, s{sT1}, 5120\ns_add_u32 s{sT1}, s{sT1}, {OIM}')
            for d in range(4):
                k(f's_add_u32 s{sT0}, s{sGW}, {d}\ns_and_b32 s{sT0}, s{sT0}, 3\ns_mul_i32 s{sT0}, s{sT0}, 20480\ns_add_u32 s{sAM+d}, s{sT0}, s{sT1}')
        elif S:
            k(f's_lshl2_add_u32 s{sT1}, s{sR2}, s{sGW}\ns_mul_i32 s{sAM}, s{sT1}, 20480\ns_add_u32 s{sAM}, s{sAM}, {OIM}\ns_lshl_b32 s{sAM+1}, s{sGW}, 10\ns_add_u32 s{sAM+2}, s{sAM+1}, s{sCD}')
        else:
            k(f's_mul_i32 s{sT1}, s{sR2}, {4*self.cfg.hs}\ns_mul_i32 s{sT0}, s{sGW}, 12288\ns_add_u32 s{sT1}, s{sT1}, s{sT0}\ns_add_u32 s{sT1}, s{sT1}, {HIM}')
            for d in range(4):
                k(f's_add_u32 s{sT0}, s{sGW}, {d}\ns_and_b32 s{sT0}, s{sT0}, 3\ns_mul_i32 s{sT0}, s{sT0}, {self.cfg.hs}\ns_add_u32 s{sAM+d}, s{sT0}, s{sT1}')
        k(f'''s_mul_i32 s{sKVS}, s{sAI}, {240*2048}
        s_mul_i32 s{sT1}, s{sAJ}, {5*2048}
        s_add_u32 s{sKVS}, s{sKVS}, s{sT1}
        s_mul_i32 s{sKVM}, s{sW}, 768''')

    def fg(self, d, src, t):
        if self.cfg.g1map: self.k(f'v_bfe_u32 v{t}, v{src}, 1, 3\nv_and_b32 v{d}, 1, v{src}\nv_lshlrev_b32 v{d}, 14, v{d}\nv_lshl_add_u32 v{d}, v{t}, 7, v{d}')
        else: self.k(f'v_bfe_u32 v{t}, v{src}, 2, 2\nv_and_b32 v{d}, 3, v{src}\nv_lshlrev_b32 v{d}, 13, v{d}\nv_lshl_add_u32 v{d}, v{t}, 8, v{d}')
    def fi(self, d, src, t):
        if self.cfg.g1map: self.k(f'v_and_b32 v{d}, 15, v{src}\nv_lshlrev_b32 v{d}, 10, v{d}')
        else: self.k(f'v_bfe_u32 v{t}, v{src}, 3, 1\nv_and_b32 v{d}, 7, v{src}\nv_lshlrev_b32 v{d}, 10, v{d}\nv_lshl_add_u32 v{d}, v{t}, 7, v{d}')
    def poll(self, kind, thr):
        k = self.k; a = vEX; st = {}
        srd = S_DBG if kind == 'dbg' else S_WS
        def addr():
            t = vT + 10
            if kind == 'dbg': k(f'v_and_b32 v{a}, 3, v{vL}\nv_lshlrev_b32 v{a}, 6, v{a}')
            elif kind == 'rc':
                self.fg(a, vL, t); self.fi(t + 1, vL, t)
                k(f"""s_lshl_b32 s{sT1}, s2, 7
                s_and_b32 s{sT2}, s{sT1}, {(0x78 if self.cfg.g1map else 0x39) << 7}
                s_and_b32 s{sT1}, s{sT1}, {(0x87 if self.cfg.g1map else 0xc6) << 7}
                v_add_u32 v{a}, s{sT2}, v{a}
                v_add_u32 v{t+1}, s{sT1}, v{t+1}
                s_mov_b32 vcc_lo, 0xffff0000
                s_mov_b32 vcc_hi, 0xffff0000
                v_cndmask_b32 v{a}, v{a}, v{t+1}, vcc""")
            elif kind == 'pk':
                self.fi(t + 1, vL, t)
                k(f"""s_lshl_b32 s{sT1}, s2, 7
                s_and_b32 s{sT1}, s{sT1}, {(0x87 if self.cfg.g1map else 0xc6) << 7}
                v_add_u32 v{t+1}, s{sT1}, v{t+1}
                s_mul_i32 s{sT1}, s{sC2}, 5
                s_lshr_b32 s{sT1}, s{sT1}, 2
                v_lshrrev_b32 v{a}, 1, v{vL}
                v_lshl_add_u32 v{a}, v{a}, 3, v{vL}
                v_add_lshl_u32 v{a}, v{a}, s{sT1}, 7
                s_mov_b32 vcc_lo, 0
                s_mov_b32 vcc_hi, 0xffff0000
                v_cndmask_b32 v{a}, v{a}, v{t+1}, vcc""")
            elif kind == 'kv':
                k(f"""v_lshrrev_b32 v{t}, 4, v{vL}
                v_sub_u32 v{t}, s{sAI}, v{t}
                v_max_i32 v{t}, 0, v{t}
                v_mov_b32 v{t+1}, s{sPL2}
                s_mov_b32 vcc_lo, 0
                s_mov_b32 vcc_hi, 0xffff0000
                v_cndmask_b32 v{t+1}, v{t}, v{t+1}, vcc""")
                self.fi(t + 1, t + 1, t); self.fg(a, vL, t)
                k(f'v_add_u32 v{a}, v{a}, v{t+1}')
        def issue():
            self.uid += 1; u = self.uid
            k(f's_cmp_lg_u32 s{sGW}, 0\ns_cbranch_scc1 L_np{u}')
            k(f'buffer_load_dword v{vP}, v{a}, s[{srd}:{srd+3}], 0 offen sc1')
            k.nvm -= 1; st['t'] = k.nvm
            k.label(f'L_np{u}')
        def check(): self.poll_check(st['t'], vP, a, srd, '0', thr)
        return addr, issue, check
    def ext_a(self):
        k = self.k
        if self.S:
            k(f"""s_lshl_b32 s{sT2}, s{sGW}, 9
            s_add_u32 m0, s{sT2}, {L_EXT + 8192}
            s_mul_i32 s{sT1}, s{sG}, 10240
            s_add_u32 s{sT1}, s{sT1}, s{sT2}
            s_add_u32 s{sT3}, s{sT1}, {WEXT + 8192}
            s_cmp_lt_u32 s{sG}, 14
            s_cselect_b32 s{sT3}, s{sT3}, {OOB}
            s_mov_b32 exec_hi, 0""")
            k(f'buffer_load_dwordx4 v{aL16}, s[{S_WS}:{S_WS+3}], s{sT3} offen sc1 lds')
            k(f"""s_mov_b32 exec_hi, -1
            s_lshl1_add_u32 m0, s{sT2}, {L_EXT}
            s_add_u32 s{sT1}, s{sT1}, s{sT2}
            s_add_u32 s{sT1}, s{sT1}, {WEXT}""")
            k(f'buffer_load_dwordx4 v{aL16}, s[{S_WS}:{S_WS+3}], s{sT1} offen sc1 lds')
        k(f'''v_and_b32 v{vT+10}, {15 if self.cfg.m16 else 31}, v{vL}
        v_lshlrev_b32 v{vT+10}, 3, v{vT+10}
        s_lshl2_add_u32 s{sT1}, s{sI}, s{sGW}
        s_lshl_b32 s{sT1}, s{sT1}, 8
        s_add_u32 s{sT1}, s{sT1}, {STATS}''')
        self.t_ea = k(f'buffer_load_dwordx2 v[{vST}:{vST+1}], v{vT+10}, s[{S_WS}:{S_WS+3}], s{sT1} offen sc1')
        if self.cfg.m16: self.t_ea = k(f'buffer_load_dwordx2 v[{vCC}:{vCC+1}], v{vT+10}, s[{S_WS}:{S_WS+3}], s{sT1} offen offset:128 sc1')
    def ext_b(self):
        k = self.k
        k(f"""s_lshl_b32 s{sT2}, s{sGW}, 10
        s_add_u32 m0, s{sT2}, {L_EXT + 4096}
        s_mul_i32 s{sT1}, s{sG}, 10240
        s_add_u32 s{sT1}, s{sT1}, s{sT2}
        s_add_u32 s{sT1}, s{sT1}, {WEXT + 4096}""")
        self.t_eb = k(f'buffer_load_dwordx4 v{aL16}, s[{S_WS}:{S_WS+3}], s{sT1} offen sc1 lds')
    def stats_prep(self):
        k = self.k
        if self.cfg.m16:
            k(f"""v_mov_b32 v{vMEAN}, v{vVAR}
            v_mov_b32 v{vMEAN+1}, v{vVAR}
            v_mov_b32 v{vMEAN+2}, v{vCC}
            v_mov_b32 v{vMEAN+3}, v{vCC}
            v_rsq_f32 v{vCC}, v{vVAR+1}
            v_mov_b32 v{vVAR}, v{vVAR+1}
            v_mov_b32 v{vVAR+1}, v{vCC+1}
            v_rsq_f32 v{vCC+1}, v{vCC+1}
            v_mul_f32 v{vCC}, {hex(f2u(-LOG2E))}, v{vCC}
            v_mul_f32 v{vCC+1}, {hex(f2u(-LOG2E))}, v{vCC+1}""")
            if self.cfg.hsc: k(f'v_mul_f32 v{vVAR}, {hex(f2u(-1/LOG2E))}, v{vVAR}\nv_mul_f32 v{vVAR+1}, {hex(f2u(-1/LOG2E))}, v{vVAR+1}')
            return
        k(f'v_rsq_f32 v{vRS}, v{vST+1}')
        for e in range(4): k(f'v_mov_b32 v{vMEAN+e}, v{vST}')
        k(f'v_mul_f32 v{vC1}, {hex(f2u(-LOG2E))}, v{vRS}\nv_mul_f32 v{vST}, s{sQF}, v{vRS}')
    def job_gu(self, tt, soff):
        k = self.k; J = []; out = vT; acc = vA0 + 16 * tt; c = self.cfg
        c1, var = (vCC + tt, vVAR + tt) if c.m16 else (vC1, vST + 1)
        def one(s): J.append(lambda: k(s))
        for e0 in (0, 4):
            for e in range(e0, e0 + 4): one(f'v_mul_f32 v{acc+8+e}, v{acc+e}, v{acc+8+e}')
            for e in range(e0, e0 + 4): one(f'v_mul_f32 v{acc+e}, v{c1}, v{acc+e}')
            for e in range(e0, e0 + 4): one(f'v_exp_f32 v{acc+e}, v{acc+e}')
            for e in range(e0, e0 + 4): one(f'v_fma_f32 v{acc+e}, v{acc+e}, v{var}, v{var}')
            for e in range(e0, e0 + 4): one(f'v_rcp_f32 v{acc+e}, v{acc+e}')
            for e in range(e0, e0 + 4): one(f'v_mul_f32 v{acc+e}, v{acc+e}, v{acc+8+e}')
            for e in range(e0, e0 + 4, 2): one(f'v_cvt_pk_bf16_f32 v{out+e//2}, v{acc+e}, v{acc+e+1}')
        def st():
            if c.m16:
                k(f's_add_u32 s{sT1}, s{soff}, {tt*c.hs}\nv_permlane16_swap_b32 v{out}, v{out+2}\nv_permlane16_swap_b32 v{out+1}, v{out+3}')
                self.t_store = k(f'buffer_store_dwordx4 v[{out}:{out+3}], v{vHO}, s[{S_WS}:{S_WS+3}], s{sT1} offen {c.stf}')
            else:
                self.t_store = k(f'buffer_store_dwordx4 v[{out}:{out+3}], v{vHO}, s[{S_WS}:{S_WS+3}], s{soff} offen offset:{tt*512} {c.stf}')
        J.append(st)
        return J
    def qkv_half(self, pas, tt, half):
        k = self.k; c = self.cfg
        acc = vA0 + 16 * tt + 8 * half if pas == 1 else vA1 + 8 * tt
        soff = sQS1 if pas == 1 else sQS2
        if c.m16:
            sc = vT + 10; off = half * 16384 + tt * 256
            k(f"v_mul_f32 v{sc}, {f's{sQF}' if pas == 1 else hex(f2u(-1.0 / LOG2E))}, v{vCC+tt}")
        else:
            sc = vST if pas == 1 else vRS; off = half * 16384 + tt * 4096
        for e in range(8): k(f'v_mul_f32 v{acc+e}, v{sc}, v{acc+e}')
        for e in range(0, 8, 2): k(f'v_cvt_pk_bf16_f32 v{acc+e//2}, v{acc+e}, v{acc+e+1}')
        k(f's_add_u32 s{sT1}, s{soff}, {off}')
        if c.m16: k(f'v_permlane16_swap_b32 v{acc}, v{acc+2}\nv_permlane16_swap_b32 v{acc+1}, v{acc+3}')
        self.t_store = k(f'buffer_store_dwordx4 {vr(acc,4)}, v{vQO}, s[{S_WS}:{S_WS+3}], s{sT1} offen {c.stf}')
    def job_e1(self, j):
        k = self.k
        def f():
            tt, half = j >> 1, j & 1
            if self.typ == 0:
                J = self.job_gu(tt, sHE)
                for x in (J[26:] if half else J[:26]): x()
            else:
                self.qkv_half(1, tt, half)
                if not half and not self.cfg.cnt: k.nvm -= 1
        return f
    def slot_test(self, newer):
        return f's_sub_u32 s{sCNT}, s{sSLOT}, {newer[0][3]}\ns_cmp_le_u32 s{sCNT}, {newer[-1][3] - newer[0][3]}'
    def job_csb(self, lump):
        c = self.cfg
        for p in sorted(self.slots):
            if p >= 3: lump[p - 3].append(('first', lambda p=p: self.cs_loads(p)))
        lump[c.u1].append(('first', self.cs_use(0, max(max(c.slot0), max(c.slot2)), 't_a')))
        lump[c.u2].append(('first', self.cs_use(min(c.slot1), max(c.slot1), 't_b')))
        assert c.u2 <= 6
    def pack_setup(self):
        k = self.k
        a0, a1, go = vA1 + 6, vA1 + 7, vA1 + 8
        d = vT; x, y = vT + 10, vT + 11
        k(f"""s_mul_i32 s{sT1}, s2, 52429
        s_lshr_b32 s{sT1}, s{sT1}, 19
        s_mul_i32 s{sT3}, s{sT1}, 10
        s_sub_u32 s{sPKL}, s2, s{sT3}
        s_lshl2_add_u32 s{sT2}, s{sT1}, s{sGW}
        s_mul_i32 s{sPKS}, s{sT2}, 10240
        s_lshl_b32 s{sT3}, s{sPKL}, 7
        s_add_u32 s{sPKS}, s{sPKS}, s{sT3}
        s_mul_i32 s{sT3}, s{sT1}, 5120
        s_lshl_b32 s{sT4}, s{sGW}, 8
        s_add_u32 s{sT3}, s{sT3}, s{sT4}
        s_add_u32 s{sT3}, s{sT3}, {W2P}
        s_cmp_lt_u32 s{sT2}, 96
        s_cselect_b32 s{sPKD0}, s{sT3}, {OOB}
        s_cselect_b32 s{sPKS}, s{sPKS}, {OOB}
        s_add_u32 s{sPKD1}, s{sPKD0}, {24*5120}
        s_mul_i32 s{sT1}, s{sT2}, 52429
        s_lshr_b32 s{sT1}, s{sT1}, 18
        s_mul_i32 s{sT3}, s{sT1}, 5
        s_sub_u32 s{sT3}, s{sT2}, s{sT3}
        s_and_b32 s{sT4}, s{sT1}, 3
        s_lshr_b32 s{sT1}, s{sT1}, 2
        s_mul_i32 s{sT1}, s{sT1}, 5
        s_cmp_gt_u32 s{sT3}, 2
        s_subb_u32 s{sT5}, s{sT3}, 0
        s_cmp_eq_u32 s{sT3}, 2
        s_cselect_b32 s{sT5}, s{sT4}, s{sT5}
        s_cselect_b32 s{sT4}, 4, s{sT4}
        s_add_u32 s{sT1}, s{sT1}, s{sT4}
        s_mul_i32 s{sT1}, s{sT1}, 5120
        s_lshl_b32 s{sT5}, s{sT5}, 8
        s_add_u32 s{sT1}, s{sT1}, s{sT5}
        s_add_u32 s{sT1}, s{sT1}, {W2P + 48*5120}
        s_cmp_lt_u32 s{sT2}, 80
        s_cselect_b32 s{sPKD2}, s{sT1}, {OOB}
        s_bfe_u32 s{sSLOT}, s2, {hex(0x4 | ((self.cfg.nslot.bit_length()-1) << 16))}""")
    def job_pack(self, lump):
        k = self.k; c = self.cfg
        a0, a1, go = 8, 9, vT + 10
        d = vT; x, y = vT + 4, vT + 5
        def issue(p):
            def f():
                if 'p' in c.skip: k(f's_mov_b32 s{sSLOT}, 9')
                if 's' in c.skip: k(f's_mov_b32 s{sPKD0}, {OOB}\ns_mov_b32 s{sPKD1}, {OOB}\ns_mov_b32 s{sPKD2}, {OOB}')
                k(f"""s_cmp_lg_u32 s{sSLOT}, {p}
                s_cbranch_scc1 L_npk{p}
                v_lshrrev_b32 v{go}, 3, v{vL}
                v_mul_u32_u24 v{go}, 1280, v{go}
                v_and_b32 v{go+1}, 0x70, v{aL16}
                v_add_u32 v{go}, v{go}, v{go+1}
                s_mul_i32 s{sT2}, s{sGW}, 3072
                s_add_u32 m0, s{sT2}, {L_PACK}
                s_add_u32 s{sT1}, s{sPKS}, {96*10240 - 1024}""")
                k(f'buffer_load_dwordx4 v{go}, s[{S_WD}:{S_WD+3}], s{sPKS} offen {c.pknt} lds')
                k(f'buffer_load_dwordx4 v{go}, s[{S_WD}:{S_WD+3}], s{sT1} offen offset:1024 {c.pknt} lds')
                k(f's_add_u32 m0, s{sT2}, {L_PACK + 2048}')
                k(f'buffer_load_dwordx4 v{go}, s[{S_WO}:{S_WO+3}], s{sPKS} offen {c.pknt} lds')
                k.nvm -= 3; k.cond.append((k.nvm, 3, self.slot_test, p)); self.t_pk = Tok(k.nvm + 1)
                k.label(f'L_npk{p}')
            return f
        def addr1():
            k(f"""s_lshl_b32 s{sT1}, s{sPKL}, 1
            v_lshrrev_b32 v{x}, 5, v{vL}
            v_add_u32 v{x}, s{sT1}, v{x}
            v_mul_u32_u24 v{y}, 52, v{x}
            v_lshrrev_b32 v{y}, 8, v{y}
            v_mul_u32_u24 v{a0}, 5, v{y}
            v_sub_u32 v{x}, v{x}, v{a0}
            v_bfe_u32 v{d}, v{vL}, 4, 1
            v_lshl_add_u32 v{d+1}, v{x}, 1, v{d}
            v_cmp_lt_u32 vcc, 4, v{d+1}
            v_mul_u32_u24 v{y}, {2*340}, v{y}
            v_add_u32 v{a1}, {340-6}, v{d+1}
            v_cndmask_b32 v{a1}, v{d+1}, v{a1}, vcc
            v_cmp_eq_u32 vcc, 5, v{d+1}
            v_mov_b32 v{d+2}, {340+4}
            v_and_b32 v{d+3}, 15, v{vL}
            v_cndmask_b32 v{a1}, v{a1}, v{d+2}, vcc
            v_add_lshl_u32 v{a1}, v{a1}, v{y}, 10
            v_lshl_add_u32 v{a1}, v{d+3}, 4, v{a1}""")
        def addr2():
            k(f"""v_and_b32 v{d+1}, 3, v{vL}
            v_lshlrev_b32 v{d+2}, 4, v{d+1}
            v_lshl_add_u32 v{d+2}, v{d}, 3, v{d+2}
            v_cmp_eq_u32 vcc, 2, v{x}
            v_lshlrev_b32 v{d+1}, 3, v{d+1}
            v_lshl_add_u32 v{d+1}, v{d}, 5, v{d+1}
            v_cndmask_b32 v{a0}, v{d+2}, v{d+1}, vcc
            v_bfe_u32 v{x}, v{vL}, 2, 2
            v_lshl_add_u32 v{a0}, v{x}, 7, v{a0}
            v_lshrrev_b32 v{x}, 5, v{vL}
            v_lshl_add_u32 v{a0}, v{x}, 6, v{a0}
            s_mul_i32 s{sT1}, s{sGW}, 3072
            s_add_u32 s{sT1}, s{sT1}, {L_PACK}
            v_add_u32 v{a0}, s{sT1}, v{a0}""")
        D = vT + 4
        def rd(it):
            def f():
                k.wait(vm=self.t_pk)
                k(f'ds_read_b64_tr_b16 {vr(D,2)}, v{a0} offset:{it*1024}')
                self.t_pr = k(f'ds_read_b64_tr_b16 {vr(D+2,2)}, v{a0} offset:{it*1024+512}')
            return f
        def st(it):
            def f():
                k.wait(lg=self.t_pr)
                self.t_b = k(f'buffer_store_dwordx4 {vr(D,4)}, v{a1}, s[{S_WS}:{S_WS+3}], s{(sPKD0, sPKD1, sPKD2)[it]} offen {c.stf}')
            return f
        n = c.pk
        for p in range(c.nslot): lump[n + p].append(('first', issue(p)))
        u = n + c.nslot - 1 + c.pkd
        lump[c.pka].append(addr1); lump[c.pka + 1].append(addr2)
        for it in range(3):
            lump[u + it // c.pkn].append(('first', rd(it)) if it % c.pkn == 0 else ('late', rd(it)))
            lump[u + it // c.pkn].append(('late', st(it)))
        assert c.pka + 1 < u and c.fb > u + 2 // c.pkn and c.pka + 1 <= 9
    def job_ones(self):
        k = self.k
        d = vT; tk = vT + 10; a = vT + 11
        k(f'''s_mul_i32 s{sT1}, s{sW}, 48
        v_add_u32 v{tk}, s{sT1}, v{vL}
        s_sub_i32 s{sT1}, 2, s{sAI}
        s_lshl_b32 s{sT1}, s{sT1}, 7
        v_cmp_le_i32 vcc, s{sT1}, v{tk}
        v_mov_b32 v{d+1}, 0x3f80
        v_lshlrev_b32 v{a}, 4, v{tk}
        v_cndmask_b32 v{d}, 0, v{d+1}, vcc
        v_lshrrev_b32 v{d+2}, 7, v{tk}
        v_mul_u32_u24 v{d+2}, {240*2048 - 2048}, v{d+2}
        v_add_u32 v{d+2}, v{d+2}, v{a}
        v_mov_b32 v{d+3}, {OOB}
        v_cndmask_b32 v{vT+8}, v{d+3}, v{d+2}, vcc
        s_mov_b32 vcc_lo, 0x11111111
        s_mov_b32 vcc_hi, 0x11111111
        v_cndmask_b32 v{d}, 0, v{d}, vcc
        v_mov_b32 v{d+1}, 0
        v_mov_b32 v{d+2}, v{d}
        v_mov_b32 v{d+3}, 0
        v_add_u32 v{a}, {L_ONES}, v{a}
        ds_write_b128 v{a}, v[{d}:{d+3}]''')
        if self.S: k(f'v_mov_b32 v{tk}, 0\nv_lshlrev_b32 v{a}, 2, v{vL}\nv_add_u32 v{a}, {L_CNT}, v{a}\nds_write_b32 v{a}, v{tk}')
    def job_kv(self):
        k = self.k; J = []; S = self.S
        for e in range(10):
            def f(e=e):
                src = QKV - 2*240*2048 + ((80 if e < 5 else 155) + e) * 2048
                k(f's_add_u32 m0, s{sKVM}, {L_KV + e*CH}\ns_add_u32 s{sT1}, s{sKVS}, {src}\ns_mov_b32 exec_hi, 0xffff')
                self.t_kv = k(f'buffer_load_dwordx4 v{vT+8}, s[{S_WS}:{S_WS+3}], s{sT1} offen sc1 lds')
                k('s_mov_b32 exec_hi, -1')
            J.append(f)
        def q():
            k(f'''s_lshl_b32 s{sT1}, s{sGW}, 9
            s_add_u32 s{sT1}, s{sT1}, s{sKVS}
            s_add_u32 s{sT2}, s{sT1}, {QKV + S*3*2048}
            s_add_u32 s{sT1}, s{sT1}, {QKV + 4096 + 8*S}
            v_lshrrev_b32 v{vT+10}, 5, v{vL}
            v_and_b32 v{vQO}, 0x1f0, v{aL16}
            v_lshl_add_u32 v{vQO}, v{vT+10}, 11, v{vQO}
            v_lshl_add_u32 v{vT+10}, v{vT+10}, 30, v{vQO}''')
            k(f'buffer_load_dwordx4 v[{vQ}:{vQ+3}], v{vQO}, s[{S_WS}:{S_WS+3}], s{sT2} offen sc1')
            self.t_kv = k(f'buffer_load_dwordx2 v[{vQ+4}:{vQ+5}], v{vT+10}, s[{S_WS}:{S_WS+3}], s{sT1} offen sc1')
        J.append(q)
        return J
    def job_touch(self, gw):
        k = self.k; c = self.cfg
        nsh = 8 if c.g2map else 4; per = -(-2720 // (8 * nsh))
        def f():
            self.uid += 1; u = self.uid
            k(f"""s_cmp_lg_u32 s{sGW}, {gw}
            s_cbranch_scc1 L_nt{u}
            s_and_b32 s{sT1}, s{sR2}, {nsh-1}
            s_lshl3_add_u32 s{sT1}, s{sT1}, s{sW}
            s_mul_i32 s{sT1}, s{sT1}, {per}
            v_min_u32 v{vT+5}, {min(per,64)-1}, v{vL}
            v_add_u32 v{vT+5}, s{sT1}, v{vT+5}
            v_min_u32 v{vT+5}, 2719, v{vT+5}
            v_lshlrev_b32 v{vT+5}, 7, v{vT+5}
            s_mul_i32 s{sT1}, s{sC2}, {68*5120}
            s_add_u32 s{sT1}, s{sT1}, {W2P}""")
            k(f'buffer_load_dword v{vT+6}, v{vT+5}, s[{S_WS}:{S_WS+3}], s{sT1} offen sc1')
            k.nvm -= 1
            k.label(f'L_nt{u}')
        return f
    def dmask(self, r):
        n0 = 8 * (r >> 2) + (r & 3)
        return f's_lshl_b32 s{sT2}, -1, {n0}\ns_lshl_b32 s{sT3}, -1, {n0+4}'
    def job_masks(self, lo, hi):
        k = self.k
        def f():
            k(f'v_mov_b32 v{vT+10}, 0xffff')
            for j in range(lo, hi):
                k(self.dmask(2*j) + f'\nv_cndmask_b32 v{vM+j}, 0, v{vT+10}, s[{sT2}:{sT3}]')
                k(self.dmask(2*j+1) + f'\nv_cndmask_b32 v{vM+j}, v{vM+j}, -1, s[{sT2}:{sT3}]')
        return f

    def frag_list(self):
        c = self.cfg; F = []
        ea, eb = c.pa + c.ed, c.eb
        for n in range(25):
            slot = (n & 3) * 16384
            for q in range(8):
                f = dict(stage=n, first=(q == 0))
                if c.m16:
                    T = q & 1
                    if 10 <= n < 15:
                        t = q >> 1; kk = 4 * (n - 10) + t
                        f.update(off=slot + (t & 1) * 8192 + (t >> 1) * 1024, acc=vA1 + 4 * T, dm=8)
                    else:
                        t, part = q >> 2, (q >> 1) & 1
                        kk = 2 * (n if n < 10 else n - 15) + t
                        f.update(off=slot + t * 8192 + part * 1024, acc=vA0 + 8 * part + 4 * T, dm=16)
                        if n < 10 and q & 3 == 0: f['xread'] = (vX + 8 * kk, vA1 + t, slot)
                    f.update(addr=(vWR0, vWR1)[T], b=vX + 8 * kk, zero=(kk == 0))
                elif 10 <= n < 15:
                    kk = 8 * (n - 10) + q
                    f.update(addr=vWR2, off=slot + q * 2048, acc=vA1, b=vX + 4 * kk, zero=(kk == 0))
                else:
                    t, tt = q >> 1, q & 1
                    kk = 4 * (n if n < 10 else n - 15) + t
                    f.update(addr=(vWR0, vWR1)[tt], off=slot + t * 4096, acc=vA0 + 16 * tt, b=vX + 4 * kk, zero=(kk == 0))
                    if n < 10 and tt == 0: f['xread'] = (vX + 4 * kk, vA1 + t, slot)
                F.append(f)
                def ext(u):
                    g = dict(stage=n, first=False, b=vMEAN, zero=False)
                    if c.m16:
                        for T in range(2):
                            F.append(dict(g, addr=(vWR0, vWR1)[T], off=u * 2048, acc=(vA1 if u == 4 else vA0 + 8 * (u & 1)) + 4 * T, dm=8 if u == 4 else 16, ext=f'v{vEB}'))
                    else:
                        F.append(dict(g, addr=vWR2 if u == 4 else (vWR0, vWR1)[u & 1], off=0, acc=vA1 if u == 4 else vA0 + 16 * (u & 1), ext=L_EXT + (u >> 1) * 4096))
                if q == 1:
                    if n == ea: ext(0)
                    if n == min(ea + 1, 10): ext(1)
                    if n == eb: ext(4)
                    if n == c.ec: ext(2)
                    if n == c.ec + 1: ext(3)
        return F
    def issue_reads(self, F, i, h):
        k = self.k; f = F[i]; m16 = self.cfg.m16
        fr = vFR + 4 * (i & 3); a = f['addr']
        if h == 0 and f['first']: self.barrier(f['stage'])
        if 'xread' in f and (m16 or h == 0):
            d, xa, off = f['xread']
            k(f'ds_read_b128 {vr(d + 4*h,4)}, v{xa} offset:{off + 2048*h}')
        if 'ext' in f:
            if h == 0: k(f"v_add_u32 v{vT+9}, {f['ext']}, v{a}")
            a = vT + 9
            if m16:
                if h: f['tok'] = k(f"ds_read_b64_tr_b16 {vr(fr,2)}, v{a} offset:{f['off']}")
                return
        f['tok'] = k(f"ds_read_b64_tr_b16 {vr(fr + 2*h,2)}, v{a} offset:{f['off'] + 512*h}")
    def g1_mfma(self, f, i, mt):
        fr = vFR + 4 * (i & 3)
        if not self.cfg.m16:
            acc = vr(f['acc'], 16)
            self.k(f"v_mfma_f32_32x32x16_bf16 {acc}, {vr(fr,4)}, {vr(f['b'],4)}, {'0' if f['zero'] else acc}")
            return
        acc = vr(f['acc'] + f['dm'] * mt, 4)
        if 'ext' in f: self.k(f"v_mfma_f32_16x16x16_bf16 {acc}, {vr(fr,2)}, {vr(f['b'] + 2*mt,2)}, {acc}")
        else: self.k(f"v_mfma_f32_16x16x32_bf16 {acc}, {vr(fr,4)}, {vr(f['b'] + 4*mt,4)}, {'0' if f['zero'] else acc}")
    def close_window(self):
        if self.sd:
            self.sd.finish()
            self.counts[(self.S, self.typ, self.win)] = self.sd.n
            self.sd = None
        for j in self.end[self.win]: j()
    def barrier(self, n):
        k = self.k
        self.close_window()
        self.stamp('jj')
        toks = [self.stok[n]] + ([] if 'n' in self.cfg.skip else [g() for g in self.pre[n]])
        sk = self.cfg.skip
        k.wait(vm=max(t.n for t in toks), lg='all' if n in self.drain and not ('d' in sk) else None)
        if not ('B' in sk and n > 10 and n & 1) and not ('C' in sk and n > 10): k('s_barrier')
        if 10 < n < 14: self.stamp('jj')
        if n in (0, 10, 15): self.stamp()
        if n in (0, 1, 2, 3): self.stamp('p0')
        if n <= 10: self.stamp('p1')
        if 8 <= n <= 19: self.stamp('p2')
        if n >= 14: self.stamp('p3')
        for g in self.post[n]: g()
        k.c(f'---- GEMM1 stage {n}')
        self.win = n; self.wpos = 0
        self.sd = Side(k, list(self.lump[n]), self.cfg.wts) if self.lump[n] else None
    def deal(self, nslots):
        self.wpos += 1
        if self.sd:
            tot = self.known.get((self.S, self.typ, self.win), 0)
            wait = max([j for j in self.lump[self.win] if isinstance(j, int)] + [0])
            share = (self.cfg.gainb if self.S else self.cfg.gain) * tot / max(nslots - wait, 1)
            tilt = self.cfg.tilt * (-1 if self.S else 1)
            self.sd.give(share * (1 + tilt * (2.0 * self.wpos / nslots - 1)), self.wpos)
    def run_frags(self, F, lo, hi):
        k = self.k; m16 = self.cfg.m16
        for i in range(lo, hi):
            f = F[i]; more = i + 3 < len(F)
            ns = lambda: self.nfr[self.win] * (2 if m16 else 1)
            k.wait(lg=f['tok'])
            self.g1_mfma(f, i, 0)
            if m16:
                if more and not F[i + 3]['first']: self.issue_reads(F, i + 3, 0)
                self.deal(ns())
                self.g1_mfma(f, i, 1)
                if more and F[i + 3]['first']: self.issue_reads(F, i + 3, 0)
            elif more: self.issue_reads(F, i + 3, 0)
            if more: self.issue_reads(F, i + 3, 1)
            self.deal(ns())

    def gemm1(self):
        k = self.k; c = self.cfg; S = self.S
        L = self.lump = {n: [] for n in range(-1, 26)}
        E = self.end = {n: [] for n in range(-1, 26)}
        pre = self.pre = {n: [] for n in range(26)}
        post = self.post = {n: [] for n in range(26)}
        ea, eb = c.pa + c.ed, c.eb; mm = 2 if c.m16 else 1
        if S:
            for n, v in ((c.fa, 1), (c.fb, 2), (c.fq, 3)):
                post[n].append(lambda v=v: self.flag_store(v, who=f's_cmp_eq_u32 s{sGW}, 0'))
        else:
            for n, kind, thr in ((c.fa - 2, 'dbg', 1), (c.pa, 'rc', 1), (c.pb, 'pk', 2), (c.pq, 'kv', 3)):
                a_, i_, c_ = self.poll(kind, thr)
                E[n + 1].append(c_); L[{'pk': c.ab, 'kv': c.aq}.get(kind, n)].append(('late', a_)); E[n].append(i_)
            assert c.fa >= 2 and c.pa >= c.fa and c.pb >= c.ab >= max(c.pa + 2, c.c2) and c.pq >= c.aq >= c.pb + 2
        self.drain = set()
        nxt = 2
        for n in range(24):
            depth = c.dp1 if n < c.dpx else c.dp2
            while nxt <= min(n + depth, 24):
                mode = (c.dB if S else c.dA)[n >= 8]
                if mode == 'q': L[n] += self.dma_stage(nxt)
                elif mode == 'l': L[n] += [('late', f) for f in self.dma_stage(nxt)]
                elif mode == 'e': E[n] = self.dma_stage(nxt) + E[n] if nxt == n + depth and not (n == c.dpx and c.dp2 > c.dp1) else E[n] + self.dma_stage(nxt)
                else: post[n] += self.dma_stage(nxt)
                if nxt == n + 3 and nxt >= 4: self.drain.add(n)
                nxt += 1
        pre[c.fa].append(lambda: self.t_a)
        if S: {'q': L, 'e': E, 'p': post}[c.sm][c.sb].append(self.stats); self.job_pack(L)
        else: self.job_csb(E)
        c2 = c.c2b if S else c.c2
        L[c2].append(self.consts2); L[c2 + 1].append(self.consts3)
        assert c.c2b >= 8 and c.c2 + 1 > max(c.slot1) - 3
        pre[c.fb].append(lambda: self.t_b)
        L[c.pa + 2].append(('first', self.ext_a)); pre[ea].append(lambda: self.t_ea); post[ea].append(self.stats_prep)
        if S: L[c.pb + 2].append(self.ext_b); pre[c.ec].append(lambda: self.t_eb)
        assert ea <= 10 and ea <= eb <= 14 and c.pb + 2 < c.ec
        for j in range(4): L[11 + j].append(self.job_e1(j))
        def e2():
            for tt in range(2): self.qkv_half(2, tt, 0)
            self.t_q = self.t_store
        g0 = c.g0
        if g0 == 15: L[g0].append(4 * mm)
        L[g0].append(e2); pre[c.fq].append(lambda: self.t_q)
        assert c.fq > g0
        L[g0 + 1].append(self.job_ones)
        L[g0 + 2].append(self.job_masks(0, 4)); L[g0 + 3].append(self.job_masks(4, 8))
        L[c.c1].append(self.attn_c1); L[22].append(self.attn_c2); L[c.c3].append(self.attn_c3)
        assert c.ec <= 20 and c.c3 >= 25 - c.dp2
        def place(mode, n, J):
            if mode == 'q': L[n] += J
            elif mode == 'f': L[n] += [('first', j) for j in J]
            elif mode == 'e': E[n] += [('first', j) for j in J]
            else: post[n] += J
        kv = self.job_kv(); n = c.pq + 2
        while kv:
            assert g0 + 1 < n <= 24
            take = len(kv) if n == 24 else c.kvn
            place(c.kB if S else c.kA, n, kv[:take]); kv = kv[take:]; n += 1
        self.g2_plan()
        for n in range(c.pb + 2, 25):
            for _ in range((c.hoistb if S else c.hoist) if n <= c.hoist_hi else 0):
                hm = c.hB if S else c.hA
                if self.pf and self.pf[0][0] == 'w' and self.pf[0][1] + 3 < vX + 16 * (n - 16 + (hm == 'e')) + 8:
                    place(hm, n, [self.pf.pop(0)[2]])
        for D in (L, E):
            for n in D:
                late = [j[1] for j in D[n] if isinstance(j, tuple) and j[0] == 'late']
                first = [j[1] for j in D[n] if isinstance(j, tuple) and j[0] == 'first']
                D[n] = first + [j for j in D[n] if not isinstance(j, tuple)] + late
        F = self.frag_list()
        self.nfr = {n: sum(f['stage'] == n for f in F) for n in range(25)}
        self.nfr[0] -= 3; self.nfr[24] += 2
        self.typ = None; self.sd = None; self.win = -1; self.frac = 0.0
        for j in L[-1]: j()
        if c.prio == 2 and S: k('s_setprio 1')
        for i in range(3): self.issue_reads(F, i, 0); self.issue_reads(F, i, 1)
        at = lambda n: next(i for i, f in enumerate(F) if f['stage'] == n) - 3
        self.run_frags(F, 0, at(11))
        self.close_window(); E[10] = []
        tag = 'AB'[S]
        k(f's_bitcmp1_b32 s2, {7 if c.g1map else 6}\ns_cbranch_scc1 L_ty{tag}')
        s0 = k.snap(); nst = self.nst; res = []; e14 = E[14]
        for typ in (0, 1):
            k.restore(s0); self.nst = nst; self.typ = typ; self.win = 10; E[14] = e14
            if typ: k.label(f'L_ty{tag}')
            self.run_frags(F, at(11), at(15))
            self.close_window(); E[14] = []
            k('s_nop 1')
            if not typ: k(f's_branch L_tj{tag}')
            res.append((k.nvm - k.dvm, k.nlg, k.dlg, {n: k.nvm - self.stok[n].n for n in self.stok if n >= 15}, k.cond))
        assert res[0][1:3] == res[1][1:3] and not res[0][4] and not res[1][4], res
        for n in res[0][3]: self.stok[n] = Tok(k.nvm - min(res[0][3][n], res[1][3][n]))
        k.dvm = k.nvm - max(res[0][0], res[1][0])
        assert c.fb <= 14 and c.pb in (14, 15, 16) and c.pk + c.nslot + c.pkd + 2 <= 11
        k.label(f'L_tj{tag}')
        self.typ = None
        self.run_frags(F, at(15), len(F))
        self.close_window()
        if c.prio: k('s_setprio 0')
        self.stamp()

    def attn_c1(self):
        k = self.k; t = vT; S = self.S
        k(f"""v_and_b32 v{t}, 31, v{vL}
        v_lshrrev_b32 v{t+1}, 5, v{vL}
        s_lshl_b32 s{sT0}, s{sGW}, 9
        s_add_u32 s{sT2}, s{sT0}, {L_KV + S*3*CH}
        v_mul_u32_u24 v{aK0}, {CH}, v{t+1}
        v_lshl_add_u32 v{aK0}, v{t}, 4, v{aK0}
        v_add_u32 v{aK0}, s{sT2}, v{aK0}
        s_add_u32 s{sT3}, s{sT0}, {L_KV + 2*CH + 8*S}
        v_lshl_add_u32 v{aK1}, v{t}, 4, s{sT3}
        s_lshl2_add_u32 s{sT0}, s{sAI}, s{sGW}
        s_lshr_b32 s{sT1}, s{sAJ}, 2
        s_lshl3_add_u32 s{sT0}, s{sT0}, s{sT1}
        s_mul_i32 s{sT0}, s{sT0}, 5120
        s_add_u32 s{sT0}, s{sT0}, {OIM + S*512}
        s_and_b32 s{sT1}, s{sAJ}, 3
        s_lshl_b32 s{sT2}, s{sT1}, 10
        s_add_u32 s{sQS1}, s{sT0}, s{sT2}
        s_lshl_b32 s{sT2}, s{sT1}, 7
        s_add_u32 s{sQS2}, s{sT0}, s{sT2}
        s_add_u32 s{sQS2}, s{sQS2}, 4096""")
    def attn_c2(self):
        k = self.k; t = vT; S = self.S
        k(f"""v_lshrrev_b32 v{t+1}, 5, v{vL}
        s_lshl_b32 s{sT0}, s{sGW}, 9
        v_bfe_u32 v{t}, v{vL}, 2, 2
        v_lshl_add_u32 v{t}, v{t+1}, 2, v{t}
        v_lshlrev_b32 v{t}, 4, v{t}
        v_and_b32 v{aV}, 1, v{vL}
        v_mul_u32_u24 v{aV}, {CH}, v{aV}
        v_and_b32 v{t+2}, 2, v{vL}
        v_lshl_add_u32 v{aV}, v{t+2}, 2, v{aV}
        s_add_u32 s{sT1}, s{sT0}, {L_KV + (5 + 3*S)*CH}
        v_add3_u32 v{aV}, v{aV}, v{t}, s{sT1}
        s_add_u32 s{sT2}, s{sT0}, {L_KV + 7*CH + 8*S}
        v_add_u32 v{t}, s{sT2}, v{t}
        s_mov_b32 vcc_lo, 0x33330000
        s_mov_b32 vcc_hi, 0x33330000
        v_cndmask_b32 v{aV}, v{aV}, v{t}, vcc
        s_add_u32 s{sT1}, s{sT0}, {L_ONES + 8 - 8*S}
        v_lshl_add_u32 v{t}, v{t+1}, 6, s{sT1}
        s_lshl_b64 vcc, vcc, 2
        v_cndmask_b32 v{aV}, v{aV}, v{t}, vcc
        v_add_u32 v{t}, 16, v{t}
        s_mov_b32 vcc_lo, 0x22220000
        s_mov_b32 vcc_hi, 0x22220000
        v_cndmask_b32 v{aV}, v{aV}, v{t}, vcc""")
    def attn_c3(self):
        k = self.k; t = vT
        k(f"""v_lshrrev_b32 v{t+1}, 5, v{vL}
        v_bfe_u32 v{t}, v{vL}, 4, 1
        v_mul_u32_u24 v{t}, 20480, v{t}
        v_and_b32 v{t+2}, 15, v{vL}
        v_lshl_add_u32 v{aO0}, v{t+2}, 4, v{t}
        v_lshl_add_u32 v{aO0}, v{t+1}, 8, v{aO0}
        v_lshl_add_u32 v{aO1}, v{t+2}, 3, v{t}
        v_lshl_add_u32 v{aO1}, v{t+1}, 30, v{aO1}""")
    def rdK(self, t, buf, a0=None, a1=None):
        k = self.k; k0, k1 = vKB[buf]
        k(f'ds_read_b128 {vr(k0,4)}, v{a0 or aK0} offset:{t*512}')
        return k(f'ds_read_b64 {vr(k1,2)}, v{a1 or aK1} offset:{t*512}')
    def rdV(self, t, buf, a=None):
        k = self.k; v = vVB[buf]
        for q in range(4): r = k(f'ds_read_b64_tr_b16 {vr(v+2*q,2)}, v{a or aV} offset:{t*512 + q*128}')
        return r
    def qk(self, buf, S):
        k = self.k; k0, k1 = vKB[buf]
        k(f'v_mfma_f32_32x32x16_bf16 {vr(S,16)}, {vr(k0,4)}, {vr(vQ,4)}, 0')
        k(f'v_mfma_f32_32x32x8_bf16 {vr(S,16)}, {vr(k1,2)}, {vr(vQ+4,2)}, {vr(S,16)}')
    def pv(self, buf, half, P, first=False):
        self.k(f"v_mfma_f32_32x32x16_bf16 {vr(vO,16)}, {vr(vVB[buf]+4*half,4)}, {vr(P+4*half,4)}, {'0' if first else vr(vO,16)}")
    def attention(self, pf, hook=None):
        k = self.k; c = self.cfg
        npf = len(pf); pts = [0]; NP = c.bnp if self.S else 30
        def sp():
            pts[0] += 1
            while npf - len(pf) < (npf * pts[0] + NP - 1) // NP and pf: pf.pop(0)()
        def ex(Sb, lo, hi):
            for r in range(lo, hi): k(f'v_exp_f32 v{Sb+r}, v{Sb+r}')
        def cv(Sb, half):
            for r in range(8*half, 8*half + 8, 2): k(f'v_cvt_pk_bf16_f32 v{vPP+r//2}, v{Sb+r}, v{Sb+r+1}')
        def qa(buf, Sb): k(f'v_mfma_f32_32x32x16_bf16 {vr(Sb,16)}, {vr(vKB[buf][0],4)}, {vr(vQ,4)}, 0')
        def qb(buf, Sb): k(f'v_mfma_f32_32x32x8_bf16 {vr(Sb,16)}, {vr(vKB[buf][1],2)}, {vr(vQ+4,2)}, {vr(Sb,16)}')
        def rv(t, buf, q): return k(f'ds_read_b64_tr_b16 {vr(vVB[buf]+2*q,2)}, v{aV} offset:{t*512 + q*128}')
        def merge(far, diag, lo=0, hi=16):
            for r in range(lo, hi):
                k(self.dmask(r) + f'\nv_cndmask_b32 v{far+r}, v{far+r}, v{diag+r}, s[{sT2}:{sT3}]')
        first = [True]
        def pv(buf, half, P):
            self.pv(buf, half, P, first[0]); first[0] = False
        nb = [0]
        def mid():
            nb[0] += 1
            self.stamp('at')
            if c.fair:
                P = c.fairB if self.S else c.fairA
                if nb[0] > 1 and P[nb[0]-1] != P[nb[0]-2]: k(f's_setprio {P[nb[0]-1]}')
            if nb[0] == c.bh_at:
                k.wait(vm=self.t_hl)
                k(f'v_mov_b32 v2, {L_CNT}')
                self.t_arr = self.arrive(6, 2, 9)
            if nb[0] == 8 and hook: hook()
        def block(Sb, vb, tv, nq, nk, nv, nq2=None):
            mid(); tk = tvn = None
            ex(Sb, 0, 4)
            if nq: k.wait(lg=nq[2]); qa(nq[0], nq[1])
            if nv: rv(nv[0], nv[1], 0); rv(nv[0], nv[1], 1)
            sp()
            ex(Sb, 4, 8)
            if nb[0] == c.bh_at: self.last_signals(self.t_arr, 9, 4, 8)
            if nq: qb(nq[0], nq[1])
            if nv: rv(nv[0], nv[1], 2); tvn = rv(nv[0], nv[1], 3)
            cv(Sb, 0); ex(Sb, 8, 10)
            k.wait(lg=tv); pv(vb, 0, vPP)
            sp()
            if nq2:
                ex(Sb, 10, 13); k.wait(lg=nq2[2]); qa(nq2[0], nq2[1]); ex(Sb, 13, 16); qb(nq2[0], nq2[1]); cv(Sb, 1)
            else:
                ex(Sb, 10, 16); cv(Sb, 1)
            if nk: tk = self.rdK(*nk)
            sp()
            pv(vb, 1, vPP)
            sp()
            return tk, tvn
        def merged(Sb, bfar, bdiag, tv, nq=None, nk=None):
            mid(); tk = None
            ex(Sb, 0, 4)
            if nq: k.wait(lg=nq[2]); qa(nq[0], nq[1])
            ex(Sb, 4, 8)
            if nq: qb(nq[0], nq[1])
            if nk: tk = self.rdK(*nk)
            for half in range(2):
                cv(Sb, half)
                for j in range(4*half, 4*half + 4): k(f'v_and_b32 v{vM+j}, v{vM+j}, v{vPP+j}')
                for j in range(4*half, 4*half + 4): k(f'v_xor_b32 v{vPP+j}, v{vM+j}, v{vPP+j}')
                k.wait(lg=tv); pv(bdiag, half, vM)
                if half == 0: ex(Sb, 8, 12)
                sp()
                pv(bfar, half, vPP)
                if half == 0: ex(Sb, 12, 16)
            return tk
        k.c('==== attention')
        S = (vS0, vS1); S2 = 212 if c.s5k else vS2
        if c.fair: k(f's_setprio {(c.fairB if self.S else c.fairA)[0]}')
        self.stamp('at')
        if not (self.S and c.blast):
            t0 = self.rdK(0, 0); t8 = self.rdK(8, 1)
            self.rdV(0, 0); tv8 = self.rdV(8, 1)
            k.wait(lg=t0); self.qk(0, S[0])
            k.wait(lg=t8); self.qk(1, S[1])
            tk = self.rdK(1, 0)
            merge(S[0], S[1])
            tk = merged(S[0], 0, 1, tv8, (0, S[1], tk), (2, 1))
            tv = self.rdV(1, 1)
            for t in range(1, 8):
                tk, tv = block(S[t & 1], t & 1, tv, (t & 1, S[(t+1) & 1], tk) if t < 7 else None,
                               (t + 2, (t+1) & 1) if t < 6 else None, (t + 1, (t+1) & 1) if t < 7 else None)
        else:
            t1 = self.rdK(1, 0); tk = self.rdK(2, 1); tv = self.rdV(1, 1)
            k.wait(lg=t1); self.qk(0, S[1])
            for t in range(1, 7):
                tk, tv = block(S[t & 1], t & 1, tv, (t & 1, S[(t+1) & 1], tk), (t + 2 if t < 6 else 0, (t+1) & 1), (t + 1, (t+1) & 1))
            t8 = self.rdK(8, 0)
            _, tv0 = block(S[1], 1, tv, (1, S[0], tk), None, (0, 0), (0, S2, t8))
            merge(S[0], S2, 0, 4)
            tv8 = self.rdV(8, 1)
            merge(S[0], S2, 4, 16)
            merged(S[0], 0, 1, tv8)
        assert not pf
        self.stamp('at')
        tag = 'AB'[self.S]
        k.c('range check of the row sums; true-maximum softmax otherwise')
        k(f'v_mov_b32 v8, {hex(f2u(2.0**-40))}\nv_mov_b32 v9, {hex(f2u(2.0**40))}\nv_med3_f32 v8, v{vO+12}, v8, v9')
        if c.fin:
            k(f'v_mul_f32 v9, 0, v{vO}')
            for r in range(1, 12): k(f'v_fmac_f32 v{8 + (r & 1)}, 0, v{vO+r}')
            k('v_add_f32 v8, v8, v9')
        k(f'v_cmp_eq_f32 vcc, v8, v{vO+12}\ns_cmp_eq_u64 vcc, -1\ns_cbranch_scc1 L_aok{tag}')
        if not c.skip: k(f's_call_b64 s[{sT4}:{sT5}], L_fallback')
        k.label(f'L_aok{tag}')
        if not c.s5k: self.lds_add(7, 1, 2)
        k(f'v_rcp_f32 v8, v{vO+12}')
        for r in range(12): k(f'v_mul_f32 v{vO+r}, v8, v{vO+r}')
        for j in range(6): k(f'v_cvt_pk_bf16_f32 v{vS0+j}, v{vO+2*j}, v{vO+2*j+1}')
        k(f'buffer_store_dwordx4 {vr(vS0,4)}, v{aO0}, s[{S_WS}:{S_WS+3}], s{sQS1} offen {self.cfg.stf}')
        self.t_o = k(f'buffer_store_dwordx2 {vr(vS0+4,2)}, v{aO1}, s[{S_WS}:{S_WS+3}], s{sQS2} offen {self.cfg.stf}')
    def fallback(self, k):
        sB, sXr, sOr = sT0, sHE, sQF
        mx, ninf, a0, a1, a2 = 8, 9, vM, vM + 1, vM + 2
        k.c('==== softmax with the true row maximum: pass 0 finds it, pass 1 accumulates')
        k.label('L_fallback')
        k('s_nop 7\ns_nop 7')
        k(f'v_mov_b32 v{ninf}, 0xff800000\nv_mov_b32 v{mx}, 0xff800000')
        for ps in range(2):
            k(f's_lshl2_add_u32 s{sB}, s{sAI}, s{sGW}\ns_sub_i32 s{sB}, 8, s{sB}\ns_max_i32 s{sB}, s{sB}, 0')
            k.label(f'L_fb{ps}')
            k(f's_lshl_b32 s{sT1}, s{sB}, 9\nv_add_u32 v{a0}, s{sT1}, v{aK0}\nv_add_u32 v{a1}, s{sT1}, v{aK1}\nv_add_u32 v{a2}, s{sT1}, v{aV}')
            self.rdK(0, 0, a0, a1)
            if ps: self.rdV(0, 0, a2)
            k(f's_cmp_eq_u32 s{sB}, 0\ns_cselect_b32 s{sXr}, -1, 0\ns_and_b32 s{sT1}, s{sB}, 7\ns_cselect_b32 s{sOr}, -1, 0\ns_waitcnt lgkmcnt(0)')
            self.qk(0, vS0)
            for r in range(16):
                k(self.dmask(r) + f'''
                s_xor_b32 s{sT2}, s{sT2}, s{sXr}
                s_xor_b32 s{sT3}, s{sT3}, s{sXr}
                s_or_b32 s{sT2}, s{sT2}, s{sOr}
                s_or_b32 s{sT3}, s{sT3}, s{sOr}
                v_cndmask_b32 v{vS0+r}, v{ninf}, v{vS0+r}, s[{sT2}:{sT3}]''')
            if ps == 0:
                for r in range(0, 16, 2): k(f'v_max3_f32 v{mx}, v{mx}, v{vS0+r}, v{vS0+r+1}')
            else:
                for r in range(16): k(f'v_sub_f32 v{vS0+r}, v{vS0+r}, v{mx}')
                for r in range(16): k(f'v_exp_f32 v{vS0+r}, v{vS0+r}')
                for r in range(0, 16, 2): k(f'v_cvt_pk_bf16_f32 v{vPP+r//2}, v{vS0+r}, v{vS0+r+1}')
                self.pv(0, 0, vPP); self.pv(0, 1, vPP)
            k.flush_hazards()
            k(f's_add_u32 s{sB}, s{sB}, 1\ns_cmp_le_u32 s{sB}, 8\ns_cbranch_scc1 L_fb{ps}')
            if ps == 0:
                k(f'v_mov_b32 v{a0}, v{mx}\nv_permlane32_swap_b32 v{mx}, v{a0}\nv_max_f32 v{mx}, v{mx}, v{a0}')
                for r in range(16): k(f'v_mov_b32 v{vO+r}, 0')
        k(f's_setpc_b64 s[{sT4}:{sT5}]')

    def ldW(self, q, kap, regs):
        k = self.k; J = []
        for T in range(5):
            def f(T=T):
                k(f's_add_u32 s{sT0}, s{sWB}, {kap*5120}')
                a, off = (aL16, T*1024) if T < 4 else (aL16b, 0)
                self.toks[('w', q)] = k(f'buffer_load_dwordx4 {vr(regs[T],4)}, v{a}, s[{S_WS}:{S_WS+3}], s{sT0} offen offset:{off} sc1')
            J.append(('w', regs[T], f))
        return J
    def ldA(self, q, kap, regs, mid=False):
        k = self.k; J = []
        for d in range(4):
            def f(d=d):
                so = sAM + d; off = kap * 1024
                if off > 3500:
                    k(f's_add_u32 s{sT0}, s{so}, {off & ~4095}'); so = sT0; off &= 4095
                if mid:
                    k(f'buffer_load_dwordx2 {vr(regs[d],2)}, v{aL8}, s[{S_WS}:{S_WS+3}], s{so} offen offset:{off} sc1')
                    self.toks[('a', q)] = k(f'buffer_load_dwordx2 {vr(regs[d]+2,2)}, v{aL8}, s[{S_WS}:{S_WS+3}], s{so} offen offset:{off+512} sc1')
                else:
                    self.toks[('a', q)] = k(f'buffer_load_dwordx4 {vr(regs[d],4)}, v{aL16}, s[{S_WS}:{S_WS+3}], s{so} offen offset:{off} sc1')
            J.append(('a', regs[d], f))
        return J
    def stage_w(self):
        k = self.k; J = []
        for q in range(4):
            for T in range(5):
                def f(q=q, T=T):
                    o = T * 1024
                    k(f's_add_u32 m0, s{sSTG}, {q*5120 + o}\ns_add_u32 s{sT0}, s{sWB}, {LATE[q]*5120 + o}')
                    k(f'buffer_load_dwordx4 v{aL16}, s[{S_WS}:{S_WS+3}], s{sT0} offen sc1 lds')
                J.append(f)
        return J
    def wo_round(self, a):
        k = self.k
        def f():
            k(f's_add_u32 m0, s{sAM+1}, {L_WO + a*4096}\ns_add_u32 s{sT0}, s{sAM+2}, {a*4096}')
            if a == 24:
                k(f's_cmp_eq_u32 s{sGW}, 3\ns_cselect_b32 s{sT1}, 1024, 0\ns_sub_u32 s{sT0}, s{sT0}, s{sT1}\ns_sub_u32 m0, m0, s{sT1}')
            self.t_wo = k(f'buffer_load_dwordx4 v{aL16}, s[{S_WS}:{S_WS+3}], s{sT0} offen sc1 lds')
        return f
    def g2_plan(self):
        self.toks = {}
        if self.S and self.cfg.s5k:
            k = self.k; self.wt = {}
            def w(j):
                def f():
                    k(f's_add_u32 s{sT0}, s{sCD}, {j*1024}')
                    self.wt[j] = k(f'buffer_load_dwordx4 {vr(112+4*j,4)}, v{aL16}, s[{S_WS}:{S_WS+3}], s{sT0} offen sc1')
                return f
            self.pf = [('w', 112 + 4*j, w(j)) for j in range(25)]
        elif self.S:
            k = self.k
            self.WS = WS = {a: (112 + 4*(a-1) if a < 15 else 168 + 4*a if a < 17 else 112 + 4*(a-3)) for a in range(1, 23)}
            self.wt = {}
            def w(a):
                def f():
                    k(f's_add_u32 s{sT0}, s{sAM+2}, {a*4096}')
                    self.wt[a] = k(f'buffer_load_dwordx4 {vr(WS[a],4)}, v{aL16}, s[{S_WS}:{S_WS+3}], s{sT0} offen sc1')
                return f
            self.pf = [('w', WS[a], w(a)) for a in sorted(WS, key=WS.get)]
        else:
            self.W = [[112 + 20*(q&3) + 4*T for T in range(5)] if not 4 <= q < 8 else [12 + 4*T for T in range(5)] for q in range(12)]
            self.A = [[192 + 16*(q&3) + 4*m for m in range(4)] for q in range(12)]
            self.pf = sum((self.ldW(q, EARLY[q], self.W[q]) for q in range(4)), []) + sum((self.ldA(q, EARLY[q], self.A[q]) for q in range(4)), [])
    def arrive(self, word, a, d):
        k = self.k
        k(f'v_mov_b32 v{d}, 1\ns_mov_b64 exec, 1')
        t = k(f'ds_add_rtn_u32 v{d}, v{a}, v{d} offset:{4*word}')
        k('s_mov_b64 exec, -1')
        return t
    def last_signals(self, tok, d, val, t):
        self.k.wait(lg=tok)
        self.flag_store(val, t, f'v_readfirstlane_b32 s{sT0}, v{d}\ns_cmp_lg_u32 s{sT0}, 7')
    def lds_add(self, word, val, a=8):
        self.k(f'v_mov_b32 v9, {val}\ns_mov_b64 exec, 1\nds_add_u32 v{a}, v9 offset:{4*word}\ns_mov_b64 exec, -1')
    def kstep(self, wregs, aregs, first, q, lds=None):
        k = self.k
        q = [j[2] if isinstance(j, tuple) else j for j in q]
        for T in range(5):
            if lds: k.wait(lg=lds[0][T])
            for mt in range(4):
                acc = vACC + 4 * (5 * mt + T)
                k(f"v_mfma_f32_16x16x32_bf16 {vr(acc,4)}, {vr(wregs[T],4)}, {vr(aregs[mt],4)}, {'0' if first else vr(acc,4)}")
                if q and (mt % 2 == 1 or len(q) > 10): q.pop(0)()
                if lds and lds[1] is not None and mt == 0 and T > 0: lds[0][T-1] = lds[1](T - 1)
        while q: q.pop(0)()
        if lds and lds[1] is not None: lds[0][4] = lds[1](4)
    def red_write(self, base):
        k = self.k
        for d in range(1, 4):
            k(f'''s_add_u32 s{sT0}, s{sGW}, {d}
            s_and_b32 s{sT0}, s{sT0}, 3
            s_mul_i32 s{sT0}, s{sT0}, 15360
            s_add_u32 s{sT0}, s{sT0}, {base + (d-1)*5120}
            v_add_u32 v8, s{sT0}, v{aL16}''')
            for T in range(5): r = k(f'ds_write_b128 v8, {vr(vACC + 4*(5*d+T),4)} offset:{T*1024}')
        return r
    def red_read(self, base):
        k = self.k
        k(f's_mul_i32 s{sT0}, s{sGW}, 15360\ns_add_u32 s{sT0}, s{sT0}, {base}\nv_add_u32 v8, s{sT0}, v{aL16}')
        toks = []
        for T in range(5):
            for d in range(3): r = k(f'ds_read_b128 {vr(vACC + 20 + 4*(5*d+T),4)}, v8 offset:{d*5120 + T*1024}')
            toks.append(r)
        return toks
    def sum4(self, T):
        k = self.k
        for e in range(4):
            a = vACC + 4*T + e
            k(f'v_add_f32 v{a}, v{a}, v{a+20}\nv_add_f32 v{a+40}, v{a+40}, v{a+60}')
        for e in range(4):
            a = vACC + 4*T + e
            k(f'v_add_f32 v{a}, v{a}, v{a+40}')
    def lds_wait(self, word, thr, slp, a=8):
        k = self.k; self.uid += 1; u = self.uid
        k.label(f'L_lw{u}')
        k(f'ds_read_b32 v9, v{a} offset:{4*word}\ns_waitcnt lgkmcnt(0)\nv_readfirstlane_b32 s{sT0}, v9\ns_cmp_ge_u32 s{sT0}, {thr}\ns_cbranch_scc1 L_lwd{u}')
        if slp: k(f's_sleep {slp}')
        k(f's_branch L_lw{u}')
        k.label(f'L_lwd{u}')
        k.dlg = k.nlg

    def back_half(self):
        k = self.k; c = self.cfg; S = self.S
        toks = self.toks
        k.c('==== epilogue of pass 3 (SwiGLU)')
        pf = [j[2] for j in self.pf]
        if S and c.bprio: k('s_setprio 1')
        J = self.job_gu(0, sHL) + self.job_gu(1, sHL)
        for n, j in enumerate(J):
            j()
            ep = c.epfb if S else c.epf
            if ep and n % ep == ep - 1 and pf: pf.pop(0)()
        self.t_hl = self.t_store
        k.wait(vm=self.t_kv, lg='all')
        k('s_barrier')
        self.stamp()
        if S:
            self.b_pre(); self.bq += pf
            pf = self.stage_w() + ([] if c.s5k else [self.wo_round(0), self.wo_round(23), self.wo_round(24)]) + self.bq[:c.bin]
            self.bq = self.bq[c.bin:]
            self.attention(pf)
            self.stamp()
            self.setBk() if c.s5k else self.setB()
        else:
            st = {}
            def hook():
                if c.g1map:
                    k(f"""v_lshrrev_b32 v10, 5, v{vL}
                    v_lshlrev_b32 v10, 7, v10
                    v_bfe_u32 v11, v{vL}, 4, 1
                    v_lshl_add_u32 v10, v11, 14, v10
                    s_lshl2_add_u32 s{sT0}, s{sPL2}, s{sGW}
                    s_lshl_b32 s{sPL2}, s{sT0}, 8""")
                else:
                    k(f"""v_lshrrev_b32 v10, 4, v{vL}
                    v_lshlrev_b32 v10, 13, v10
                    s_lshr_b32 s{sT0}, s{sPL2}, 3
                    s_lshl1_add_u32 s{sT0}, s{sGW}, s{sT0}
                    s_and_b32 s{sT1}, s{sPL2}, 7
                    s_lshl3_add_u32 s{sT0}, s{sT1}, s{sT0}
                    s_lshl_b32 s{sPL2}, s{sT0}, 7""")
                k(f'v_add_u32 v1, s{sSTG}, v{aL16}')
                if c.hp < 0: self.t_hp = k(f'buffer_load_dword v11, v10, s[{S_WS}:{S_WS+3}], s{sPL2} offen sc1')
            self.attention(pf, hook)
            self.stamp()
            self.setA()

    def setA(self):
        k = self.k; c = self.cfg
        W, A, toks = self.W, self.A, self.toks
        KAP = EARLY + LATE
        k.c('==== f = h @ w_down')
        k(f'v_mov_b32 v8, {L_CNT}')
        def bo():
            k.wait(vm=self.t_o)
            self.t_arr = self.arrive(5, 8, 2)
        if c.fair: k('s_setprio 0')
        pend = []
        for q in range(5):
            self.stamp('g2')
            if q == c.bo_at: bo()
            if q == c.hp: self.t_hp = k(f'buffer_load_dword v11, v10, s[{S_WS}:{S_WS+3}], s{sPL2} offen sc1')
            if q == c.hc: self.poll_check(self.t_hp, 11, 10, S_WS, f's{sPL2}', 4, role=False, slp=c.slp)
            J = []
            if q >= 1:
                pend += self.ldA(q + 3, KAP[q + 3], A[q + 3])
                if q >= c.hc: J += pend; pend = []
                J += self.ldW(q + 7, KAP[q + 7], W[q + 7])
            if q == c.bo_at: J.insert(min(2, len(J)), lambda: self.last_signals(self.t_arr, 2, 5, 4))
            if q < 4:
                k.wait(vm=toks[('a', q)])
                self.kstep(W[q], A[q], q == 0, J)
            else:
                self.lds_wait(5, 8, 1)
                rd = lambda q: (lambda T: k(f'ds_read_b128 {vr(12+4*T,4)}, v1 offset:{(q-4)*5120 + T*1024}'))
                lt = [rd(4)(T) for T in range(5)]
                carry = J
        self.stamp()
        for q in range(4, 12 - c.nfuse):
            nx = q + 3
            J = carry if q == 4 else (self.ldA(nx, KAP[nx], A[nx]) if nx < 12 else [])
            if ('a', q) not in toks:
                for f in J: (f[2] if isinstance(f, tuple) else f)()
                J = []
            if q == 8:
                for d in range(1, 4):
                    J.append(lambda d=d: k(f's_add_u32 s{sT0}, s{sGW}, {d}\ns_and_b32 s{sT0}, s{sT0}, 3\ns_mul_i32 s{sT0}, s{sT0}, 15360\ns_add_u32 s{sT0}, s{sT0}, {L_RF + (d-1)*5120}\nv_add_u32 v{11+d}, s{sT0}, v{aL16}'))
                J.append(lambda: k(f's_mul_i32 s{sT1}, s{sGW}, 15360\ns_add_u32 s{sT1}, s{sT1}, {L_RF}\nv_add_u32 v10, s{sT1}, v{aL16}'))
            if q == 11 - c.nfuse:
                def c1(): self.t_c1 = k('ds_read_b32 v9, v8 offset:4')
                J.append(c1)
            k.wait(vm=max(toks[('a', q)].n, toks[('w', q)].n if q >= 8 else 0))
            self.kstep(W[q], A[q], False, J, lds=(lt, rd(q + 1) if q < 7 else None) if q < 8 else None)
            if q == 7: self.lds_add(1, 0x100)
            if q == c.og: self.lds_add(8, 1)
            if q in (4, 5, 6, 7, 8): self.stamp('g2')
        k.wait(lg=self.t_c1)
        k(f'v_readfirstlane_b32 s{sT0}, v9\ns_cmp_ge_u32 s{sT0}, 0x400\ns_cbranch_scc1 L_stg')
        self.lds_wait(1, 0x400, 1)
        k.label('L_stg')
        wq = []; since = 0
        for d in (1, 2, 3, 0):
            for q in range(12 - c.nfuse, 12):
                k.wait(vm=max(toks[('a', q)].n, toks[('w', q)].n))
                for T in range(5):
                    acc = vACC + 4 * (5 * d + T)
                    k(f'v_mfma_f32_16x16x32_bf16 {vr(acc,4)}, {vr(W[q][T],4)}, {vr(A[q][d],4)}, {vr(acc,4)}')
                    since += 1
                    if wq and wq[0][0] != d and since >= c.nfuse: k(wq.pop(0)[1]); since = 0
                    if d and q == 11: wq.append((d, f'ds_write_b128 v{11+d}, {vr(acc,4)} offset:{T*1024}'))
        while wq: k(wq.pop(0)[1])
        assert not wq
        self.stamp()
        self.stamp('g2')
        self.lds_add(0, 1)
        self.lds_wait(0, 4, 0)
        tr = []
        for T in range(5):
            for d in range(3): r = k(f'ds_read_b128 {vr(vACC + 20 + 4*(5*d+T),4)}, v10 offset:{d*5120 + T*1024}')
            tr.append(r)
        if c.hsc: k(f's_mov_b32 s{sT1}, {hex(f2u(-LOG2E))}')
        k(f's_lshl_b32 s{sT0}, s{sGW}, 2\nv_add_u32 v8, s{sT0}, v8')
        for T in range(5):
            k.wait(lg=tr[T]); self.sum4(T)
            a = vACC + 4*T; b = a + 20
            if c.hsc:
                for e in range(4): k(f'v_exp_f32 v{b+e}, v{a+e}')
                for e in range(4): k(f'v_fma_f32 v{b+e}, v{b+e}, s{sT1}, s{sT1}')
            else:
                for e in range(4): k(f'v_mul_f32 v{b+e}, {hex(f2u(-LOG2E))}, v{a+e}')
                for e in range(4): k(f'v_exp_f32 v{b+e}, v{b+e}')
                for e in range(4): k(f'v_add_f32 v{b+e}, 1.0, v{b+e}')
            for e in range(4): k(f'v_rcp_f32 v{b+e}, v{b+e}')
            for e in range(4): k(f'v_mul_f32 v{a+e}, v{a+e}, v{b+e}')
            k(f'ds_write_b128 v10, {vr(a,4)} offset:{T*1024}')
            if c.gcnt == 2 and T in (1, 3): self.lds_add(12, 1)
        if c.gcnt:
            self.lds_add(12, 1)
            self.stamp('g2')
        else:
            k.wait(lg='all')
            self.stamp('g2')
            k('s_barrier')
        self.stamp(); self.stamp('tl')
        if 'tl' in c.grps: k('s_waitcnt lgkmcnt(0)')

    def b_pre(self):
        k = self.k; c = self.cfg
        XR, F99 = (244 if c.s5k else 208), 240
        k(f"""v_lshrrev_b32 v8, 2, v{vL}
        v_mul_u32_u24 v8, 1280, v8
        v_and_b32 v9, 3, v{vL}
        v_lshl_add_u32 v1, v9, 4, v8
        v_lshl_add_u32 v10, v9, 3, v8
        s_lshl2_add_u32 s{sT0}, s{sR2}, s{sGW}
        s_mul_i32 s{sT0}, s{sT0}, {16*1280}
        s_mul_i32 s{sT1}, s{sC2}, 160
        s_add_u32 s{sT0}, s{sT0}, s{sT1}
        s_bitcmp1_b32 s{sC2}, 0
        s_cselect_b32 s{sT1}, 32, 0
        s_cselect_b32 s{sT2}, 0, 128
        s_add_u32 s{sXO}, s{sT0}, s{sT1}
        s_add_u32 s{sWO_}, s{sT0}, s{sT2}""")
        def f99():
            k(f's_add_u32 s{sT0}, s{sCD}, {99*1024}')
            self.wt['x'] = k(f'buffer_load_dwordx4 {vr(F99,4)}, v{aL16}, s[{S_WS}:{S_WS+3}], s{sT0} offen sc1')
        self.bq = [lambda: k(f'buffer_load_dwordx4 {vr(XR,4)}, v1, s[{S_X}:{S_X+3}], s{sXO} offen'),
                   lambda: k(f'buffer_load_dwordx4 {vr(XR+4,4)}, v1, s[{S_X}:{S_X+3}], s{sXO} offen offset:64'),
                   lambda: self.wt.__setitem__('x', k(f'buffer_load_dwordx2 {vr(XR+8,2)}, v10, s[{S_X}:{S_X+3}], s{sWO_} offen'))] + ([] if c.s5k else [f99])
    def setBk(self):
        k = self.k; c = self.cfg; wt = self.wt; toks = self.toks
        XR = 244; L_RS = L_KV
        W = [[112 + 20*q + 4*T for T in range(5)] for q in range(5)]
        sl = [212 + 4*j for j in range(8)] + [12 + 4*j for j in range(5)] + W[0] + W[1][:2]
        A = [sl[4*q:4*q+4] for q in range(5)]
        self.stamp('g2')
        k(f'v_mov_b32 v8, {L_CNT}')
        for f in self.bq: f()
        self.stamp('g2')
        k(f"""v_lshlrev_b32 v{aL8}, 3, v{vL}
        v_lshrrev_b32 v2, 5, v{vL}
        v_bfe_u32 v11, v{vL}, 4, 1
        v_lshl_add_u32 v2, v11, 7, v2
        s_lshl2_add_u32 s{sT0}, s{sPL2}, s{sGW}
        s_lshl_b32 s{sT0}, s{sT0}, 1
        v_add_lshl_u32 v2, v2, s{sT0}, 7""")
        k.wait(vm=wt['x'])
        k(f'v_and_b32 v9, 15, v{vL}\nv_lshrrev_b32 v7, 4, v{vL}\nv_lshl_add_u32 v9, v9, 2, v7\nv_lshlrev_b32 v9, 2, v9')
        for e in range(10): k(f'ds_bpermute_b32 v{XR+e}, v9, v{XR+e}')
        k(f'v_and_b32 v7, 3, v{vL}\nv_lshlrev_b32 v7, 6, v7\nv_and_or_b32 v7, v{vL}, 60, v7')
        k.wait(vm=self.t_o)
        t = self.arrive(5, 8, vACC); self.last_signals(t, vACC, 5, vACC + 2)
        k(f's_setprio {c.bprio2}')
        for _ in range(4): self.stamp('g2')
        self.lds_wait(8, 4, 2)
        tp = k(f'buffer_load_dword v11, v2, s[{S_WS}:{S_WS+3}], 0 offen sc1')
        self.stamp('g2')
        self.poll_check(tp, 11, 2, S_WS, '0', 5, role=False, slp=c.slp)
        self.stamp(); self.stamp('g2')
        k(f's_setprio {c.bp5}')
        LD = sum((self.ldA(q, q, A[q], mid=(q == 4)) for q in range(5)), [])
        for f in LD[:13]: f[2]()
        if c.bp4 is not None: k(f's_setprio {c.bp4}')
        ad = (2, 4, 5)
        def addr(d): return lambda: k(f's_add_u32 s{sT0}, s{sGW}, {d}\ns_and_b32 s{sT0}, s{sT0}, 3\ns_mul_i32 s{sT0}, s{sT0}, 15360\ns_add_u32 s{sT0}, s{sT0}, {L_RS + (d-1)*5120}\nv_add_u32 v{ad[d-1]}, s{sT0}, v{aL16}')
        self.stamp('g2')
        for q in range(5 - c.nfb):
            k.wait(vm=toks[('a', q)])
            self.kstep(W[q], A[q], q == 0, {0: [addr(1), addr(2), addr(3)], 1: LD[13:18], 2: LD[18:]}.get(q, []))
        self.stamp('g2')
        wq = []; since = 0; XU = W[2][0]
        un = [f'v_lshlrev_b32 v{XU+2*e}, 16, v{XR+e}\nv_and_b32 v{XU+2*e+1}, 0xffff0000, v{XR+e}' for e in range(10)]
        for d in (1, 2, 3, 0):
            for q in range(5 - c.nfb, 5):
                k.wait(vm=toks[('a', q)])
                for T in range(5):
                    acc = vACC + 4 * (5 * d + T)
                    k(f'v_mfma_f32_16x16x32_bf16 {vr(acc,4)}, {vr(W[q][T],4)}, {vr(A[q][d],4)}, {vr(acc,4)}')
                    since += 1
                    if wq and wq[0][0] != d and since >= c.nfb: k(wq.pop(0)[1]); since = 0
                    if d and q == 4: wq.append((d, f'ds_write_b128 v{ad[d-1]}, {vr(acc,4)} offset:{T*1024}'))
                    if un: k(un.pop(0))
        while wq: k(wq.pop(0)[1])
        self.stamp(); self.stamp('g2')
        self.lds_add(2, 1)
        k(f's_mul_i32 s{sT1}, s{sGW}, 15360\nv_add_u32 v11, s{sT1}, v{aL16}\nv_add_u32 v2, {L_RS}, v11')
        self.lds_wait(2, 4, 0)
        tr = []
        for T in range(5):
            for d in range(3): r = k(f'ds_read_b128 {vr(vACC + 20 + 4*(5*d+T),4)}, v2 offset:{d*5120 + T*1024}')
            tr.append(r)
        for T in range(5):
            k.wait(lg=tr[T]); self.sum4(T)
        k(f's_lshl_b32 s{sT0}, s{sGW}, 2\nv_add_u32 v8, s{sT0}, v8')
        self.lds_wait(12, 1, 0)
        self.stamp(); self.stamp('g2'); self.stamp('tl')
        GR = W[3][0]; PK = W[4][0]
        tr = [k(f'ds_read_b128 {vr(GR+4*T,4)}, v11 offset:{L_RF + T*1024}') for T in range(5)]
        tb = []
        for T in range(5):
            k.wait(lg=tr[T])
            for e in range(4): k(f'v_fmac_f32 v{XU+4*T+e}, v{vACC+4*T+e}, v{GR+4*T+e}')
            for e in range(2): k(f'v_cvt_pk_bf16_f32 v{PK+2*T+e}, v{XU+4*T+2*e}, v{XU+4*T+2*e+1}')
            for e in range(2): r = k(f'ds_bpermute_b32 v{XR+2*T+e}, v7, v{PK+2*T+e}')
            tb.append(r)
        k.wait(lg=tb[1]); k(f'buffer_store_dwordx4 {vr(XR,4)}, v1, s[{S_OUT}:{S_OUT+3}], s{sXO} offen {c.outf}')
        k.wait(lg=tb[3]); k(f'buffer_store_dwordx4 {vr(XR+4,4)}, v1, s[{S_OUT}:{S_OUT+3}], s{sXO} offen offset:64 {c.outf}')
        k.wait(lg=tb[4]); k(f'buffer_store_dwordx2 {vr(XR+8,2)}, v10, s[{S_OUT}:{S_OUT+3}], s{sWO_} offen {c.outf}')
    def setB(self):
        k = self.k; c = self.cfg
        OF = [112 + 4*q for q in range(20)]
        slot = [52 + 4*j for j in range(15)] + [192 + 4*j for j in range(12)] + [244, 248, 252]; NS = 30
        F99 = 240; XU = 12; XR = 208; WS = self.WS; wt = self.wt
        k.c('==== s = o @ wo, then out = x + s * silu(f)')
        self.stamp('g2')
        k(f'v_mov_b32 v8, {L_CNT}')
        for f in self.bq: f()
        self.stamp('g2')
        k(f"""v_lshlrev_b32 v{aL8}, 3, v{vL}
        v_lshrrev_b32 v2, 3, v{vL}
        v_bfe_u32 v11, v{vL}, 2, 1
        v_lshl_add_u32 v2, v11, 7, v2
        s_lshl_b32 s{sT0}, s{sPL2}, 3
        v_add_lshl_u32 v2, v2, s{sT0}, 7
        v_add_u32 v4, {L_WO}, v{aL16}
        v_add_u32 v5, s{sAM+1}, v4
        v_add_u32 v11, 4096, v5""")
        k.wait(vm=wt['x'])
        k(f'v_and_b32 v9, 15, v{vL}\nv_lshrrev_b32 v7, 4, v{vL}\nv_lshl_add_u32 v9, v9, 2, v7\nv_lshlrev_b32 v9, 2, v9')
        for e in range(10): r = k(f'ds_bpermute_b32 v{vACC+e}, v9, v{XR+e}')
        k(f'v_and_b32 v7, 3, v{vL}\nv_lshlrev_b32 v7, 6, v7\nv_and_or_b32 v7, v{vL}, 60, v7')
        k.wait(lg=r)
        for e in range(10):
            k(f'v_lshlrev_b32 v{XU+2*e}, 16, v{vACC+e}\nv_and_b32 v{XU+2*e+1}, 0xffff0000, v{vACC+e}')
        def oarr():
            k.wait(vm=self.t_o)
            self.t_arr = self.arrive(5, 8, vACC)
        if c.boa == 0: oarr(); self.last_signals(self.t_arr, vACC, 5, vACC + 2)
        self.lds_wait(7, 8, 1)
        k(f's_setprio {c.bprio2}')
        self.stamp('g2')
        for a in range(1, 17):
            if a == c.boa: oarr()
            k.wait(vm=wt[a])
            k(f'ds_write_b128 v11, {vr(WS[a],4)} offset:{(a-1)*4096}')
            if a == c.boa: self.last_signals(self.t_arr, vACC, 5, vACC + 2)
        self.lds_add(2, 1)
        self.stamp('g2')
        self.lds_wait(2, 4, 1)
        lt = {}
        def rd(j):
            p = j - 68 if 68 <= j < 92 else j
            lt[j] = k(f'ds_read_b128 {vr(slot[j % NS],4)}, v{4 + (p >> 6)} offset:{(p & 63)*1024}')
        for j in range(NS): rd(j)
        self.lds_add(4, 1)
        self.stamp('g2')
        self.lds_wait(4, 4, 1)
        for a in range(17, 23):
            k.wait(vm=wt[a])
            k(f'ds_write_b128 v5, {vr(WS[a],4)} offset:{(a-17)*4096}')
        self.lds_add(3, 1)
        k(f'v_add_u32 v5, 65536, v4')
        self.stamp('g2')
        self.lds_wait(8, 4, 2)
        tp = k(f'buffer_load_dword v11, v2, s[{S_WS}:{S_WS+3}], 0 offen sc1')
        self.stamp('g2')
        self.poll_check(tp, 11, 2, S_WS, '0', 5, role=False, slp=c.slp)
        self.stamp()
        self.stamp('g2')
        ot = []
        def old(q):
            so = sAM + 3
            if q % 4 == 0: k(f's_add_u32 s{so}, s{sAM}, {q*1024}')
            off = (q & 3) * 1024
            if q % 5 == 4:
                k(f'buffer_load_dwordx2 {vr(OF[q],2)}, v{aL8}, s[{S_WS}:{S_WS+3}], s{so} offen offset:{off} sc1')
                ot.append(k(f'buffer_load_dwordx2 {vr(OF[q]+2,2)}, v{aL8}, s[{S_WS}:{S_WS+3}], s{so} offen offset:{off+512} sc1'))
            else:
                ot.append(k(f'buffer_load_dwordx4 {vr(OF[q],4)}, v{aL16}, s[{S_WS}:{S_WS+3}], s{so} offen offset:{off} sc1'))
        k(f's_setprio {c.bp5}')
        for q in range(c.oa): old(q)
        if c.bp4 is not None: k(f's_setprio {c.bp4}')
        for j in range(100):
            q, T = divmod(j, 5)
            if j in (0, 50, 99): self.stamp('g2')
            if j + NS - 1 == 68: self.lds_wait(3, 4, 0)
            if j == 80: k(f's_mul_i32 s{sT1}, s{sGW}, 15360\ns_add_u32 s{sT1}, s{sT1}, {L_RF}\nv_add_u32 v11, s{sT1}, v{aL16}\ns_lshl_b32 s{sT0}, s{sGW}, 2\nv_add_u32 v8, s{sT0}, v8')
            if j >= 1 and j + NS - 1 < 99: rd(j + NS - 1)
            k.wait(vm=ot[q], lg=lt[min(j + 4, 98)] if T == 0 else None)
            acc = vACC + 4 * T
            k(f"v_mfma_f32_16x16x32_bf16 {vr(acc,4)}, {vr(slot[j % NS] if j < 99 else F99,4)}, {vr(OF[q],4)}, {'0' if q == 0 else vr(acc,4)}")
            if T == 4 and len(ot) < 20: old(len(ot))
        self.stamp()
        if c.gcnt: self.lds_wait(12, 1, 0)
        else: k('s_barrier')
        self.stamp()
        self.stamp('g2'); self.stamp('tl')
        GR = OF[0]; tb = {}
        ST = {1: f'buffer_store_dwordx4 {vr(XR,4)}, v1, s[{S_OUT}:{S_OUT+3}], s{sXO} offen {c.outf}',
              3: f'buffer_store_dwordx4 {vr(XR+4,4)}, v1, s[{S_OUT}:{S_OUT+3}], s{sXO} offen offset:64 {c.outf}',
              4: f'buffer_store_dwordx2 {vr(XR+8,2)}, v10, s[{S_OUT}:{S_OUT+3}], s{sWO_} offen {c.outf}'}
        for n, grp in enumerate(((0, 1), (2, 3), (4,)) if c.gcnt == 2 else ((0, 1, 2, 3, 4),)):
            if n:
                self.lds_wait(12, n + 1, 0)
                k(ST.pop(grp[0] - 1))
            tr = {T: k(f'ds_read_b128 {vr(GR+4*T,4)}, v11 offset:{T*1024}') for T in grp}
            for T in grp:
                k.wait(lg=tr[T])
                for e in range(4): k(f'v_fmac_f32 v{XU+4*T+e}, v{vACC+4*T+e}, v{GR+4*T+e}')
                for e in range(2): k(f'v_cvt_pk_bf16_f32 v{XR+12+2*T+e}, v{XU+4*T+2*e}, v{XU+4*T+2*e+1}')
                for e in range(2): tb[T] = k(f'ds_bpermute_b32 v{XR+2*T+e}, v7, v{XR+12+2*T+e}')
        for T in sorted(ST):
            k.wait(lg=tb[T]); k(ST[T])

    def finish(self):
        k = self.k; c = self.cfg
        if c.stamps:
            self.stamp('tl')
            if 'tl' in c.grps: k('s_waitcnt lgkmcnt(0)')
            k('s_waitcnt vmcnt(0)')
            self.stamp('fin')
            k(f's_waitcnt lgkmcnt(0)\ns_mov_b32 s{sST0 + self.nst - 1}, s{sSTT}')
            k(f's_lshl3_add_u32 s{sT0}, s2, s{sW}\ns_lshl_b32 s{sT0}, s{sT0}, 6\ns_add_u32 s{sT0}, s{sT0}, {STAMP}\nv_mov_b32 v1, 0\ns_mov_b64 exec, 1')
            if self.nst < 14: k(f'v_mov_b32 v2, s101\nbuffer_store_dword v2, v1, s[{S_WS}:{S_WS+3}], s{sT0} offen offset:60')
            for n in range(self.nst):
                k(f'v_mov_b32 v2, s{sST0+n}\nbuffer_store_dword v2, v1, s[{S_WS}:{S_WS+3}], s{sT0} offen offset:{4*n}')
        k('s_endpgm')

    def build(self):
        k = self.k
        self.prologue()
        pre = k.snap(); nst = self.nst
        st = []
        self.S = 1; self.stok = {}
        gb = self.phase0B(); next(gb)
        mid = (k.snap(), self.nst, self.stok)
        self.S = 0; k.restore(pre); self.nst = nst; self.stok = {}
        k.label('L_setA')
        self.phase0A()
        k.flush_hazards()
        k('s_branch L_mainA')
        st.append((k.snap(), self.nst, self.stok))
        self.S = 1; k.restore(mid[0]); self.nst, self.stok = mid[1:]
        for _ in gb: pass
        k.flush_hazards()
        st.append((k.snap(), self.nst, self.stok))
        for S in (1, 0):
            self.S = S
            snap, self.nst, self.stok = st[S]; k.restore(snap)
            if not S: k.label('L_mainA')
            self.gemm1()
            self.back_half()
            self.finish()
        self.tail.append(self.fallback)
        for t in self.tail:
            k.win = []
            t(k)
        k.label('L_end')
        k('s_endpgm')
        sk = self.cfg.skip
        if 'm' in sk: k.out = [l for l in k.out if 'v_mfma' not in l]
        if 'M' in sk: k.out = [l for l in k.out if 'v_mfma_f32_16x16x32' not in l]
        if 'e' in sk: k.out = [l for l in k.out if 'v_exp_f32' not in l and 'v_rcp_f32' not in l]
        if 'S' in sk: k.out = [l for l in k.out if not ('buffer_store_dwordx4' in l and 'sc1' in l)]
        if 'L' in sk: k.out = [l for l in k.out if not ('buffer_load_dwordx4' in l and 'sc1' in l)]
        import re
        def drop(pat): k.out = [l for l in k.out if not re.search(pat, l)]
        if 'X' in sk: drop(r'buffer_load_dwordx4 v85, s\[4:7\]')
        if 'U' in sk: drop(r'buffer_load_dwordx4 v5, s\[64:67\]')
        if 'V' in sk: drop(r'buffer_load_dwordx4 v5, s\[16:19\]')
        if 'K' in sk: drop(r'buffer_load_dwordx4 v28, s\[20:23\]')
        if 'G' in sk: drop(r'buffer_load_dwordx4 v6, s\[20:23\], s58 offen sc1 lds')
        if 'H' in sk: drop(r'buffer_load_dwordx4 v\[(19[2-9]|20[0-7]|22[4-9]|23[0-9]):\d+\], v6, s\[20:23\], s\d+ offen offset')
        if 'O' in sk: drop(r'buffer_load_dwordx4 v\[\d+:\d+\], v6, s\[20:23\], s43 offen')
        if 'R' in sk: drop(r'ds_read_b64_tr_b16 v\[(34|38|42|46):')
        if 'r' in sk:
            drop(r'ds_read_b64_tr_b16 v\[(36|38|44|46):\d+\], v[1-3] offset:(?!1[0-9]{5})')
            k.out = [l.replace('v[36:39], v[', 'v[40:43], v[').replace('v[44:47], v[', 'v[32:35], v[') if 'v_mfma_f32_32x32x16' in l and 'v[96:111], v' not in l else l for l in k.out]
        if 'Y' in sk: drop(r'^\s*(ds_|s_barrier|s_branch L_lw|s_sleep|v_(exp|rcp|cvt_pk|mul_f32|fma_f32|fmac|add_f32|permlane|dot2c)|s_waitcnt lgkmcnt\([1-9])')
        if 'W' in sk: drop(r's_waitcnt vmcnt\([1-9]')
        if 'D' in sk: k.out = [l for l in k.out if not ('buffer_load_dwordx4' in l and 'lds' in l and 'sc1' not in l)]
        return self.wrap()

    def wrap(self):
        hdr = ''.join(open('recurrent_scan__sliding_block__swiglu_ffn__prompt.s.ref').readlines()[:11]) if self.cfg.header else ''
        return f'''{hdr}; @launch grid=(256,1,1) block=(512,1,1) lds={LDS_BYTES}
.amdgcn_target "amdgcn-amd-amdhsa--gfx950"{DOC}.text
.p2align {self.cfg.al}
{self.cfg.pad}.globl {KN}
.p2align 8
.type {KN},@function
{KN}:
{self.k.text()}.section .rodata,"a"
.p2align 6
.amdhsa_kernel {KN}
  .amdhsa_next_free_vgpr 256
  .amdhsa_next_free_sgpr 102
  .amdhsa_accum_offset 256
  .amdhsa_group_segment_fixed_size 0
  .amdhsa_kernarg_size 80
  .amdhsa_user_sgpr_count 2
  .amdhsa_user_sgpr_kernarg_segment_ptr 1
  .amdhsa_system_sgpr_workgroup_id_x 1
.end_amdhsa_kernel
'''
Cfg.clrwg = 0; Cfg.rrA = (0, 2, 4, 6); Cfg.rrB = (1, 3, 5, 7); Cfg.rot = None; Cfg.cnd = 0; Cfg.cnt = 0; Cfg.hsc = 0; Cfg.s5k = 0; Cfg.nfb = 2; Cfg.sm = 'q'; Cfg.kA = 'e'; Cfg.kB = 'p'; Cfg.hA = 'q'; Cfg.hB = 'q'; Cfg.dA = 'qe'; Cfg.dB = 'qp'; Cfg.c1 = 21; Cfg.c3 = 23; Cfg.ab = 9; Cfg.aq = 20; Cfg.c2b = 9; Cfg.wts = (0.5,1,2,2); Cfg.tilt = 0; Cfg.gainb = 1.0; Cfg.m16 = 1; Cfg.gain = 1.0; Cfg.ec = 19; Cfg.g0 = 16; Cfg.hs = 49152; Cfg.pkm = 0; Cfg.fin = 1; Cfg.pka = 2; Cfg.pkn = 1; Cfg.slot0 = (0,0,0,0,1,1,1,1); Cfg.slot2 = (2,)*8; Cfg.slot1 = (5,6)*4; Cfg.u1 = 2; Cfg.u2 = 5; Cfg.bpos = (0,1,1); Cfg.sb = 2; Cfg.jit = None; Cfg.al = 12; Cfg.pad = ''; Cfg.pknt = 'nt'; Cfg.gcnt = 1; Cfg.idle = None; Cfg.og = 7; Cfg.boa = 0; Cfg.fair = 1; Cfg.fairA = (3,3,2,2,1,1,0,0); Cfg.fairB = (3,3,3,2,2,1,1,1); Cfg.ed = 4; Cfg.eap = 1; Cfg.eb = 14; Cfg.hoistb = 2; Cfg.epfb = 0; Cfg.bp5 = 0; Cfg.nfuse = 2; Cfg.bin = 12; Cfg.bn1 = 99; Cfg.bn2 = 0; Cfg.g1map = 0; Cfg.stf = 'sc1'; Cfg.xp = 3; Cfg.rv = 2; Cfg.bp4 = 0; Cfg.bp3 = 99; Cfg.bh_chk = 5; Cfg.touch = 0; Cfg.tstep = 1; Cfg.bnp = 30; Cfg.op = 12; Cfg.oa = 14; Cfg.bprio2 = 0; Cfg.blast = 1; Cfg.hp = 0; Cfg.hc = 2; Cfg.alast = 0; Cfg.nslot = 2; Cfg.dp1 = 2; Cfg.dp2 = 3; Cfg.dpx = 9; Cfg.bprio = 1; Cfg.w0early = 1; Cfg.dm1 = 2; Cfg.dm2 = 0; Cfg.skip = ''; Cfg.bh_skew = 0; Cfg.bdefer = 10; Cfg.ogate = 0; Cfg.outf = ''

def make(**kw):
    c = Cfg()
    for a, b in kw.items():
        assert hasattr(c, a), a
        setattr(c, a, b)
    g0 = Gen(c); g0.build()
    g = Gen(c); g.known = g0.counts
    return g.build(), g

if __name__ == '__main__':
    s, g = make(stamps=True)
    open('k.s', 'w').write(s)
    print(g.k.count, 'nops', g.k.nops)
```

```python
import sys, math, struct
from emit import *

KN = 'recurrent_scan__sliding_block__swiglu_ffn__prompt_kernel'

FL   = 0x0
STATS= 0x10000
WEXT = 0x20000
STAMP= 0x60000
QKV  = 0x100000
HIM  = 0x900000
OIM  = 0x1000000
W2P  = 0x1400000
WS_BYTES = 0x1800000
OOB  = 0x7f000000

L_RING = 0
L_X    = 65536
CH     = 6208
L_KV   = 65536
L_ONES = L_KV + 10 * CH + 64
L_EXT  = 65536 + 68608
L_PACK = L_EXT + 10240
LDS_BYTES = 163840
L_CNT = 162816; L_RF = 0; L_WO = 61440
assert L_EXT == L_WO + 71 * 1024
assert 10 * CH + 64 + 6400 <= 68608 and LDS_BYTES <= 163840

S_X, S_Q, S_G, S_U, S_WS, S_DBG, S_WD, S_WO, S_OUT, S_TMP = 4, 8, 12, 16, 20, 24, 28, 32, 36, 40
S_U0, S_U1 = 36, 64
sI, sG, sW, sGW, sXO, sWO_, sM0X, sM0W = 44, 45, 46, 47, 48, 49, 50, 51
sFLAG, sPOLL, sQF, sHE, sHL, sQS1, sQS2 = 52, 53, 54, 55, 56, 57, 3
sT0, sT1, sT2, sT3, sT4, sT5 = 58, 59, 60, 61, 62, 63
sPKS, sPKL, sPKD0, sPKD1, sPKD2 = 51, 24, 25, 26, 27
sAI, sAJ, sR2, sC2, sCNT = 69, 70, 71, 72, 73
sCO, sCD, sC2O, sC3O = 74, 75, 76, 77
sWB, sPL2, sKVS, sKVM, sSTG = 78, 79, 81, 82, 83
sSTR, sADV, sC1, sSLOT, sRL = 68, 84, 85, 53, 82
sAM = 40
sSTT = 86; sST0 = 88

vL = 0
vWR0, vWR1, vWR2 = 1, 2, 3
vEB = 3; vVAR = 10; vCC = 16
vDA, vDB = 4, 5
aL16, aL16b = 6, 7
vEX, vP = 8, 9
vST = 10
vMEAN = 12
vRS, vC1, vHO, vQO = 16, 17, 18, 19
vSW = 28
vT = 20
vFR = 32
vA0 = 48
vA1 = 80
vX = 96
vSEL = vA1 + 8; vCSA = vA1 + 12; vCSO = vA1 + 7; vCSG = vA1 + 6; vCSB = vX + 120
aK0, aK1, aV, aO0, aO1, aL8 = 86, 87, 3, 4, 5, 3
vQ = 80; vM = 88; vS0 = 48; vS1 = 64; vS2 = 192; vO = 96; vPP = 32
vKB = ((20, 24), (28, 26)); vVB = (40, 12)
vACC = 32
EARLY = (0, 1, 2, 3); LATE = (4, 5, 6, 7, 8, 9, 10, 11)

LOG2E = 1.4426950408889634
def f2u(x): return struct.unpack('<I', struct.pack('<f', x))[0]

DOC = '\n; separate straight-line streams.  Hand-offs between workgroups use write-through stores into d_ws, one\n;  GEMM1   : 128 x 320 tile of x @ [wqkv | w_gate | w_up], x held in registers, weights through an LDS ring;\n;            LayerNorm is applied exactly as rstd * (x @ W - mean * colsum(W)); SwiGLU in the epilogue\n;  attn    : 128 queries x 2 heads, window 256.  exp2 of the raw scores is kept only when every row sum lies\n'
class Cfg:
    header = False
    stamps = False; clock = 's_memtime'; grps = ['main', 'fin']
    spin = 16000
    g2map = 1
    fa = 4; pa = 6
    cb = 1; cbd = 2
    pk = 4; pkd = 2
    c2 = 4
    fb = 11; pb = 14
    fq = 18; pq = 21
    w0early = 0
    hoist_hi = 22
    hoist = 3
    kvn = 5
    bh_at = 3
    epf = 12
    bo_at = 3
    slp = 8; slp0 = 16
    prio = 0

class Gen:
    def __init__(self, cfg):
        self.cfg = cfg; self.k = K(); self.tail = []; self.nst = 0; self.uid = 0
        self.known = {}; self.counts = {}

    def jitter(self):
        k = self.k; self.uid += 1; u = self.uid
        seed, mask, thr = self.cfg.jit
        h = (seed * 2654435761 + u * 40503) & 0x7fffffff | 1
        k(f'''s_lshl3_add_u32 s100, s2, s{sW}
        s_add_u32 s100, s100, {u}
        s_mul_i32 s100, s100, {h}
        s_lshr_b32 s101, s100, 13
        s_xor_b32 s100, s100, s101
        s_mul_i32 s100, s100, 0x2c1b3c6d
        s_lshr_b32 s101, s100, 24
        s_cmp_ge_u32 s101, {thr}
        s_cbranch_scc1 L_jd{u}
        s_bfe_u32 s100, s100, 0x80008
        s_and_b32 s100, s100, {mask}''')
        k.label(f'L_jl{u}')
        k(f's_sleep 1\ns_sub_u32 s100, s100, 1\ns_cbranch_scc0 L_jl{u}')
        k.label(f'L_jd{u}')
    def stamp(self, grp='main'):
        if self.cfg.jit and grp in ('p0', 'p1', 'p3', 'at', 'g2', 'jj'): self.jitter()
        if not self.cfg.stamps or grp not in self.cfg.grps: return
        k = self.k
        if self.nst > 0: k(f's_mov_b32 s{sST0 + self.nst - 1}, s{sSTT}')
        k(f"{self.cfg.clock if self.cfg.clock != 'dual' else ('s_memrealtime' if self.S else 's_memtime')} s[{sSTT}:{sSTT+1}]")
        self.nst += 1
        assert self.nst <= 14
    def poll_check(self, tok, vd, voff, srd, soff, thr, role=True, wide=False, slp=6):
        k = self.k; self.uid += 1; u = self.uid
        if 'n' in self.cfg.skip: return
        if role:
            k(f's_cmp_lg_u32 s{sGW}, 0\ns_cbranch_scc1 L_pok{u}\ns_waitcnt vmcnt({k.nvm - tok})')
        else: k.wait(vm=tok)
        mn = f'v_min3_u32 v{vd}, v{vd}, v{vd+1}, v{vd+2}\nv_min_u32 v{vd}, v{vd}, v{vd+3}\n' if wide else ''
        ld = f'buffer_load_dwordx4 v[{vd}:{vd+3}]' if wide else f'buffer_load_dword v{vd}'
        k(f'{mn}v_cmp_le_u32 vcc, {thr}, v{vd}\ns_cmp_eq_u64 vcc, -1\ns_cbranch_scc0 L_pslow{u}')
        k.label(f'L_pok{u}')
        def slow(k):
            k.label(f'L_pslow{u}')
            k(f's_mov_b32 s{sCNT}, 0')
            k.label(f'L_ploop{u}')
            if self.cfg.stamps: k(f's_add_u32 s101, s101, {1 << (5 * (thr if srd == S_WS else 0))}')
            k(f's_sleep {slp}\n{ld}, v{voff}, s[{srd}:{srd+3}], {soff} offen sc1\ns_waitcnt vmcnt(0)')
            k(f'{mn}v_cmp_le_u32 vcc, {thr}, v{vd}\ns_cmp_eq_u64 vcc, -1\ns_cbranch_scc1 L_pok{u}')
            k(f's_add_u32 s{sCNT}, s{sCNT}, 1\ns_cmp_lt_u32 s{sCNT}, {self.cfg.spin}\ns_cbranch_scc1 L_ploop{u}\ns_branch L_pok{u}')
        self.tail.append(slow)
    def flag_store(self, val, t=vT+10, test=None, srd=S_WS, who=None):
        k = self.k; self.uid += 1; u = self.uid
        k(test or f's_cmp_lg_u32 s{sGW}, 0')
        k(f's_cbranch_scc1 L_nf{u}\nv_mov_b32 v{t}, {val}\nv_mov_b32 v{t+1}, 0\ns_mov_b64 exec, 1')
        k(f"buffer_store_dword v{t}, v{t+1}, s[{srd}:{srd+3}], {f's{sT3}' if srd == S_DBG else f's{sFLAG}'} offen sc1")
        k.nvm -= 1
        if who and self.cfg.cnd: k.cond.append((k.nvm, 1, lambda nw: who, -1))
        k('s_mov_b64 exec, -1')
        k.label(f'L_nf{u}')

    def prologue(self):
        k = self.k; c = self.cfg
        k('s_cmp_ge_u32 s2, 256\ns_cbranch_scc1 L_end')
        k(f"""s_load_dwordx2 s[{S_X}:{S_X+1}], s[0:1], 0
        s_bitcmp1_b32 s2, {7 if self.cfg.g1map else 6}
        s_cselect_b32 s{sT0}, 8, 32
        s_cselect_b32 s{sT1}, 8, 40
        s_load_dwordx2 s[{S_U0}:{S_U0+1}], s[0:1], s{sT0}
        s_load_dwordx2 s[{S_U1}:{S_U1+1}], s[0:1], s{sT1}
        s_load_dwordx2 s[{S_Q}:{S_Q+1}], s[0:1], 8
        s_load_dwordx2 s[{S_WS}:{S_WS+1}], s[0:1], 72
        s_load_dwordx2 s[{S_DBG}:{S_DBG+1}], s[0:1], 64""")
        if c.stamps: k(f"{c.clock if c.clock != 'dual' else 's_memtime'} s[{sSTT}:{sSTT+1}]\ns_mov_b32 s101, 0"); self.nst = 1
        k(f'v_lshrrev_b32 v1, 6, v0\nv_and_b32 v{vL}, 63, v0\nv_readfirstlane_b32 s{sW}, v1')
        self.prologue2(); self.prologue3()
        k(f's_cmp_lt_u32 s{sW}, 4\ns_cbranch_scc1 L_setA')

    def prologue2(self):
        k = self.k; t = vT
        if self.cfg.g1map:
            k(f"""s_bfe_u32 s{sI}, s2, 0x40003
            s_and_b32 s{sT1}, s2, 7
            s_lshr_b32 s{sT0}, s2, 7
            s_lshl1_add_u32 s{sG}, s{sT1}, s{sT0}
            s_lshl_b32 s{sT2}, s2, 7
            s_bfe_u32 s{sT1}, s2, 0x20001""")
        else:
            k(f"""s_and_b32 s{sI}, s2, 1
            s_bfe_u32 s{sT0}, s2, 0x30003
            s_lshl3_add_u32 s{sI}, s{sI}, s{sT0}
            s_bfe_u32 s{sT1}, s2, 0x20001
            s_lshr_b32 s{sT0}, s2, 6
            s_lshl2_add_u32 s{sG}, s{sT1}, s{sT0}""")
        k(f"""s_and_b32 s{sGW}, s{sW}, 3
        s_mov_b32 s{S_X+2}, {2048*1280}
        s_mov_b32 s{S_X+3}, 0x20000
        s_mul_i32 s{sC3O}, s{sT1}, 768
        s_and_b32 s{sT2}, s{sT2 if self.cfg.g1map else 2}, 128
        s_add_u32 s{sT2}, s{sT2}, s{sC3O}
        s_and_b32 s{sT3}, s{sG}, 14
        s_lshl_b32 s{sT3}, s{sT3}, 7
        s_movk_i32 s{sT4}, 3072
        s_bitcmp1_b32 s2, {7 if self.cfg.g1map else 6}
        s_cselect_b32 s{sC1}, s{sT3}, s{sT2}
        s_cselect_b32 s{sSTR}, 3840, s{sT4}
        s_cselect_b32 s{sT5}, {'128, 0' if self.cfg.m16 else '0xa0, 32'}
        s_mul_i32 s{S_U0+2}, s{sSTR}, 640
        s_mov_b32 s{S_U0+3}, 0x20000
        s_mov_b32 s{S_U1+2}, s{S_U0+2}
        s_mov_b32 s{S_U1+3}, 0x20000""")
        k(f"""v_lshrrev_b32 v{t}, 3, v{vL}
        v_and_b32 v{t+1}, 7, v{vL}
        v_lshlrev_b32 v{t+1}, 4, v{t+1}""")
    def prologue3(self):
        k = self.k; t = vT
        k(f"""s_lshl_b32 s{sM0X}, s{sW}, 11
        s_lshl3_add_u32 s{sXO}, s{sI}, s{sW}
        s_mul_i32 s{sXO}, s{sXO}, {16*1280}
        v_and_b32 v{t+3}, 48, v{vL}
        v_xor_b32 v{t+3}, v{t+1}, v{t+3}
        v_mul_u32_u24 v{vA1+4}, 1280, v{t}
        v_add_u32 v{vA1+4}, v{vA1+4}, v{t+3}
        v_xor_b32 v{vA1+5}, 64, v{vA1+4}
        v_add_u32 v{vA1+5}, {10240-1024}, v{vA1+5}""")
        if self.cfg.rot:
            a, b, m = self.cfg.rot
            k(f's_and_b32 s{sCNT}, s{sI}, 7\ns_mul_i32 s{sM0W}, s{sCNT}, {a}\ns_and_b32 s{sCNT}, s{sG}, 3\ns_mul_i32 s{sCNT}, s{sCNT}, {b}\ns_add_u32 s{sM0W}, s{sM0W}, s{sCNT}')
            k(f's_mul_i32 s{sCNT}, s{sM0W}, {-(-65536 // m)}\ns_lshr_b32 s{sCNT}, s{sCNT}, 16\ns_mul_i32 s{sCNT}, s{sCNT}, {m}\ns_sub_u32 s{sM0W}, s{sM0W}, s{sCNT}')
            if m == 5: k(f's_lshl_b32 s{sM0W}, s{sM0W}, 1')
            k(f's_lshl_b32 s{sCNT}, s{sM0W}, 7\ns_add_u32 s{sXO}, s{sXO}, s{sCNT}')
    def prologue4(self):
        k = self.k; t = vT
        k(f"""s_mul_i32 s{sWO_}, s{sW}, s{sSTR}
        s_lshl3_add_u32 s{sWO_}, s{sWO_}, s{sC1}
        s_lshl_b32 s{sADV}, s{sSTR}, 6
        v_and_b32 v{t+2}, 16, v{vL}
        v_lshlrev_b32 v{t+2}, 2, v{t+2}
        {f's_lshl_b32 s{sCNT}, s{sW}, 5' if self.cfg.m16 else ''}
        {f'v_and_or_b32 v{t+2}, s{sCNT}, 32, v{t+2}' if self.cfg.m16 else ''}
        v_xor_b32 v{vSW}, v{t+1}, v{t+2}
        v_mad_u32_u24 v{vDA}, v{t}, s{sSTR}, v{vSW}
        v_xor_b32 v{vDB}, s{sT5}, v{vDA}""")
        if self.cfg.rot: k(f's_mul_i32 s{sCNT}, s{sM0W}, s{sADV}\ns_add_u32 s{sWO_}, s{sWO_}, s{sCNT}')

    def late_srds(self):
        k = self.k
        L = ((S_Q, 8, 640*3840), (S_G, 32, 640*3072), (S_U, 40, 640*3072)) + (((S_WD, 48, 1536*1280), (S_WO, 16, 640*1280)) if self.S else ())
        for d, off, size in L[1:]: k(f's_load_dwordx2 s[{d}:{d+1}], s[0:1], {off}')
        if self.S: k(f's_load_dwordx2 s[{S_TMP}:{S_TMP+1}], s[0:1], 56')
        for d, off, size in L: k(f's_mov_b32 s{d+2}, {size}\ns_mov_b32 s{d+3}, 0x20000')
        k(f's_cmp_lt_u32 s{sG}, 14\ns_cselect_b32 s{S_Q+2}, s{S_Q+2}, 0')

    def dma_stage(self, n):
        k = self.k; slot = (n & 3) * 16384
        steps = []
        if n < 10:
            def x():
                k(f's_add_u32 m0, s{sM0X}, {L_X + slot}')
                k(f'buffer_load_dwordx4 v{vA1+4}, s[{S_X}:{S_X+3}], s{sXO} offen lds')
                k(f'buffer_load_dwordx4 v{vA1+5}, s[{S_X}:{S_X+3}], s{sXO} offen offset:1024 lds')
                k(f's_add_u32 s{sXO}, s{sXO}, 128')
                if self.cfg.rot: k(f's_cmp_eq_u32 s{sM0W}, {9 - n}\ns_cselect_b32 s{sCNT}, 1280, 0\ns_sub_u32 s{sXO}, s{sXO}, s{sCNT}')
            steps.append(x)
        def w():
            if n == 10:
                k(f"""v_lshrrev_b32 v{vDA}, 3, v{vL}
                v_mul_u32_u24 v{vDA}, 3840, v{vDA}
                v_add_u32 v{vDA}, v{vDA}, v{vSW}
                v_add_u32 v{vDB}, {(64 if self.cfg.m16 else 8)*3840 - 1024}, v{vDA}
                s_mul_i32 s{sWO_}, s{sW}, {(8 if self.cfg.m16 else 16)*3840}
                s_add_u32 s{sWO_}, s{sWO_}, s{sC2O}""")
            if n == 15:
                k(f"""v_lshrrev_b32 v{vDA}, 3, v{vL}
                v_mul_u32_u24 v{vDA}, 3072, v{vDA}
                v_add_u32 v{vDA}, v{vDA}, v{vSW}
                v_xor_b32 v{vDB}, {0 if self.cfg.m16 else 32}, v{vDA}
                s_mul_i32 s{sWO_}, s{sW}, {8*3072}
                s_add_u32 s{sWO_}, s{sWO_}, s{sC3O}""")
            k(f's_add_u32 m0, s{sM0X}, {L_RING + slot}')
            if 10 <= n < 15:
                k(f'buffer_load_dwordx4 v{vDA}, s[{S_Q}:{S_Q+3}], s{sWO_} offen lds')
                self.stok[n] = k(f'buffer_load_dwordx4 v{vDB}, s[{S_Q}:{S_Q+3}], s{sWO_} offen offset:1024 lds')
                k(f's_add_u32 s{sWO_}, s{sWO_}, {128*3840}')
            else:
                s0, s1, adv = (S_U0, S_U1, f's{sADV}') if n < 10 else (S_G, S_U, 64*3072)
                k(f'buffer_load_dwordx4 v{vDA}, s[{s0}:{s0+3}], s{sWO_} offen lds')
                k(f's_add_u32 m0, s{sM0X}, {L_RING + slot + 1024}')
                self.stok[n] = k(f'buffer_load_dwordx4 v{vDB}, s[{s1}:{s1+3}], s{sWO_} offen lds')
                k(f's_add_u32 s{sWO_}, s{sWO_}, {adv}')
                if self.cfg.rot and n < 10: k(f's_cmp_eq_u32 s{sM0W}, {9 - n}\ns_cselect_b32 s{sCNT}, s{S_U0+2}, 0\ns_sub_u32 s{sWO_}, s{sWO_}, s{sCNT}')
        steps.append(w)
        return steps

    def cs_sel(self):
        k = self.k; sel = vSEL; t = vT + 10
        k(f"""v_and_b32 v{t}, 1, v{vL}
        v_lshlrev_b32 v{t}, 4, v{t}
        s_movk_i32 s{sT3}, 0x3f80
        v_lshlrev_b32 v{t}, v{t}, s{sT3}""")
        for d in range(4):
            m = hex((3 << (2*d)) * 0x10001)
            k(f's_mov_b32 vcc_lo, {m}\ns_mov_b32 vcc_hi, {m}\nv_cndmask_b32 v{sel+d}, 0, v{t}, vcc')
        k(f"""v_and_b32 v{vCSO}, 7, v{vL}
        v_lshlrev_b32 v{vCSO}, 4, v{vCSO}
        v_bfe_u32 v{t}, v{vL}, 4, 1
        v_lshl_add_u32 v{vCSO}, v{t}, 3, v{vCSO}
        v_and_b32 v{t}, 8, v{vL}
        v_lshl_add_u32 v{vCSO}, v{t}, 4, v{vCSO}
        v_and_b32 v{t}, 32, v{vL}
        v_lshl_add_u32 v{vCSO}, v{t}, 24, v{vCSO}""")
    def cs_run(self, buf, acc):
        k = self.k; h = buf
        for j in range(10):
            k(f"v_mfma_f32_16x16x32_bf16 {vr(acc,4)}, {vr(vSEL,4)}, {vr(buf+4*j,4)}, {'0' if j == 0 else vr(acc,4)}")
        for e in range(4): k(f'v_add_f32_dpp v{h+4+e}, v{acc+e}, v{acc+e} row_ror:8 row_mask:0xf bank_mask:0xf')
        for e in range(2): k(f'v_cvt_pk_bf16_f32 v{acc+e}, v{h+4+2*e}, v{h+5+2*e}')
        for e in range(2): k(f'v_lshlrev_b32 v{h+2*e}, 16, v{acc+e}\nv_and_b32 v{h+2*e+1}, 0xffff0000, v{acc+e}')
        for e in range(4): k(f'v_sub_f32 v{h+e}, v{h+4+e}, v{h+e}')
        k(f's_mov_b32 vcc_lo, 0xff00ff00\ns_mov_b32 vcc_hi, 0xff00ff00')
        for e in range(2): k(f'v_cvt_pk_bf16_f32 v{acc+2+e}, v{h+2*e}, v{h+2*e+1}')
        for e in range(2): k(f'v_cndmask_b32 v{acc+e}, v{acc+e}, v{acc+2+e}, vcc')

    def cs_loads(self, p):
        k = self.k
        if p not in self.slots: return
        k(f's_cmp_lg_u32 s{sSLOT}, {p}\ns_cbranch_scc1 L_ncb{p}')
        for j in range(10):
            k(f'buffer_load_dwordx4 {vr(vCSB+4*j,4)}, v{vCSG}, s[{S_TMP}:{S_TMP+3}], s{sCO} offen')
            if j < 9: k(f's_add_u32 s{sCO}, s{sCO}, s{sRL}')
        k.nvm -= 10
        if k.nvm > 0: k.cond.append((k.nvm, 10, self.slot_test, p))
        self.cs_tok[p] = Tok(k.nvm + 1)
        k.label(f'L_ncb{p}')
    def cs_use(self, lo, hi, name):
        k = self.k
        def f():
            k.wait(vm=self.cs_tok[hi])
            k(f's_sub_u32 s{sT0}, s{sSLOT}, {lo}\ns_cmp_le_u32 s{sT0}, {hi - lo}\ns_cbranch_scc0 L_cu{lo}')
            self.cs_run(vCSB, vCSA)
            k(f'buffer_store_dwordx2 {vr(vCSA,2)}, v{vCSO}, s[{S_WS}:{S_WS+3}], s{sCD} offen sc1')
            k.nvm -= 1; setattr(self, name, Tok(k.nvm + 1))
            if self.cfg.cnd: k.cond.append((k.nvm, 1, lambda nw: f's_sub_u32 s{sCNT}, s{sSLOT}, {lo}\ns_cmp_le_u32 s{sCNT}, {hi - lo}', -1))
            k.flush_hazards()
            k.label(f'L_cu{lo}')
        return f
    def phase0A(self):
        k = self.k; X = vX; t = vT; c = self.cfg
        self.slots = set(c.slot0) | set(c.slot1) | set(c.slot2); self.cs_tok = {}
        assert min(c.slot1) > max(max(c.slot0), max(c.slot2)) and min(c.slot1) >= 1 and min(c.slot2) >= 1
        tab = lambda L: hex(sum(v << (4*j) for j, v in enumerate(L)))
        k(f"""s_lshr_b32 s{sT0}, s{sI}, 1
        s_and_b32 s{sT2}, s{sT5}, 128
        s_bitcmp1_b32 s{sI}, 0
        s_cselect_b32 s{sT2}, s{sT2}, 0
        s_add_u32 s{sT2}, s{sT2}, s{sC1}
        s_mul_i32 s{sT1}, s{sT0}, 80
        s_mul_i32 s{sT1}, s{sT1}, s{sSTR}
        s_add_u32 s{sCO}, s{sT1}, s{sT2}
        s_lshl_b32 s{sRL}, s{sSTR}, 3
        v_mad_u32_u24 v{vCSG}, v{t}, s{sSTR}, v{t+1}
        s_mov_b32 s{S_TMP+2}, s{S_U0+2}
        s_mov_b32 s{S_TMP+3}, 0x20000
        s_mov_b32 s{S_WS+2}, {WS_BYTES}
        s_mov_b32 s{S_WS+3}, 0x20000
        s_lshl_b32 s{sT1}, s{sT0}, 2
        s_lshr_b32 s{sSLOT}, {tab(c.slot0)}, s{sT1}
        s_and_b32 s{sSLOT}, s{sSLOT}, 15
        s_cmp_eq_u32 s{sW}, 0
        s_cselect_b32 s{sSLOT}, s{sSLOT}, 15
        s_bitcmp1_b32 s{sI}, 0
        s_waitcnt lgkmcnt(0)
        s_cselect_b64 s[{S_TMP}:{S_TMP+1}], s[{S_U1}:{S_U1+1}], s[{S_U0}:{S_U0+1}]""")
        assert k.nvm == 0
        self.cs_loads(0)
        clr = f's_and_b32 s{sT4}, s2, 0xe7\ns_lshl3_add_u32 s{sT4}, s{sT4}, s{sW}\ns_cmp_lg_u32 s{sT4}, {(7 if c.g1map else c.clrwg)*8 + 3}'
        k(clr + '\ns_cbranch_scc1 L_noclr')
        k(f'v_lshlrev_b32 v{X+60}, 7, v{vL}\nv_mov_b32 v{X+64}, 0\ns_lshl_b32 s{sT4}, s{sI}, 13')
        k(f'buffer_store_dword v{X+64}, v{X+60}, s[{S_WS}:{S_WS+3}], s{sT4} offen sc1')
        k.label('L_noclr')
        k(f's_cmp_lg_u32 s{sW}, 1\ns_cbranch_scc1 L_nopf\ns_getpc_b64 s[{sT2}:{sT3}]')
        k.label('L_pc')
        k(f's_lshr_b32 s{sT4}, s2, 3\ns_mul_i32 s{sT4}, s{sT4}, {3072 if c.dup else 2048}\nv_lshl_add_u32 v{X+60}, v{vL}, 7, s{sT4}\nv_min_u32 v{X+60}, L_end-L_pc, v{X+60}')
        k(f's_mov_b64 exec, {0xffffff if c.dup else 0xffff}\nglobal_load_dword v{X+61}, v{X+60}, s[{sT2}:{sT3}]\ns_mov_b64 exec, -1')
        k.label('L_nopf')
        k.nvm = 0
        self.stamp('p0')
        d0 = self.dma_stage(0)
        d0[0]()
        self.prologue4()
        d0[1]()
        self.late_srds()
        k(f's_mov_b32 s{S_DBG+2}, 256\ns_mov_b32 s{S_DBG+3}, 0x20000')
        self.consts1()
        k(f"""s_mul_i32 s{sT1}, s{sG}, 10240
        s_add_u32 s{sT1}, s{sT1}, {WEXT}
        s_lshl_b32 s{sT3}, s{sT0}, 8
        s_add_u32 s{sPL2}, s{sT1}, s{sT3}
        s_and_b32 s{sT4}, s{sT3}, {0 if c.m16 else 1024}
        s_add_u32 s{sT1}, s{sPL2}, s{sT4}
        s_and_b32 s{sT3}, s{sI}, 1
        s_lshl_b32 s{sT3}, s{sT3}, {11 if c.m16 else 10}
        s_add_u32 s{sCD}, s{sT1}, s{sT3}
        s_cmp_eq_u32 s{sW}, 2
        s_cselect_b32 s{sCD}, s{sPL2}, s{sCD}
        s_lshl_b32 s{sT1}, s{sW}, 12
        s_add_u32 s{sCD}, s{sCD}, s{sT1}
        s_sub_u32 s{sT1}, s{sW}, 1
        s_cmp_le_u32 s{sT1}, 1
        s_waitcnt lgkmcnt(0)
        s_cbranch_scc0 L_nol
        s_bitcmp1_b32 s{sI}, 0
        s_cselect_b64 s[{S_TMP}:{S_TMP+1}], s[{S_U}:{S_U+1}], s[{S_G}:{S_G+1}]
        s_cselect_b32 s{sT4}, -1, {tab(c.slot2)}
        s_cmp_lt_u32 s{sG}, 14
        s_cselect_b32 s{sT4}, s{sT4}, -1
        s_movk_i32 s{sT3}, 3072
        s_cmp_eq_u32 s{sW}, 2
        s_cselect_b64 s[{S_TMP}:{S_TMP+1}], s[{S_Q}:{S_Q+1}], s[{S_TMP}:{S_TMP+1}]
        s_cselect_b32 s{sT4}, s{sT4}, {tab(c.slot1)}
        s_cselect_b32 s{sT3}, 3840, s{sT3}
        s_cselect_b32 s{sT2}, s{sC2O}, s{sC3O}
        s_lshl_b32 s{sT1}, s{sT0}, 2
        s_lshr_b32 s{sSLOT}, s{sT4}, s{sT1}
        s_and_b32 s{sSLOT}, s{sSLOT}, 15
        s_mul_i32 s{S_TMP+2}, s{sT3}, 640
        s_mul_i32 s{sT1}, s{sT0}, 80
        s_mul_i32 s{sT1}, s{sT1}, s{sT3}
        s_add_u32 s{sCO}, s{sT1}, s{sT2}
        s_lshl_b32 s{sRL}, s{sT3}, 3
        v_mad_u32_u24 v{vCSG}, v{t}, s{sT3}, v{t+1}""")
        k.label('L_nol')
        self.cs_loads(1)
        self.cs_sel()
        if c.m16: k(f's_and_b32 s{sT3}, s{sI}, 2\ns_and_b32 s{sT4}, s{sI}, 4\ns_lshl2_add_u32 s{sT3}, s{sT3}, s{sT4}\ns_lshl_b32 s{sT3}, s{sT3}, 3\nv_xor_b32 v{vCSO}, s{sT3}, v{vCSO}')
        else: k(f's_and_b32 s{sT3}, s{sI}, 3\ns_lshl_b32 s{sT3}, s{sT3}, 5\nv_xor_b32 v{vCSO}, s{sT3}, v{vCSO}')
        self.consts0()
        self.stamp('p0')
        for f in self.dma_stage(1): f()
        self.stamp('p0')
        self.cs_loads(2)
        k(f's_lshl_b32 s{sT3}, s{sI}, 6\n' + clr + f'\ns_cbranch_scc1 L_nodbg\ns_waitcnt vmcnt({k.nvm})')
        self.flag_store(1, X+58, 's_cmp_lg_u32 0, 0', S_DBG)
        k.label('L_nodbg')
        self.stamp('p0')

    def phase0B(self):
        k = self.k; X = vCSB; c = self.cfg
        k(f"""s_lshl4_add_u32 s{sT0}, s{sI}, s{sG}
        s_lshl2_add_u32 s{sT0}, s{sT0}, s{sGW}
        s_mul_i32 s{sCD}, s{sT0}, 2560
        v_lshrrev_b32 v{X+22}, 5, v{vL}
        v_mul_u32_u24 v{X+21}, 1280, v{X+22}
        v_and_b32 v{X+23}, 31, v{vL}
        v_lshl_add_u32 v{X+20}, v{X+23}, 4, v{X+21}
        v_lshl_add_u32 v{X+21}, v{X+23}, 3, v{X+21}""")
        k('s_waitcnt lgkmcnt(0)')
        LD = (f'buffer_load_dwordx4 v[{X}:{X+3}], v{X+20}, s[{S_X}:{S_X+3}], s{sCD} offen',
              f'buffer_load_dwordx4 v[{X+4}:{X+7}], v{X+20}, s[{S_X}:{S_X+3}], s{sCD} offen offset:512',
              f'buffer_load_dwordx2 v[{X+8}:{X+9}], v{X+21}, s[{S_X}:{S_X+3}], s{sCD} offen offset:1024')
        def ld(p):
            for j in range(3):
                if c.bpos[j] == p: self.t_sl = k(LD[j])
        ld(0)
        self.stamp('p0')
        d0 = self.dma_stage(0)
        d0[0]()
        self.prologue4()
        d0[1]()
        k.flush_hazards()
        k('s_branch L_setB')
        yield
        k.label('L_setB')
        self.late_srds()
        k(f's_mov_b32 s{S_WS+2}, {WS_BYTES}\ns_mov_b32 s{S_WS+3}, 0x20000')
        k(f's_lshl_b32 s{sCO}, s{sT0}, 4\ns_add_u32 s{sCO}, s{sCO}, {STATS}\nv_lshlrev_b32 v{X+22}, 3, v{X+22}')
        self.consts0(); self.consts1()
        self.pack_setup()
        k('s_waitcnt lgkmcnt(0)')
        ld(1)
        self.stamp('p0')
        for f in self.dma_stage(1): f()
        self.stamp('p0')
        ld(2)
        self.stamp('p0')
    def stats(self):
        k = self.k; X = vCSB
        a, b, m = X + 10, X + 11, X + 12
        k(f'v_mov_b32 v{a}, 0\nv_mov_b32 v{b}, 0\ns_mov_b32 s{sT2}, 0x3f803f80')
        k.wait(vm=self.t_sl)
        for d in range(10): k(f'v_dot2c_f32_bf16 v{a}, s{sT2}, v{X+d}\nv_dot2c_f32_bf16 v{b}, v{X+d}, v{X+d}')
        k('s_nop 2')
        for ctl in ('quad_perm:[1,0,3,2]', 'quad_perm:[2,3,0,1]', 'row_half_mirror', 'row_mirror'):
            for r in (a, b): k(f'v_add_f32_dpp v{r}, v{r}, v{r} {ctl} row_mask:0xf bank_mask:0xf')
        k(f"""v_mov_b32 v{X}, v{a}
        v_mov_b32 v{X+1}, v{b}
        v_permlane16_swap_b32 v{a}, v{X}
        v_permlane16_swap_b32 v{b}, v{X+1}
        v_add_f32 v{a}, v{a}, v{X}
        v_add_f32 v{b}, v{b}, v{X+1}
        v_mul_f32 v{m}, {hex(f2u(-1.0/640))}, v{a}
        v_mul_f32 v{b}, {hex(f2u(1.0/640))}, v{b}
        v_fma_f32 v{b}, -v{m}, v{m}, v{b}
        v_max_f32 v{b}, 0, v{b}
        v_add_f32 v{m+1}, {hex(f2u(1e-5))}, v{b}
        v_cvt_pk_bf16_f32 v{m}, v{m}, v{m}
        s_mov_b32 exec_lo, 1
        s_mov_b32 exec_hi, 1""")
        self.t_a = k(f'buffer_store_dwordx2 v[{m}:{m+1}], v{X+22}, s[{S_WS}:{S_WS+3}], s{sCO} offen sc1')
        k('s_mov_b64 exec, -1')

    def consts0(self):
        k = self.k; t = vT; S = self.S
        if self.cfg.m16:
            k(f'''v_lshrrev_b32 v{t+4}, 4, v{vL}
            v_bfe_u32 v{t}, v{vL}, 2, 2
            v_and_b32 v{t+1}, 3, v{vL}
            v_lshlrev_b32 v{t+1}, 3, v{t+1}
            v_lshl_add_u32 v{t+1}, v{t}, 7, v{t+1}
            v_and_b32 v{t+2}, 1, v{t+4}
            v_and_or_b32 v{t+2}, v{t}, 2, v{t+2}
            v_lshl_add_u32 v{t+1}, v{t+2}, 5, v{t+1}
            v_lshl_add_u32 v{vWR0}, v{t+4}, 11, v{t+1}''')
            if S: k(f'v_xor_b32 v{vWR0}, 64, v{vWR0}')
            k(f'''v_xor_b32 v{vWR1}, 32, v{vWR0}
            v_mul_u32_u24 v{vEB}, 1536, v{t+4}
            v_sub_u32 v{vEB}, {L_EXT}, v{vEB}
            v_and_b32 v{t}, 15, v{vL}
            v_bfe_u32 v{t+1}, v{vL}, 1, 3
            v_xor_b32 v{t+1}, v{t+1}, v{t+4}
            v_lshlrev_b32 v{t+1}, 4, v{t+1}
            v_lshl_add_u32 v{t+1}, v{t}, 7, v{t+1}
            s_lshl_b32 s{sT0}, s{sGW}, 12
            s_add_u32 s{sT0}, s{sT0}, {L_X}
            v_add_u32 v{vA1}, s{sT0}, v{t+1}
            v_xor_b32 v{vA1+1}, 64, v{vA1}''')
            return
        k(f'''v_bfe_u32 v{t}, v{vL}, 2, 2
        v_and_b32 v{t+1}, 1, v{vL}
        v_lshlrev_b32 v{t+1}, 4, v{t+1}
        v_and_b32 v{t+2}, 2, v{vL}
        v_lshl_add_u32 v{t+1}, v{t+2}, 2, v{t+1}
        v_bfe_u32 v{t+2}, v{vL}, 4, 1
        v_lshrrev_b32 v{t+4}, 5, v{vL}
        v_lshl_add_u32 v{t+1}, v{t}, 7, v{t+1}
        v_and_b32 v{t+3}, 2, v{t}
        v_or_b32 v{t+3}, v{t+3}, v{t+2}
        v_lshl_add_u32 v{t+1}, v{t+3}, 5, v{t+1}
        v_lshrrev_b32 v{t+3}, 4, v{vL}
        v_lshl_add_u32 v{vWR0}, v{t+3}, 10, v{t+1}
        v_lshl_add_u32 v{vWR2}, v{t+4}, 10, v{t+1}''')
        if S: k(f'v_xor_b32 v{vWR0}, 64, v{vWR0}\nv_xor_b32 v{vWR2}, 64, v{vWR2}')
        k(f'''v_xor_b32 v{vWR1}, 32, v{vWR0}
        v_and_b32 v{t}, 31, v{vL}
        v_bfe_u32 v{t+1}, v{vL}, 1, 3
        v_xor_b32 v{t+1}, v{t+1}, v{t+4}
        v_lshlrev_b32 v{t+1}, 4, v{t+1}
        v_lshl_add_u32 v{t+1}, v{t}, 7, v{t+1}
        s_lshl_b32 s{sT0}, s{sGW}, 12
        s_add_u32 s{sT0}, s{sT0}, {L_X}
        v_add_u32 v{vA1}, s{sT0}, v{t+1}
        v_xor_b32 v{vA1+1}, 32, v{vA1}
        v_xor_b32 v{vA1+2}, 64, v{vA1}
        v_xor_b32 v{vA1+3}, 0x60, v{vA1}''')
    def consts1(self):
        k = self.k; t = vT + 9; S = self.S; c = self.cfg
        if c.m16:
            k(f'''v_lshrrev_b32 v{t}, 5, v{vL}
            v_bfe_u32 v{t+1}, v{vL}, 4, 1
            v_lshl_add_u32 v{t}, v{t+1}, 1, v{t}
            v_and_b32 v{t+1}, 15, v{vL}
            v_lshlrev_b32 v{t+1}, 4, v{t+1}
            v_lshl_add_u32 v{vQO}, v{t}, 11, v{t+1}
            v_lshl_add_u32 v{vHO}, v{t}, 8, v{t+1}
            v_lshlrev_b32 v{aL16}, 4, v{vL}
            v_add_u32 v{aL16b}, 4096, v{aL16}''')
        else: k(f'''v_and_b32 v{t}, 31, v{vL}
        v_lshrrev_b32 v{t+2}, 5, v{vL}
        v_lshlrev_b32 v{vQO}, 11, v{t+2}
        v_lshl_add_u32 v{vQO}, v{t}, 4, v{vQO}
        v_bfe_u32 v{t+1}, v{vL}, 4, 1
        v_mul_u32_u24 v{vHO}, {c.hs}, v{t+1}
        v_lshl_add_u32 v{vHO}, v{t+2}, 8, v{vHO}
        v_and_b32 v{t+1}, 15, v{vL}
        v_lshl_add_u32 v{vHO}, v{t+1}, 4, v{vHO}
        v_lshlrev_b32 v{aL16}, 4, v{vL}
        v_add_u32 v{aL16b}, 4096, v{aL16}''')
        k(f"""s_add_u32 s{sC2O}, s{sG}, 16
        s_lshl_b32 s{sC2O}, s{sC2O}, 7
        s_and_b32 s{sT1}, s{sG}, 3
        s_lshl_b32 s{sT1}, s{sT1}, 7
        s_add_u32 s{sC3O}, s{sC3O}, s{sT1}
        s_add_u32 s{sC3O}, s{sC3O}, 256
        s_lshl2_add_u32 s{sT1}, s{sI}, s{sGW}
        s_mul_i32 s{sT1}, s{sT1}, {2*self.cfg.hs}
        s_add_u32 s{sT1}, s{sT1}, {HIM + S*1024}
        s_lshl4_add_u32 s{sHE}, s{sC1}, s{sT1}
        s_lshl4_add_u32 s{sHL}, s{sC3O}, s{sT1}
        s_mul_i32 s{sT2}, s{sI}, {240*2048}
        s_lshl_b32 s{sT1}, s{sGW}, 9
        s_add_u32 s{sT2}, s{sT2}, s{sT1}
        s_add_u32 s{sT2}, s{sT2}, {QKV + S*8192}
        s_lshl_b32 s{sT1}, s{sC1}, 7
        s_add_u32 s{sQS1}, s{sT2}, s{sT1}
        s_lshl_b32 s{sT1}, s{sC2O}, 7
        s_add_u32 s{sQS2}, s{sT2}, s{sT1}
        s_cmp_lt_u32 s{sG}, 14
        s_cselect_b32 s{sQS2}, s{sQS2}, {OOB}
        s_cmp_lt_u32 s{sG}, 10
        s_mov_b32 s{sQF}, {hex(f2u(-1.0 / LOG2E if c.m16 else 1.0))}
        s_cselect_b32 s{sQF}, {hex(f2u((-1.0 if c.m16 else LOG2E) / math.sqrt(20.0)))}, s{sQF}
        s_lshl_b32 s{sFLAG}, s2, 7""")
    def consts2(self):
        k = self.k; S = self.S; c = self.cfg
        k(f'''s_bfe_u32 s{sAI}, s2, 0x40003
        s_and_b32 s{sT0}, s2, 7
        s_lshr_b32 s{sT1}, s2, 7
        s_lshl1_add_u32 s{sAJ}, s{sT0}, s{sT1}''')
        if c.g2map == 0:
            k(f's_bfe_u32 s{sT1}, s2, 0x20003\ns_lshl2_add_u32 s{sR2}, s{sT0}, s{sT1}\ns_lshr_b32 s{sC2}, s2, 5')
        else:
            k(f'''s_lshr_b32 s{sT1}, s{sT0}, 1
            s_bfe_u32 s{sT2}, s2, 0x30003
            s_lshl3_add_u32 s{sR2}, s{sT1}, s{sT2}
            s_and_b32 s{sT1}, s2, 1
            s_lshr_b32 s{sT2}, s2, 6
            s_lshl2_add_u32 s{sC2}, s{sT1}, s{sT2}''')
        k(f'''s_mul_i32 s{sT0}, s{sC2}, 68
        s_mul_i32 s{sT1}, s{sGW}, 12
        s_add_u32 s{sT1}, s{sT0}, s{sT1}
        s_mul_i32 s{sWB}, s{sT1}, 5120
        s_add_u32 s{sWB}, s{sWB}, {W2P}
        s_mul_i32 s{sSTG}, s{sGW}, 20480
        s_cmp_eq_u32 s{sGW}, 3
        s_cselect_b32 s{sSTG}, {L_EXT}, s{sSTG}
        s_lshr_b32 s{sPL2}, s{sR2}, 1''')
        if S:
            k(f"""s_mul_i32 s{sCD}, s{sT0}, 5120
            s_add_u32 s{sCD}, s{sCD}, {W2P + 48*5120}
            s_mov_b64 s[{S_OUT}:{S_OUT+1}], s[{S_TMP}:{S_TMP+1}]
            s_mov_b32 s{S_OUT+2}, {2048*1280}
            s_mov_b32 s{S_OUT+3}, 0x20000""")
    def consts3(self):
        k = self.k; S = self.S
        if S and self.cfg.s5k:
            k(f's_mul_i32 s{sT0}, s{sGW}, 25600\ns_add_u32 s{sCD}, s{sCD}, s{sT0}\ns_lshl4_add_u32 s{sT1}, s{sR2}, s{sGW}\ns_mul_i32 s{sT1}, s{sT1}, 5120\ns_add_u32 s{sT1}, s{sT1}, {OIM}')
            for d in range(4):
                k(f's_add_u32 s{sT0}, s{sGW}, {d}\ns_and_b32 s{sT0}, s{sT0}, 3\ns_mul_i32 s{sT0}, s{sT0}, 20480\ns_add_u32 s{sAM+d}, s{sT0}, s{sT1}')
        elif S:
            k(f's_lshl2_add_u32 s{sT1}, s{sR2}, s{sGW}\ns_mul_i32 s{sAM}, s{sT1}, 20480\ns_add_u32 s{sAM}, s{sAM}, {OIM}\ns_lshl_b32 s{sAM+1}, s{sGW}, 10\ns_add_u32 s{sAM+2}, s{sAM+1}, s{sCD}')
        else:
            k(f's_mul_i32 s{sT1}, s{sR2}, {4*self.cfg.hs}\ns_mul_i32 s{sT0}, s{sGW}, 12288\ns_add_u32 s{sT1}, s{sT1}, s{sT0}\ns_add_u32 s{sT1}, s{sT1}, {HIM}')
            for d in range(4):
                k(f's_add_u32 s{sT0}, s{sGW}, {d}\ns_and_b32 s{sT0}, s{sT0}, 3\ns_mul_i32 s{sT0}, s{sT0}, {self.cfg.hs}\ns_add_u32 s{sAM+d}, s{sT0}, s{sT1}')
        k(f'''s_mul_i32 s{sKVS}, s{sAI}, {240*2048}
        s_mul_i32 s{sT1}, s{sAJ}, {5*2048}
        s_add_u32 s{sKVS}, s{sKVS}, s{sT1}
        s_mul_i32 s{sKVM}, s{sW}, 768''')

    def fg(self, d, src, t):
        if self.cfg.g1map: self.k(f'v_bfe_u32 v{t}, v{src}, 1, 3\nv_and_b32 v{d}, 1, v{src}\nv_lshlrev_b32 v{d}, 14, v{d}\nv_lshl_add_u32 v{d}, v{t}, 7, v{d}')
        else: self.k(f'v_bfe_u32 v{t}, v{src}, 2, 2\nv_and_b32 v{d}, 3, v{src}\nv_lshlrev_b32 v{d}, 13, v{d}\nv_lshl_add_u32 v{d}, v{t}, 8, v{d}')
    def fi(self, d, src, t):
        if self.cfg.g1map: self.k(f'v_and_b32 v{d}, 15, v{src}\nv_lshlrev_b32 v{d}, 10, v{d}')
        else: self.k(f'v_bfe_u32 v{t}, v{src}, 3, 1\nv_and_b32 v{d}, 7, v{src}\nv_lshlrev_b32 v{d}, 10, v{d}\nv_lshl_add_u32 v{d}, v{t}, 7, v{d}')
    def poll(self, kind, thr):
        k = self.k; a = vEX; st = {}
        srd = S_DBG if kind == 'dbg' else S_WS
        def addr():
            t = vT + 10
            if kind == 'dbg': k(f'v_and_b32 v{a}, 3, v{vL}\nv_lshlrev_b32 v{a}, 6, v{a}')
            elif kind == 'rc':
                self.fg(a, vL, t); self.fi(t + 1, vL, t)
                k(f"""s_lshl_b32 s{sT1}, s2, 7
                s_and_b32 s{sT2}, s{sT1}, {(0x78 if self.cfg.g1map else 0x39) << 7}
                s_and_b32 s{sT1}, s{sT1}, {(0x87 if self.cfg.g1map else 0xc6) << 7}
                v_add_u32 v{a}, s{sT2}, v{a}
                v_add_u32 v{t+1}, s{sT1}, v{t+1}
                s_mov_b32 vcc_lo, 0xffff0000
                s_mov_b32 vcc_hi, 0xffff0000
                v_cndmask_b32 v{a}, v{a}, v{t+1}, vcc""")
            elif kind == 'pk':
                self.fi(t + 1, vL, t)
                k(f"""s_lshl_b32 s{sT1}, s2, 7
                s_and_b32 s{sT1}, s{sT1}, {(0x87 if self.cfg.g1map else 0xc6) << 7}
                v_add_u32 v{t+1}, s{sT1}, v{t+1}
                s_mul_i32 s{sT1}, s{sC2}, 5
                s_lshr_b32 s{sT1}, s{sT1}, 2
                v_lshrrev_b32 v{a}, 1, v{vL}
                v_lshl_add_u32 v{a}, v{a}, 3, v{vL}
                v_add_lshl_u32 v{a}, v{a}, s{sT1}, 7
                s_mov_b32 vcc_lo, 0
                s_mov_b32 vcc_hi, 0xffff0000
                v_cndmask_b32 v{a}, v{a}, v{t+1}, vcc""")
            elif kind == 'kv':
                k(f"""v_lshrrev_b32 v{t}, 4, v{vL}
                v_sub_u32 v{t}, s{sAI}, v{t}
                v_max_i32 v{t}, 0, v{t}
                v_mov_b32 v{t+1}, s{sPL2}
                s_mov_b32 vcc_lo, 0
                s_mov_b32 vcc_hi, 0xffff0000
                v_cndmask_b32 v{t+1}, v{t}, v{t+1}, vcc""")
                self.fi(t + 1, t + 1, t); self.fg(a, vL, t)
                k(f'v_add_u32 v{a}, v{a}, v{t+1}')
        def issue():
            self.uid += 1; u = self.uid
            k(f's_cmp_lg_u32 s{sGW}, 0\ns_cbranch_scc1 L_np{u}')
            k(f'buffer_load_dword v{vP}, v{a}, s[{srd}:{srd+3}], 0 offen sc1')
            k.nvm -= 1; st['t'] = k.nvm
            k.label(f'L_np{u}')
        def check(): self.poll_check(st['t'], vP, a, srd, '0', thr)
        return addr, issue, check
    def ext_a(self):
        k = self.k
        if self.S:
            k(f"""s_lshl_b32 s{sT2}, s{sGW}, 9
            s_add_u32 m0, s{sT2}, {L_EXT + 8192}
            s_mul_i32 s{sT1}, s{sG}, 10240
            s_add_u32 s{sT1}, s{sT1}, s{sT2}
            s_add_u32 s{sT3}, s{sT1}, {WEXT + 8192}
            s_cmp_lt_u32 s{sG}, 14
            s_cselect_b32 s{sT3}, s{sT3}, {OOB}
            s_mov_b32 exec_hi, 0""")
            k(f'buffer_load_dwordx4 v{aL16}, s[{S_WS}:{S_WS+3}], s{sT3} offen sc1 lds')
            k(f"""s_mov_b32 exec_hi, -1
            s_lshl1_add_u32 m0, s{sT2}, {L_EXT}
            s_add_u32 s{sT1}, s{sT1}, s{sT2}
            s_add_u32 s{sT1}, s{sT1}, {WEXT}""")
            k(f'buffer_load_dwordx4 v{aL16}, s[{S_WS}:{S_WS+3}], s{sT1} offen sc1 lds')
        k(f'''v_and_b32 v{vT+10}, {15 if self.cfg.m16 else 31}, v{vL}
        v_lshlrev_b32 v{vT+10}, 3, v{vT+10}
        s_lshl2_add_u32 s{sT1}, s{sI}, s{sGW}
        s_lshl_b32 s{sT1}, s{sT1}, 8
        s_add_u32 s{sT1}, s{sT1}, {STATS}''')
        self.t_ea = k(f'buffer_load_dwordx2 v[{vST}:{vST+1}], v{vT+10}, s[{S_WS}:{S_WS+3}], s{sT1} offen sc1')
        if self.cfg.m16: self.t_ea = k(f'buffer_load_dwordx2 v[{vCC}:{vCC+1}], v{vT+10}, s[{S_WS}:{S_WS+3}], s{sT1} offen offset:128 sc1')
    def ext_b(self):
        k = self.k
        k(f"""s_lshl_b32 s{sT2}, s{sGW}, 10
        s_add_u32 m0, s{sT2}, {L_EXT + 4096}
        s_mul_i32 s{sT1}, s{sG}, 10240
        s_add_u32 s{sT1}, s{sT1}, s{sT2}
        s_add_u32 s{sT1}, s{sT1}, {WEXT + 4096}""")
        self.t_eb = k(f'buffer_load_dwordx4 v{aL16}, s[{S_WS}:{S_WS+3}], s{sT1} offen sc1 lds')
    def stats_prep(self):
        k = self.k
        if self.cfg.m16:
            k(f"""v_mov_b32 v{vMEAN}, v{vVAR}
            v_mov_b32 v{vMEAN+1}, v{vVAR}
            v_mov_b32 v{vMEAN+2}, v{vCC}
            v_mov_b32 v{vMEAN+3}, v{vCC}
            v_rsq_f32 v{vCC}, v{vVAR+1}
            v_mov_b32 v{vVAR}, v{vVAR+1}
            v_mov_b32 v{vVAR+1}, v{vCC+1}
            v_rsq_f32 v{vCC+1}, v{vCC+1}
            v_mul_f32 v{vCC}, {hex(f2u(-LOG2E))}, v{vCC}
            v_mul_f32 v{vCC+1}, {hex(f2u(-LOG2E))}, v{vCC+1}""")
            if self.cfg.hsc: k(f'v_mul_f32 v{vVAR}, {hex(f2u(-1/LOG2E))}, v{vVAR}\nv_mul_f32 v{vVAR+1}, {hex(f2u(-1/LOG2E))}, v{vVAR+1}')
            return
        k(f'v_rsq_f32 v{vRS}, v{vST+1}')
        for e in range(4): k(f'v_mov_b32 v{vMEAN+e}, v{vST}')
        k(f'v_mul_f32 v{vC1}, {hex(f2u(-LOG2E))}, v{vRS}\nv_mul_f32 v{vST}, s{sQF}, v{vRS}')
    def job_gu(self, tt, soff):
        k = self.k; J = []; out = vT; acc = vA0 + 16 * tt; c = self.cfg
        c1, var = (vCC + tt, vVAR + tt) if c.m16 else (vC1, vST + 1)
        def one(s): J.append(lambda: k(s))
        for e0 in (0, 4):
            for e in range(e0, e0 + 4): one(f'v_mul_f32 v{acc+8+e}, v{acc+e}, v{acc+8+e}')
            for e in range(e0, e0 + 4): one(f'v_mul_f32 v{acc+e}, v{c1}, v{acc+e}')
            for e in range(e0, e0 + 4): one(f'v_exp_f32 v{acc+e}, v{acc+e}')
            for e in range(e0, e0 + 4): one(f'v_fma_f32 v{acc+e}, v{acc+e}, v{var}, v{var}')
            for e in range(e0, e0 + 4): one(f'v_rcp_f32 v{acc+e}, v{acc+e}')
            for e in range(e0, e0 + 4): one(f'v_mul_f32 v{acc+e}, v{acc+e}, v{acc+8+e}')
            for e in range(e0, e0 + 4, 2): one(f'v_cvt_pk_bf16_f32 v{out+e//2}, v{acc+e}, v{acc+e+1}')
        def st():
            if c.m16:
                k(f's_add_u32 s{sT1}, s{soff}, {tt*c.hs}\nv_permlane16_swap_b32 v{out}, v{out+2}\nv_permlane16_swap_b32 v{out+1}, v{out+3}')
                self.t_store = k(f'buffer_store_dwordx4 v[{out}:{out+3}], v{vHO}, s[{S_WS}:{S_WS+3}], s{sT1} offen {c.stf}')
            else:
                self.t_store = k(f'buffer_store_dwordx4 v[{out}:{out+3}], v{vHO}, s[{S_WS}:{S_WS+3}], s{soff} offen offset:{tt*512} {c.stf}')
        J.append(st)
        return J
    def qkv_half(self, pas, tt, half):
        k = self.k; c = self.cfg
        acc = vA0 + 16 * tt + 8 * half if pas == 1 else vA1 + 8 * tt
        soff = sQS1 if pas == 1 else sQS2
        if c.m16:
            sc = vT + 10; off = half * 16384 + tt * 256
            k(f"v_mul_f32 v{sc}, {f's{sQF}' if pas == 1 else hex(f2u(-1.0 / LOG2E))}, v{vCC+tt}")
        else:
            sc = vST if pas == 1 else vRS; off = half * 16384 + tt * 4096
        for e in range(8): k(f'v_mul_f32 v{acc+e}, v{sc}, v{acc+e}')
        for e in range(0, 8, 2): k(f'v_cvt_pk_bf16_f32 v{acc+e//2}, v{acc+e}, v{acc+e+1}')
        k(f's_add_u32 s{sT1}, s{soff}, {off}')
        if c.m16: k(f'v_permlane16_swap_b32 v{acc}, v{acc+2}\nv_permlane16_swap_b32 v{acc+1}, v{acc+3}')
        self.t_store = k(f'buffer_store_dwordx4 {vr(acc,4)}, v{vQO}, s[{S_WS}:{S_WS+3}], s{sT1} offen {c.stf}')
    def job_e1(self, j):
        k = self.k
        def f():
            tt, half = j >> 1, j & 1
            if self.typ == 0:
                J = self.job_gu(tt, sHE)
                for x in (J[26:] if half else J[:26]): x()
            else:
                self.qkv_half(1, tt, half)
                if not half and not self.cfg.cnt: k.nvm -= 1
        return f
    def slot_test(self, newer):
        return f's_sub_u32 s{sCNT}, s{sSLOT}, {newer[0][3]}\ns_cmp_le_u32 s{sCNT}, {newer[-1][3] - newer[0][3]}'
    def job_csb(self, lump):
        c = self.cfg
        for p in sorted(self.slots):
            if p >= 3: lump[p - 3].append(('first', lambda p=p: self.cs_loads(p)))
        lump[c.u1].append(('first', self.cs_use(0, max(max(c.slot0), max(c.slot2)), 't_a')))
        lump[c.u2].append(('first', self.cs_use(min(c.slot1), max(c.slot1), 't_b')))
        assert c.u2 <= 6
    def pack_setup(self):
        k = self.k
        a0, a1, go = vA1 + 6, vA1 + 7, vA1 + 8
        d = vT; x, y = vT + 10, vT + 11
        k(f"""s_mul_i32 s{sT1}, s2, 52429
        s_lshr_b32 s{sT1}, s{sT1}, 19
        s_mul_i32 s{sT3}, s{sT1}, 10
        s_sub_u32 s{sPKL}, s2, s{sT3}
        s_lshl2_add_u32 s{sT2}, s{sT1}, s{sGW}
        s_mul_i32 s{sPKS}, s{sT2}, 10240
        s_lshl_b32 s{sT3}, s{sPKL}, 7
        s_add_u32 s{sPKS}, s{sPKS}, s{sT3}
        s_mul_i32 s{sT3}, s{sT1}, 5120
        s_lshl_b32 s{sT4}, s{sGW}, 8
        s_add_u32 s{sT3}, s{sT3}, s{sT4}
        s_add_u32 s{sT3}, s{sT3}, {W2P}
        s_cmp_lt_u32 s{sT2}, 96
        s_cselect_b32 s{sPKD0}, s{sT3}, {OOB}
        s_cselect_b32 s{sPKS}, s{sPKS}, {OOB}
        s_add_u32 s{sPKD1}, s{sPKD0}, {24*5120}
        s_mul_i32 s{sT1}, s{sT2}, 52429
        s_lshr_b32 s{sT1}, s{sT1}, 18
        s_mul_i32 s{sT3}, s{sT1}, 5
        s_sub_u32 s{sT3}, s{sT2}, s{sT3}
        s_and_b32 s{sT4}, s{sT1}, 3
        s_lshr_b32 s{sT1}, s{sT1}, 2
        s_mul_i32 s{sT1}, s{sT1}, 5
        s_cmp_gt_u32 s{sT3}, 2
        s_subb_u32 s{sT5}, s{sT3}, 0
        s_cmp_eq_u32 s{sT3}, 2
        s_cselect_b32 s{sT5}, s{sT4}, s{sT5}
        s_cselect_b32 s{sT4}, 4, s{sT4}
        s_add_u32 s{sT1}, s{sT1}, s{sT4}
        s_mul_i32 s{sT1}, s{sT1}, 5120
        s_lshl_b32 s{sT5}, s{sT5}, 8
        s_add_u32 s{sT1}, s{sT1}, s{sT5}
        s_add_u32 s{sT1}, s{sT1}, {W2P + 48*5120}
        s_cmp_lt_u32 s{sT2}, 80
        s_cselect_b32 s{sPKD2}, s{sT1}, {OOB}
        s_bfe_u32 s{sSLOT}, s2, {hex(0x4 | ((self.cfg.nslot.bit_length()-1) << 16))}""")
    def job_pack(self, lump):
        k = self.k; c = self.cfg
        a0, a1, go = 8, 9, vT + 10
        d = vT; x, y = vT + 4, vT + 5
        def issue(p):
            def f():
                if 'p' in c.skip: k(f's_mov_b32 s{sSLOT}, 9')
                if 's' in c.skip: k(f's_mov_b32 s{sPKD0}, {OOB}\ns_mov_b32 s{sPKD1}, {OOB}\ns_mov_b32 s{sPKD2}, {OOB}')
                k(f"""s_cmp_lg_u32 s{sSLOT}, {p}
                s_cbranch_scc1 L_npk{p}
                v_lshrrev_b32 v{go}, 3, v{vL}
                v_mul_u32_u24 v{go}, 1280, v{go}
                v_and_b32 v{go+1}, 0x70, v{aL16}
                v_add_u32 v{go}, v{go}, v{go+1}
                s_mul_i32 s{sT2}, s{sGW}, 3072
                s_add_u32 m0, s{sT2}, {L_PACK}
                s_add_u32 s{sT1}, s{sPKS}, {96*10240 - 1024}""")
                k(f'buffer_load_dwordx4 v{go}, s[{S_WD}:{S_WD+3}], s{sPKS} offen {c.pknt} lds')
                k(f'buffer_load_dwordx4 v{go}, s[{S_WD}:{S_WD+3}], s{sT1} offen offset:1024 {c.pknt} lds')
                k(f's_add_u32 m0, s{sT2}, {L_PACK + 2048}')
                k(f'buffer_load_dwordx4 v{go}, s[{S_WO}:{S_WO+3}], s{sPKS} offen {c.pknt} lds')
                k.nvm -= 3; k.cond.append((k.nvm, 3, self.slot_test, p)); self.t_pk = Tok(k.nvm + 1)
                k.label(f'L_npk{p}')
            return f
        def addr1():
            k(f"""s_lshl_b32 s{sT1}, s{sPKL}, 1
            v_lshrrev_b32 v{x}, 5, v{vL}
            v_add_u32 v{x}, s{sT1}, v{x}
            v_mul_u32_u24 v{y}, 52, v{x}
            v_lshrrev_b32 v{y}, 8, v{y}
            v_mul_u32_u24 v{a0}, 5, v{y}
            v_sub_u32 v{x}, v{x}, v{a0}
            v_bfe_u32 v{d}, v{vL}, 4, 1
            v_lshl_add_u32 v{d+1}, v{x}, 1, v{d}
            v_cmp_lt_u32 vcc, 4, v{d+1}
            v_mul_u32_u24 v{y}, {2*340}, v{y}
            v_add_u32 v{a1}, {340-6}, v{d+1}
            v_cndmask_b32 v{a1}, v{d+1}, v{a1}, vcc
            v_cmp_eq_u32 vcc, 5, v{d+1}
            v_mov_b32 v{d+2}, {340+4}
            v_and_b32 v{d+3}, 15, v{vL}
            v_cndmask_b32 v{a1}, v{a1}, v{d+2}, vcc
            v_add_lshl_u32 v{a1}, v{a1}, v{y}, 10
            v_lshl_add_u32 v{a1}, v{d+3}, 4, v{a1}""")
        def addr2():
            k(f"""v_and_b32 v{d+1}, 3, v{vL}
            v_lshlrev_b32 v{d+2}, 4, v{d+1}
            v_lshl_add_u32 v{d+2}, v{d}, 3, v{d+2}
            v_cmp_eq_u32 vcc, 2, v{x}
            v_lshlrev_b32 v{d+1}, 3, v{d+1}
            v_lshl_add_u32 v{d+1}, v{d}, 5, v{d+1}
            v_cndmask_b32 v{a0}, v{d+2}, v{d+1}, vcc
            v_bfe_u32 v{x}, v{vL}, 2, 2
            v_lshl_add_u32 v{a0}, v{x}, 7, v{a0}
            v_lshrrev_b32 v{x}, 5, v{vL}
            v_lshl_add_u32 v{a0}, v{x}, 6, v{a0}
            s_mul_i32 s{sT1}, s{sGW}, 3072
            s_add_u32 s{sT1}, s{sT1}, {L_PACK}
            v_add_u32 v{a0}, s{sT1}, v{a0}""")
        D = vT + 4
        def rd(it):
            def f():
                k.wait(vm=self.t_pk)
                k(f'ds_read_b64_tr_b16 {vr(D,2)}, v{a0} offset:{it*1024}')
                self.t_pr = k(f'ds_read_b64_tr_b16 {vr(D+2,2)}, v{a0} offset:{it*1024+512}')
            return f
        def st(it):
            def f():
                k.wait(lg=self.t_pr)
                self.t_b = k(f'buffer_store_dwordx4 {vr(D,4)}, v{a1}, s[{S_WS}:{S_WS+3}], s{(sPKD0, sPKD1, sPKD2)[it]} offen {c.stf}')
            return f
        n = c.pk
        for p in range(c.nslot): lump[n + p].append(('first', issue(p)))
        u = n + c.nslot - 1 + c.pkd
        lump[c.pka].append(addr1); lump[c.pka + 1].append(addr2)
        for it in range(3):
            lump[u + it // c.pkn].append(('first', rd(it)) if it % c.pkn == 0 else ('late', rd(it)))
            lump[u + it // c.pkn].append(('late', st(it)))
        assert c.pka + 1 < u and c.fb > u + 2 // c.pkn and c.pka + 1 <= 9
    def job_ones(self):
        k = self.k
        d = vT; tk = vT + 10; a = vT + 11
        k(f'''s_mul_i32 s{sT1}, s{sW}, 48
        v_add_u32 v{tk}, s{sT1}, v{vL}
        s_sub_i32 s{sT1}, 2, s{sAI}
        s_lshl_b32 s{sT1}, s{sT1}, 7
        v_cmp_le_i32 vcc, s{sT1}, v{tk}
        v_mov_b32 v{d+1}, 0x3f80
        v_lshlrev_b32 v{a}, 4, v{tk}
        v_cndmask_b32 v{d}, 0, v{d+1}, vcc
        v_lshrrev_b32 v{d+2}, 7, v{tk}
        v_mul_u32_u24 v{d+2}, {240*2048 - 2048}, v{d+2}
        v_add_u32 v{d+2}, v{d+2}, v{a}
        v_mov_b32 v{d+3}, {OOB}
        v_cndmask_b32 v{vT+8}, v{d+3}, v{d+2}, vcc
        s_mov_b32 vcc_lo, 0x11111111
        s_mov_b32 vcc_hi, 0x11111111
        v_cndmask_b32 v{d}, 0, v{d}, vcc
        v_mov_b32 v{d+1}, 0
        v_mov_b32 v{d+2}, v{d}
        v_mov_b32 v{d+3}, 0
        v_add_u32 v{a}, {L_ONES}, v{a}
        ds_write_b128 v{a}, v[{d}:{d+3}]''')
        if self.S: k(f'v_mov_b32 v{tk}, 0\nv_lshlrev_b32 v{a}, 2, v{vL}\nv_add_u32 v{a}, {L_CNT}, v{a}\nds_write_b32 v{a}, v{tk}')
    def job_kv(self):
        k = self.k; J = []; S = self.S
        for e in range(10):
            def f(e=e):
                src = QKV - 2*240*2048 + ((80 if e < 5 else 155) + e) * 2048
                k(f's_add_u32 m0, s{sKVM}, {L_KV + e*CH}\ns_add_u32 s{sT1}, s{sKVS}, {src}\ns_mov_b32 exec_hi, 0xffff')
                self.t_kv = k(f'buffer_load_dwordx4 v{vT+8}, s[{S_WS}:{S_WS+3}], s{sT1} offen sc1 lds')
                k('s_mov_b32 exec_hi, -1')
            J.append(f)
        def q():
            k(f'''s_lshl_b32 s{sT1}, s{sGW}, 9
            s_add_u32 s{sT1}, s{sT1}, s{sKVS}
            s_add_u32 s{sT2}, s{sT1}, {QKV + S*3*2048}
            s_add_u32 s{sT1}, s{sT1}, {QKV + 4096 + 8*S}
            v_lshrrev_b32 v{vT+10}, 5, v{vL}
            v_and_b32 v{vQO}, 0x1f0, v{aL16}
            v_lshl_add_u32 v{vQO}, v{vT+10}, 11, v{vQO}
            v_lshl_add_u32 v{vT+10}, v{vT+10}, 30, v{vQO}''')
            k(f'buffer_load_dwordx4 v[{vQ}:{vQ+3}], v{vQO}, s[{S_WS}:{S_WS+3}], s{sT2} offen sc1')
            self.t_kv = k(f'buffer_load_dwordx2 v[{vQ+4}:{vQ+5}], v{vT+10}, s[{S_WS}:{S_WS+3}], s{sT1} offen sc1')
        J.append(q)
        return J
    def job_touch(self, gw):
        k = self.k; c = self.cfg
        nsh = 8 if c.g2map else 4; per = -(-2720 // (8 * nsh))
        def f():
            self.uid += 1; u = self.uid
            k(f"""s_cmp_lg_u32 s{sGW}, {gw}
            s_cbranch_scc1 L_nt{u}
            s_and_b32 s{sT1}, s{sR2}, {nsh-1}
            s_lshl3_add_u32 s{sT1}, s{sT1}, s{sW}
            s_mul_i32 s{sT1}, s{sT1}, {per}
            v_min_u32 v{vT+5}, {min(per,64)-1}, v{vL}
            v_add_u32 v{vT+5}, s{sT1}, v{vT+5}
            v_min_u32 v{vT+5}, 2719, v{vT+5}
            v_lshlrev_b32 v{vT+5}, 7, v{vT+5}
            s_mul_i32 s{sT1}, s{sC2}, {68*5120}
            s_add_u32 s{sT1}, s{sT1}, {W2P}""")
            k(f'buffer_load_dword v{vT+6}, v{vT+5}, s[{S_WS}:{S_WS+3}], s{sT1} offen sc1')
            k.nvm -= 1
            k.label(f'L_nt{u}')
        return f
    def job_code(self):
        k = self.k; self.uid += 1; u = self.uid
        k(f's_cmp_lg_u32 s{sGW}, 1\ns_cbranch_scc1 L_nc{u}\ns_getpc_b64 s[{sT2}:{sT3}]')
        k.label(f'L_pc{u}')
        k(f's_lshr_b32 s{sT4}, s2, 3\ns_lshl_b32 s{sT4}, s{sT4}, 9\nv_lshl_add_u32 v{vT+10}, v{vL}, 7, s{sT4}\nv_min_u32 v{vT+10}, L_end-L_pc{u}, v{vT+10}')
        k(f's_mov_b64 exec, 15\nglobal_load_dword v{vT+6}, v{vT+10}, s[{sT2}:{sT3}]\ns_mov_b64 exec, -1')
        k.nvm -= 1
        k.label(f'L_nc{u}')
    def dmask(self, r):
        n0 = 8 * (r >> 2) + (r & 3)
        return f's_lshl_b32 s{sT2}, -1, {n0}\ns_lshl_b32 s{sT3}, -1, {n0+4}'
    def job_masks(self, lo, hi):
        k = self.k
        def f():
            k(f'v_mov_b32 v{vT+10}, 0xffff')
            for j in range(lo, hi):
                k(self.dmask(2*j) + f'\nv_cndmask_b32 v{vM+j}, 0, v{vT+10}, s[{sT2}:{sT3}]')
                k(self.dmask(2*j+1) + f'\nv_cndmask_b32 v{vM+j}, v{vM+j}, -1, s[{sT2}:{sT3}]')
        return f

    def frag_list(self):
        c = self.cfg; F = []
        ea, eb = c.pa + c.ed, c.eb
        for n in range(25):
            slot = (n & 3) * 16384
            for q in range(8):
                f = dict(stage=n, first=(q == 0))
                if c.m16:
                    T = q & 1
                    if 10 <= n < 15:
                        t = q >> 1; kk = 4 * (n - 10) + t
                        f.update(off=slot + (t & 1) * 8192 + (t >> 1) * 1024, acc=vA1 + 4 * T, dm=8)
                    else:
                        t, part = q >> 2, (q >> 1) & 1
                        kk = 2 * (n if n < 10 else n - 15) + t
                        f.update(off=slot + t * 8192 + part * 1024, acc=vA0 + 8 * part + 4 * T, dm=16)
                        if n < 10 and q & 3 == 0: f['xread'] = (vX + 8 * kk, vA1 + t, slot)
                    f.update(addr=(vWR0, vWR1)[T], b=vX + 8 * kk, zero=(kk == 0))
                elif 10 <= n < 15:
                    kk = 8 * (n - 10) + q
                    f.update(addr=vWR2, off=slot + q * 2048, acc=vA1, b=vX + 4 * kk, zero=(kk == 0))
                else:
                    t, tt = q >> 1, q & 1
                    kk = 4 * (n if n < 10 else n - 15) + t
                    f.update(addr=(vWR0, vWR1)[tt], off=slot + t * 4096, acc=vA0 + 16 * tt, b=vX + 4 * kk, zero=(kk == 0))
                    if n < 10 and tt == 0: f['xread'] = (vX + 4 * kk, vA1 + t, slot)
                F.append(f)
                def ext(u):
                    g = dict(stage=n, first=False, b=vMEAN, zero=False)
                    if c.m16:
                        for T in range(2):
                            F.append(dict(g, addr=(vWR0, vWR1)[T], off=u * 2048, acc=(vA1 if u == 4 else vA0 + 8 * (u & 1)) + 4 * T, dm=8 if u == 4 else 16, ext=f'v{vEB}'))
                    else:
                        F.append(dict(g, addr=vWR2 if u == 4 else (vWR0, vWR1)[u & 1], off=0, acc=vA1 if u == 4 else vA0 + 16 * (u & 1), ext=L_EXT + (u >> 1) * 4096))
                if q == 1:
                    if n == ea: ext(0)
                    if n == min(ea + 1, 10): ext(1)
                    if n == eb: ext(4)
                    if n == c.ec: ext(2)
                    if n == c.ec + 1: ext(3)
        return F
    def issue_reads(self, F, i, h):
        k = self.k; f = F[i]; m16 = self.cfg.m16
        fr = vFR + 4 * (i & 3); a = f['addr']
        if h == 0 and f['first']: self.barrier(f['stage'])
        if 'xread' in f and (m16 or h == 0):
            d, xa, off = f['xread']
            k(f'ds_read_b128 {vr(d + 4*h,4)}, v{xa} offset:{off + 2048*h}')
        if 'ext' in f:
            if h == 0: k(f"v_add_u32 v{vT+9}, {f['ext']}, v{a}")
            a = vT + 9
            if m16:
                if h: f['tok'] = k(f"ds_read_b64_tr_b16 {vr(fr,2)}, v{a} offset:{f['off']}")
                return
        f['tok'] = k(f"ds_read_b64_tr_b16 {vr(fr + 2*h,2)}, v{a} offset:{f['off'] + 512*h}")
    def g1_mfma(self, f, i, mt):
        fr = vFR + 4 * (i & 3)
        if not self.cfg.m16:
            acc = vr(f['acc'], 16)
            self.k(f"v_mfma_f32_32x32x16_bf16 {acc}, {vr(fr,4)}, {vr(f['b'],4)}, {'0' if f['zero'] else acc}")
            return
        acc = vr(f['acc'] + f['dm'] * mt, 4)
        if 'ext' in f: self.k(f"v_mfma_f32_16x16x16_bf16 {acc}, {vr(fr,2)}, {vr(f['b'] + 2*mt,2)}, {acc}")
        else: self.k(f"v_mfma_f32_16x16x32_bf16 {acc}, {vr(fr,4)}, {vr(f['b'] + 4*mt,4)}, {'0' if f['zero'] else acc}")
    def close_window(self):
        if self.sd:
            self.sd.finish()
            self.counts[(self.S, self.typ, self.win)] = self.sd.n
            self.sd = None
        for j in self.end[self.win]: j()
    def barrier(self, n):
        k = self.k
        self.close_window()
        self.stamp('jj')
        toks = [self.stok[n]] + ([] if 'n' in self.cfg.skip else [g() for g in self.pre[n]])
        sk = self.cfg.skip
        k.wait(vm=max(t.n for t in toks), lg='all' if n in self.drain and not ('d' in sk) else None)
        if not ('B' in sk and n > 10 and n & 1) and not ('C' in sk and n > 10): k('s_barrier')
        if 10 < n < 14: self.stamp('jj')
        if n in (0, 10, 15): self.stamp()
        if n in (0, 1, 2, 3): self.stamp('p0')
        if n <= 10: self.stamp('p1')
        if 8 <= n <= 19: self.stamp('p2')
        if n >= 14: self.stamp('p3')
        for g in self.post[n]: g()
        k.c(f'---- GEMM1 stage {n}')
        self.win = n; self.wpos = 0
        self.sd = Side(k, list(self.lump[n]), self.cfg.wts) if self.lump[n] else None
    def deal(self, nslots):
        self.wpos += 1
        if self.sd:
            tot = self.known.get((self.S, self.typ, self.win), 0)
            wait = max([j for j in self.lump[self.win] if isinstance(j, int)] + [0])
            share = (self.cfg.gainb if self.S else self.cfg.gain) * tot / max(nslots - wait, 1)
            tilt = self.cfg.tilt * (-1 if self.S else 1)
            self.sd.give(share * (1 + tilt * (2.0 * self.wpos / nslots - 1)), self.wpos)
    def run_frags(self, F, lo, hi):
        k = self.k; m16 = self.cfg.m16
        for i in range(lo, hi):
            f = F[i]; more = i + 3 < len(F)
            ns = lambda: self.nfr[self.win] * (2 if m16 else 1)
            k.wait(lg=f['tok'])
            self.g1_mfma(f, i, 0)
            if m16:
                if more and not F[i + 3]['first']: self.issue_reads(F, i + 3, 0)
                self.deal(ns())
                self.g1_mfma(f, i, 1)
                if more and F[i + 3]['first']: self.issue_reads(F, i + 3, 0)
            elif more: self.issue_reads(F, i + 3, 0)
            if more: self.issue_reads(F, i + 3, 1)
            self.deal(ns())

    def gemm1(self):
        k = self.k; c = self.cfg; S = self.S
        L = self.lump = {n: [] for n in range(-1, 26)}
        E = self.end = {n: [] for n in range(-1, 26)}
        pre = self.pre = {n: [] for n in range(26)}
        post = self.post = {n: [] for n in range(26)}
        ea, eb = c.pa + c.ed, c.eb; mm = 2 if c.m16 else 1
        if S:
            for n, v in ((c.fa, 1), (c.fb, 2), (c.fq, 3)):
                post[n].append(lambda v=v: self.flag_store(v, who=f's_cmp_eq_u32 s{sGW}, 0'))
        else:
            for n, kind, thr in ((c.fa - 2, 'dbg', 1), (c.pa, 'rc', 1), (c.pb, 'pk', 2), (c.pq, 'kv', 3)):
                a_, i_, c_ = self.poll(kind, thr)
                E[n + 1].append(c_); L[{'pk': c.ab, 'kv': c.aq}.get(kind, n)].append(('late', a_)); E[n].append(i_)
            assert c.fa >= 2 and c.pa >= c.fa and c.pb >= c.ab >= max(c.pa + 2, c.c2) and c.pq >= c.aq >= c.pb + 2
        self.drain = set()
        nxt = 2
        for n in range(24):
            depth = c.dp1 if n < c.dpx else c.dp2
            while nxt <= min(n + depth, 24):
                mode = (c.dB if S else c.dA)[n >= 8]
                if mode == 'q': L[n] += self.dma_stage(nxt)
                elif mode == 'l': L[n] += [('late', f) for f in self.dma_stage(nxt)]
                elif mode == 'e': E[n] = self.dma_stage(nxt) + E[n] if nxt == n + depth and not (n == c.dpx and c.dp2 > c.dp1) else E[n] + self.dma_stage(nxt)
                else: post[n] += self.dma_stage(nxt)
                if nxt == n + 3 and nxt >= 4: self.drain.add(n)
                nxt += 1
        pre[c.fa].append(lambda: self.t_a)
        if S: {'q': L, 'e': E, 'p': post}[c.sm][c.sb].append(self.stats); self.job_pack(L)
        else: self.job_csb(E)
        c2 = c.c2b if S else c.c2
        L[c2].append(self.consts2); L[c2 + 1].append(self.consts3)
        assert c.c2b >= 8 and c.c2 + 1 > max(c.slot1) - 3
        pre[c.fb].append(lambda: self.t_b)
        L[c.pa + 2].append(('first', self.ext_a)); pre[ea].append(lambda: self.t_ea); post[ea].append(self.stats_prep)
        if S: L[c.pb + 2].append(self.ext_b); pre[c.ec].append(lambda: self.t_eb)
        assert ea <= 10 and ea <= eb <= 14 and c.pb + 2 < c.ec
        for j in range(4): L[11 + j].append(self.job_e1(j))
        def e2():
            for tt in range(2): self.qkv_half(2, tt, 0)
            self.t_q = self.t_store
        g0 = c.g0
        if g0 == 15: L[g0].append(4 * mm)
        L[g0].append(e2); pre[c.fq].append(lambda: self.t_q)
        assert c.fq > g0
        L[g0 + 1].append(self.job_ones)
        L[g0 + 2].append(self.job_masks(0, 4)); L[g0 + 3].append(self.job_masks(4, 8))
        L[c.c1].append(self.attn_c1); L[22].append(self.attn_c2); L[c.c3].append(self.attn_c3)
        assert c.ec <= 20 and c.c3 >= 25 - c.dp2
        def place(mode, n, J):
            if mode == 'q': L[n] += J
            elif mode == 'f': L[n] += [('first', j) for j in J]
            elif mode == 'e': E[n] += [('first', j) for j in J]
            else: post[n] += J
        for n in c.code: L[n].append(self.job_code)
        kv = self.job_kv(); n = c.pq + 2
        while kv:
            assert g0 + 1 < n <= 24
            take = len(kv) if n == 24 else c.kvn
            place(c.kB if S else c.kA, n, kv[:take]); kv = kv[take:]; n += 1
        self.g2_plan()
        for n in range(c.pb + 2, 25):
            for _ in range((c.hoistb if S else c.hoist) if n <= c.hoist_hi else 0):
                hm = c.hB if S else c.hA
                if self.pf and self.pf[0][0] == 'w' and self.pf[0][1] + 3 < vX + 16 * (n - 16 + (hm == 'e')) + 8:
                    place(hm, n, [self.pf.pop(0)[2]])
        for D in (L, E):
            for n in D:
                late = [j[1] for j in D[n] if isinstance(j, tuple) and j[0] == 'late']
                first = [j[1] for j in D[n] if isinstance(j, tuple) and j[0] == 'first']
                D[n] = first + [j for j in D[n] if not isinstance(j, tuple)] + late
        F = self.frag_list()
        self.nfr = {n: sum(f['stage'] == n for f in F) for n in range(25)}
        self.nfr[0] -= 3; self.nfr[24] += 2
        self.typ = None; self.sd = None; self.win = -1; self.frac = 0.0
        for j in L[-1]: j()
        if c.prio == 2 and S: k('s_setprio 1')
        for i in range(3): self.issue_reads(F, i, 0); self.issue_reads(F, i, 1)
        at = lambda n: next(i for i, f in enumerate(F) if f['stage'] == n) - 3
        if c.dup:
            self.typ = self.ftyp
            self.run_frags(F, 0, len(F))
            self.close_window()
            self.stamp()
            return
        self.run_frags(F, 0, at(11))
        self.close_window(); E[10] = []
        tag = 'AB'[S]
        k(f's_bitcmp1_b32 s2, {7 if c.g1map else 6}\ns_cbranch_scc1 L_ty{tag}')
        s0 = k.snap(); nst = self.nst; res = []; e14 = E[14]
        for typ in (0, 1):
            k.restore(s0); self.nst = nst; self.typ = typ; self.win = 10; E[14] = e14
            if typ: k.label(f'L_ty{tag}')
            self.run_frags(F, at(11), at(15))
            self.close_window(); E[14] = []
            k('s_nop 1')
            if not typ: k(f's_branch L_tj{tag}')
            res.append((k.nvm - k.dvm, k.nlg, k.dlg, {n: k.nvm - self.stok[n].n for n in self.stok if n >= 15}, k.cond))
        assert res[0][1:3] == res[1][1:3] and not res[0][4] and not res[1][4], res
        for n in res[0][3]: self.stok[n] = Tok(k.nvm - min(res[0][3][n], res[1][3][n]))
        k.dvm = k.nvm - max(res[0][0], res[1][0])
        assert c.fb <= 14 and c.pb in (14, 15, 16) and c.pk + c.nslot + c.pkd + 2 <= 11
        k.label(f'L_tj{tag}')
        self.typ = None
        self.run_frags(F, at(15), len(F))
        self.close_window()
        if c.prio: k('s_setprio 0')
        self.stamp()

    def attn_c1(self):
        k = self.k; t = vT; S = self.S
        k(f"""v_and_b32 v{t}, 31, v{vL}
        v_lshrrev_b32 v{t+1}, 5, v{vL}
        s_lshl_b32 s{sT0}, s{sGW}, 9
        s_add_u32 s{sT2}, s{sT0}, {L_KV + S*3*CH}
        v_mul_u32_u24 v{aK0}, {CH}, v{t+1}
        v_lshl_add_u32 v{aK0}, v{t}, 4, v{aK0}
        v_add_u32 v{aK0}, s{sT2}, v{aK0}
        s_add_u32 s{sT3}, s{sT0}, {L_KV + 2*CH + 8*S}
        v_lshl_add_u32 v{aK1}, v{t}, 4, s{sT3}
        s_lshl2_add_u32 s{sT0}, s{sAI}, s{sGW}
        s_lshr_b32 s{sT1}, s{sAJ}, 2
        s_lshl3_add_u32 s{sT0}, s{sT0}, s{sT1}
        s_mul_i32 s{sT0}, s{sT0}, 5120
        s_add_u32 s{sT0}, s{sT0}, {OIM + S*512}
        s_and_b32 s{sT1}, s{sAJ}, 3
        s_lshl_b32 s{sT2}, s{sT1}, 10
        s_add_u32 s{sQS1}, s{sT0}, s{sT2}
        s_lshl_b32 s{sT2}, s{sT1}, 7
        s_add_u32 s{sQS2}, s{sT0}, s{sT2}
        s_add_u32 s{sQS2}, s{sQS2}, 4096""")
    def attn_c2(self):
        k = self.k; t = vT; S = self.S
        k(f"""v_lshrrev_b32 v{t+1}, 5, v{vL}
        s_lshl_b32 s{sT0}, s{sGW}, 9
        v_bfe_u32 v{t}, v{vL}, 2, 2
        v_lshl_add_u32 v{t}, v{t+1}, 2, v{t}
        v_lshlrev_b32 v{t}, 4, v{t}
        v_and_b32 v{aV}, 1, v{vL}
        v_mul_u32_u24 v{aV}, {CH}, v{aV}
        v_and_b32 v{t+2}, 2, v{vL}
        v_lshl_add_u32 v{aV}, v{t+2}, 2, v{aV}
        s_add_u32 s{sT1}, s{sT0}, {L_KV + (5 + 3*S)*CH}
        v_add3_u32 v{aV}, v{aV}, v{t}, s{sT1}
        s_add_u32 s{sT2}, s{sT0}, {L_KV + 7*CH + 8*S}
        v_add_u32 v{t}, s{sT2}, v{t}
        s_mov_b32 vcc_lo, 0x33330000
        s_mov_b32 vcc_hi, 0x33330000
        v_cndmask_b32 v{aV}, v{aV}, v{t}, vcc
        s_add_u32 s{sT1}, s{sT0}, {L_ONES + 8 - 8*S}
        v_lshl_add_u32 v{t}, v{t+1}, 6, s{sT1}
        s_lshl_b64 vcc, vcc, 2
        v_cndmask_b32 v{aV}, v{aV}, v{t}, vcc
        v_add_u32 v{t}, 16, v{t}
        s_mov_b32 vcc_lo, 0x22220000
        s_mov_b32 vcc_hi, 0x22220000
        v_cndmask_b32 v{aV}, v{aV}, v{t}, vcc""")
    def attn_c3(self):
        k = self.k; t = vT
        k(f"""v_lshrrev_b32 v{t+1}, 5, v{vL}
        v_bfe_u32 v{t}, v{vL}, 4, 1
        v_mul_u32_u24 v{t}, 20480, v{t}
        v_and_b32 v{t+2}, 15, v{vL}
        v_lshl_add_u32 v{aO0}, v{t+2}, 4, v{t}
        v_lshl_add_u32 v{aO0}, v{t+1}, 8, v{aO0}
        v_lshl_add_u32 v{aO1}, v{t+2}, 3, v{t}
        v_lshl_add_u32 v{aO1}, v{t+1}, 30, v{aO1}""")
    def rdK(self, t, buf, a0=None, a1=None):
        k = self.k; k0, k1 = vKB[buf]
        k(f'ds_read_b128 {vr(k0,4)}, v{a0 or aK0} offset:{t*512}')
        return k(f'ds_read_b64 {vr(k1,2)}, v{a1 or aK1} offset:{t*512}')
    def rdV(self, t, buf, a=None):
        k = self.k; v = vVB[buf]
        for q in range(4): r = k(f'ds_read_b64_tr_b16 {vr(v+2*q,2)}, v{a or aV} offset:{t*512 + q*128}')
        return r
    def qk(self, buf, S):
        k = self.k; k0, k1 = vKB[buf]
        k(f'v_mfma_f32_32x32x16_bf16 {vr(S,16)}, {vr(k0,4)}, {vr(vQ,4)}, 0')
        k(f'v_mfma_f32_32x32x8_bf16 {vr(S,16)}, {vr(k1,2)}, {vr(vQ+4,2)}, {vr(S,16)}')
    def pv(self, buf, half, P, first=False):
        self.k(f"v_mfma_f32_32x32x16_bf16 {vr(vO,16)}, {vr(vVB[buf]+4*half,4)}, {vr(P+4*half,4)}, {'0' if first else vr(vO,16)}")
    def attention(self, pf, hook=None):
        k = self.k; c = self.cfg
        npf = len(pf); pts = [0]; NP = c.bnp if self.S else 30
        def sp():
            pts[0] += 1
            while npf - len(pf) < (npf * pts[0] + NP - 1) // NP and pf: pf.pop(0)()
        def ex(Sb, lo, hi):
            for r in range(lo, hi): k(f'v_exp_f32 v{Sb+r}, v{Sb+r}')
        def cv(Sb, half):
            for r in range(8*half, 8*half + 8, 2): k(f'v_cvt_pk_bf16_f32 v{vPP+r//2}, v{Sb+r}, v{Sb+r+1}')
        def qa(buf, Sb): k(f'v_mfma_f32_32x32x16_bf16 {vr(Sb,16)}, {vr(vKB[buf][0],4)}, {vr(vQ,4)}, 0')
        def qb(buf, Sb): k(f'v_mfma_f32_32x32x8_bf16 {vr(Sb,16)}, {vr(vKB[buf][1],2)}, {vr(vQ+4,2)}, {vr(Sb,16)}')
        def rv(t, buf, q): return k(f'ds_read_b64_tr_b16 {vr(vVB[buf]+2*q,2)}, v{aV} offset:{t*512 + q*128}')
        def merge(far, diag, lo=0, hi=16):
            for r in range(lo, hi):
                k(self.dmask(r) + f'\nv_cndmask_b32 v{far+r}, v{far+r}, v{diag+r}, s[{sT2}:{sT3}]')
        first = [True]
        def pv(buf, half, P):
            self.pv(buf, half, P, first[0]); first[0] = False
        nb = [0]
        def mid():
            nb[0] += 1
            self.stamp('at')
            if c.fair:
                P = c.fairB if self.S else c.fairA
                if nb[0] > 1 and P[nb[0]-1] != P[nb[0]-2]: k(f's_setprio {P[nb[0]-1]}')
            if nb[0] == c.bh_at:
                k.wait(vm=self.t_hl)
                k(f'v_mov_b32 v2, {L_CNT}')
                self.t_arr = self.arrive(6, 2, 9)
            if nb[0] == 8 and hook: hook()
        def block(Sb, vb, tv, nq, nk, nv, nq2=None):
            mid(); tk = tvn = None
            ex(Sb, 0, 4)
            if nq: k.wait(lg=nq[2]); qa(nq[0], nq[1])
            if nv: rv(nv[0], nv[1], 0); rv(nv[0], nv[1], 1)
            sp()
            ex(Sb, 4, 8)
            if nb[0] == c.bh_at: self.last_signals(self.t_arr, 9, 4, 8)
            if nq: qb(nq[0], nq[1])
            if nv: rv(nv[0], nv[1], 2); tvn = rv(nv[0], nv[1], 3)
            cv(Sb, 0); ex(Sb, 8, 10)
            k.wait(lg=tv); pv(vb, 0, vPP)
            sp()
            if nq2:
                ex(Sb, 10, 13); k.wait(lg=nq2[2]); qa(nq2[0], nq2[1]); ex(Sb, 13, 16); qb(nq2[0], nq2[1]); cv(Sb, 1)
            else:
                ex(Sb, 10, 16); cv(Sb, 1)
            if nk: tk = self.rdK(*nk)
            sp()
            pv(vb, 1, vPP)
            sp()
            return tk, tvn
        def merged(Sb, bfar, bdiag, tv, nq=None, nk=None):
            mid(); tk = None
            ex(Sb, 0, 4)
            if nq: k.wait(lg=nq[2]); qa(nq[0], nq[1])
            ex(Sb, 4, 8)
            if nq: qb(nq[0], nq[1])
            if nk: tk = self.rdK(*nk)
            for half in range(2):
                cv(Sb, half)
                for j in range(4*half, 4*half + 4): k(f'v_and_b32 v{vM+j}, v{vM+j}, v{vPP+j}')
                for j in range(4*half, 4*half + 4): k(f'v_xor_b32 v{vPP+j}, v{vM+j}, v{vPP+j}')
                k.wait(lg=tv); pv(bdiag, half, vM)
                if half == 0: ex(Sb, 8, 12)
                sp()
                pv(bfar, half, vPP)
                if half == 0: ex(Sb, 12, 16)
            return tk
        k.c('==== attention')
        S = (vS0, vS1); S2 = 212 if c.s5k else vS2
        if c.fair: k(f's_setprio {(c.fairB if self.S else c.fairA)[0]}')
        self.stamp('at')
        if not (self.S and c.blast):
            t0 = self.rdK(0, 0); t8 = self.rdK(8, 1)
            self.rdV(0, 0); tv8 = self.rdV(8, 1)
            k.wait(lg=t0); self.qk(0, S[0])
            k.wait(lg=t8); self.qk(1, S[1])
            tk = self.rdK(1, 0)
            merge(S[0], S[1])
            tk = merged(S[0], 0, 1, tv8, (0, S[1], tk), (2, 1))
            tv = self.rdV(1, 1)
            for t in range(1, 8):
                tk, tv = block(S[t & 1], t & 1, tv, (t & 1, S[(t+1) & 1], tk) if t < 7 else None,
                               (t + 2, (t+1) & 1) if t < 6 else None, (t + 1, (t+1) & 1) if t < 7 else None)
        else:
            t1 = self.rdK(1, 0); tk = self.rdK(2, 1); tv = self.rdV(1, 1)
            k.wait(lg=t1); self.qk(0, S[1])
            for t in range(1, 7):
                tk, tv = block(S[t & 1], t & 1, tv, (t & 1, S[(t+1) & 1], tk), (t + 2 if t < 6 else 0, (t+1) & 1), (t + 1, (t+1) & 1))
            t8 = self.rdK(8, 0)
            _, tv0 = block(S[1], 1, tv, (1, S[0], tk), None, (0, 0), (0, S2, t8))
            merge(S[0], S2, 0, 4)
            tv8 = self.rdV(8, 1)
            merge(S[0], S2, 4, 16)
            merged(S[0], 0, 1, tv8)
        assert not pf
        self.stamp('at')
        tag = 'AB'[self.S]
        k.c('range check of the row sums; true-maximum softmax otherwise')
        k(f'v_mov_b32 v8, {hex(f2u(2.0**-40))}\nv_mov_b32 v9, {hex(f2u(2.0**40))}\nv_med3_f32 v8, v{vO+12}, v8, v9')
        if c.fin:
            k(f'v_mul_f32 v9, 0, v{vO}')
            for r in range(1, 12): k(f'v_fmac_f32 v{8 + (r & 1)}, 0, v{vO+r}')
            k('v_add_f32 v8, v8, v9')
        k(f'v_cmp_eq_f32 vcc, v8, v{vO+12}\ns_cmp_eq_u64 vcc, -1\ns_cbranch_scc1 L_aok{tag}')
        if not c.skip: k(f's_call_b64 s[{sT4}:{sT5}], L_fallback')
        k.label(f'L_aok{tag}')
        if not c.s5k: self.lds_add(7, 1, 2)
        k(f'v_rcp_f32 v8, v{vO+12}')
        for r in range(12): k(f'v_mul_f32 v{vO+r}, v8, v{vO+r}')
        for j in range(6): k(f'v_cvt_pk_bf16_f32 v{vS0+j}, v{vO+2*j}, v{vO+2*j+1}')
        k(f'buffer_store_dwordx4 {vr(vS0,4)}, v{aO0}, s[{S_WS}:{S_WS+3}], s{sQS1} offen {self.cfg.stf}')
        self.t_o = k(f'buffer_store_dwordx2 {vr(vS0+4,2)}, v{aO1}, s[{S_WS}:{S_WS+3}], s{sQS2} offen {self.cfg.stf}')
    def fallback(self, k):
        sB, sXr, sOr = sT0, sHE, sQF
        mx, ninf, a0, a1, a2 = 8, 9, vM, vM + 1, vM + 2
        k.c('==== softmax with the true row maximum: pass 0 finds it, pass 1 accumulates')
        k.label('L_fallback')
        k('s_nop 7\ns_nop 7')
        k(f'v_mov_b32 v{ninf}, 0xff800000\nv_mov_b32 v{mx}, 0xff800000')
        for ps in range(2):
            k(f's_lshl2_add_u32 s{sB}, s{sAI}, s{sGW}\ns_sub_i32 s{sB}, 8, s{sB}\ns_max_i32 s{sB}, s{sB}, 0')
            k.label(f'L_fb{ps}')
            k(f's_lshl_b32 s{sT1}, s{sB}, 9\nv_add_u32 v{a0}, s{sT1}, v{aK0}\nv_add_u32 v{a1}, s{sT1}, v{aK1}\nv_add_u32 v{a2}, s{sT1}, v{aV}')
            self.rdK(0, 0, a0, a1)
            if ps: self.rdV(0, 0, a2)
            k(f's_cmp_eq_u32 s{sB}, 0\ns_cselect_b32 s{sXr}, -1, 0\ns_and_b32 s{sT1}, s{sB}, 7\ns_cselect_b32 s{sOr}, -1, 0\ns_waitcnt lgkmcnt(0)')
            self.qk(0, vS0)
            for r in range(16):
                k(self.dmask(r) + f'''
                s_xor_b32 s{sT2}, s{sT2}, s{sXr}
                s_xor_b32 s{sT3}, s{sT3}, s{sXr}
                s_or_b32 s{sT2}, s{sT2}, s{sOr}
                s_or_b32 s{sT3}, s{sT3}, s{sOr}
                v_cndmask_b32 v{vS0+r}, v{ninf}, v{vS0+r}, s[{sT2}:{sT3}]''')
            if ps == 0:
                for r in range(0, 16, 2): k(f'v_max3_f32 v{mx}, v{mx}, v{vS0+r}, v{vS0+r+1}')
            else:
                for r in range(16): k(f'v_sub_f32 v{vS0+r}, v{vS0+r}, v{mx}')
                for r in range(16): k(f'v_exp_f32 v{vS0+r}, v{vS0+r}')
                for r in range(0, 16, 2): k(f'v_cvt_pk_bf16_f32 v{vPP+r//2}, v{vS0+r}, v{vS0+r+1}')
                self.pv(0, 0, vPP); self.pv(0, 1, vPP)
            k.flush_hazards()
            k(f's_add_u32 s{sB}, s{sB}, 1\ns_cmp_le_u32 s{sB}, 8\ns_cbranch_scc1 L_fb{ps}')
            if ps == 0:
                k(f'v_mov_b32 v{a0}, v{mx}\nv_permlane32_swap_b32 v{mx}, v{a0}\nv_max_f32 v{mx}, v{mx}, v{a0}')
                for r in range(16): k(f'v_mov_b32 v{vO+r}, 0')
        k(f's_setpc_b64 s[{sT4}:{sT5}]')

    def ldW(self, q, kap, regs):
        k = self.k; J = []
        for T in range(5):
            def f(T=T):
                k(f's_add_u32 s{sT0}, s{sWB}, {kap*5120}')
                a, off = (aL16, T*1024) if T < 4 else (aL16b, 0)
                if 'Z' in self.cfg.skip and q >= 8:
                    k(f'ds_read_b128 {vr(regs[T],4)}, v1 offset:{T*1024}'); self.toks[('w', q)] = Tok(0); return
                self.toks[('w', q)] = k(f'buffer_load_dwordx4 {vr(regs[T],4)}, v{a}, s[{S_WS}:{S_WS+3}], s{sT0} offen offset:{off} sc1')
            J.append(('w', regs[T], f))
        return J
    def ldA(self, q, kap, regs, mid=False):
        k = self.k; J = []
        for d in range(4):
            def f(d=d):
                so = sAM + d; off = kap * 1024
                if off > 3500:
                    k(f's_add_u32 s{sT0}, s{so}, {off & ~4095}'); so = sT0; off &= 4095
                if mid:
                    k(f'buffer_load_dwordx2 {vr(regs[d],2)}, v{aL8}, s[{S_WS}:{S_WS+3}], s{so} offen offset:{off} sc1')
                    self.toks[('a', q)] = k(f'buffer_load_dwordx2 {vr(regs[d]+2,2)}, v{aL8}, s[{S_WS}:{S_WS+3}], s{so} offen offset:{off+512} sc1')
                else:
                    self.toks[('a', q)] = k(f'buffer_load_dwordx4 {vr(regs[d],4)}, v{aL16}, s[{S_WS}:{S_WS+3}], s{so} offen offset:{off} sc1')
            J.append(('a', regs[d], f))
        return J
    def stage_w(self):
        k = self.k; J = []
        for q in range(4):
            for T in range(5):
                def f(q=q, T=T):
                    o = T * 1024
                    k(f's_add_u32 m0, s{sSTG}, {q*5120 + o}\ns_add_u32 s{sT0}, s{sWB}, {LATE[q]*5120 + o}')
                    k(f'buffer_load_dwordx4 v{aL16}, s[{S_WS}:{S_WS+3}], s{sT0} offen sc1 lds')
                J.append(f)
        return J
    def wo_round(self, a):
        k = self.k
        def f():
            k(f's_add_u32 m0, s{sAM+1}, {L_WO + a*4096}\ns_add_u32 s{sT0}, s{sAM+2}, {a*4096}')
            if a == 24:
                k(f's_cmp_eq_u32 s{sGW}, 3\ns_cselect_b32 s{sT1}, 1024, 0\ns_sub_u32 s{sT0}, s{sT0}, s{sT1}\ns_sub_u32 m0, m0, s{sT1}')
            self.t_wo = k(f'buffer_load_dwordx4 v{aL16}, s[{S_WS}:{S_WS+3}], s{sT0} offen sc1 lds')
        return f
    def g2_plan(self):
        self.toks = {}
        if self.S and self.cfg.s5k:
            k = self.k; self.wt = {}
            def w(j):
                def f():
                    k(f's_add_u32 s{sT0}, s{sCD}, {j*1024}')
                    self.wt[j] = k(f'buffer_load_dwordx4 {vr(112+4*j,4)}, v{aL16}, s[{S_WS}:{S_WS+3}], s{sT0} offen sc1')
                return f
            self.pf = [('w', 112 + 4*j, w(j)) for j in range(25)]
        elif self.S:
            k = self.k
            self.WS = WS = {a: (112 + 4*(a-1) if a < 15 else 168 + 4*a if a < 17 else 112 + 4*(a-3)) for a in range(1, 23)}
            self.wt = {}
            def w(a):
                def f():
                    k(f's_add_u32 s{sT0}, s{sAM+2}, {a*4096}')
                    self.wt[a] = k(f'buffer_load_dwordx4 {vr(WS[a],4)}, v{aL16}, s[{S_WS}:{S_WS+3}], s{sT0} offen sc1')
                return f
            self.pf = [('w', WS[a], w(a)) for a in sorted(WS, key=WS.get)]
        else:
            self.W = [[112 + 20*(q&3) + 4*T for T in range(5)] if not 4 <= q < 8 else [12 + 4*T for T in range(5)] for q in range(12)]
            self.A = [[192 + 16*(q&3) + 4*m for m in range(4)] for q in range(12)]
            self.pf = sum((self.ldW(q, EARLY[q], self.W[q]) for q in range(4)), []) + sum((self.ldA(q, EARLY[q], self.A[q]) for q in range(4)), [])
    def arrive(self, word, a, d):
        k = self.k
        k(f'v_mov_b32 v{d}, 1\ns_mov_b64 exec, 1')
        t = k(f'ds_add_rtn_u32 v{d}, v{a}, v{d} offset:{4*word}')
        k('s_mov_b64 exec, -1')
        return t
    def last_signals(self, tok, d, val, t):
        self.k.wait(lg=tok)
        self.flag_store(val, t, f'v_readfirstlane_b32 s{sT0}, v{d}\ns_cmp_lg_u32 s{sT0}, 7')
    def lds_add(self, word, val, a=8):
        self.k(f'v_mov_b32 v9, {val}\ns_mov_b64 exec, 1\nds_add_u32 v{a}, v9 offset:{4*word}\ns_mov_b64 exec, -1')
    def kstep(self, wregs, aregs, first, q, lds=None):
        k = self.k
        q = [j[2] if isinstance(j, tuple) else j for j in q]
        for T in range(5):
            if lds: k.wait(lg=lds[0][T])
            for mt in range(4):
                acc = vACC + 4 * (5 * mt + T)
                k(f"v_mfma_f32_16x16x32_bf16 {vr(acc,4)}, {vr(wregs[T],4)}, {vr(aregs[mt],4)}, {'0' if first else vr(acc,4)}")
                if q and (mt % 2 == 1 or len(q) > 10): q.pop(0)()
                if lds and lds[1] is not None and mt == 0 and T > 0: lds[0][T-1] = lds[1](T - 1)
        while q: q.pop(0)()
        if lds and lds[1] is not None: lds[0][4] = lds[1](4)
    def red_write(self, base):
        k = self.k
        for d in range(1, 4):
            k(f'''s_add_u32 s{sT0}, s{sGW}, {d}
            s_and_b32 s{sT0}, s{sT0}, 3
            s_mul_i32 s{sT0}, s{sT0}, 15360
            s_add_u32 s{sT0}, s{sT0}, {base + (d-1)*5120}
            v_add_u32 v8, s{sT0}, v{aL16}''')
            for T in range(5): r = k(f'ds_write_b128 v8, {vr(vACC + 4*(5*d+T),4)} offset:{T*1024}')
        return r
    def red_read(self, base):
        k = self.k
        k(f's_mul_i32 s{sT0}, s{sGW}, 15360\ns_add_u32 s{sT0}, s{sT0}, {base}\nv_add_u32 v8, s{sT0}, v{aL16}')
        toks = []
        for T in range(5):
            for d in range(3): r = k(f'ds_read_b128 {vr(vACC + 20 + 4*(5*d+T),4)}, v8 offset:{d*5120 + T*1024}')
            toks.append(r)
        return toks
    def sum4(self, T):
        k = self.k
        for e in range(4):
            a = vACC + 4*T + e
            k(f'v_add_f32 v{a}, v{a}, v{a+20}\nv_add_f32 v{a+40}, v{a+40}, v{a+60}')
        for e in range(4):
            a = vACC + 4*T + e
            k(f'v_add_f32 v{a}, v{a}, v{a+40}')
    def lds_wait(self, word, thr, slp, a=8):
        k = self.k; self.uid += 1; u = self.uid
        k.label(f'L_lw{u}')
        k(f'ds_read_b32 v9, v{a} offset:{4*word}\ns_waitcnt lgkmcnt(0)\nv_readfirstlane_b32 s{sT0}, v9\ns_cmp_ge_u32 s{sT0}, {thr}\ns_cbranch_scc1 L_lwd{u}')
        if slp: k(f's_sleep {slp}')
        k(f's_branch L_lw{u}')
        k.label(f'L_lwd{u}')
        k.dlg = k.nlg

    def back_half(self):
        k = self.k; c = self.cfg; S = self.S
        toks = self.toks
        k.c('==== epilogue of pass 3 (SwiGLU)')
        pf = [j[2] for j in self.pf]
        if S and c.bprio: k('s_setprio 1')
        J = self.job_gu(0, sHL) + self.job_gu(1, sHL)
        for n, j in enumerate(J):
            j()
            ep = c.epfb if S else c.epf
            if ep and n % ep == ep - 1 and pf: pf.pop(0)()
        self.t_hl = self.t_store
        k.wait(vm=self.t_kv, lg='all')
        k('s_barrier')
        self.stamp()
        if S:
            self.b_pre(); self.bq += pf
            pf = self.stage_w() + ([] if c.s5k else [self.wo_round(0), self.wo_round(23), self.wo_round(24)]) + self.bq[:c.bin]
            self.bq = self.bq[c.bin:]
            self.attention(pf)
            self.stamp()
            self.setBk() if c.s5k else self.setB()
        else:
            st = {}
            def hook():
                if c.g1map:
                    k(f"""v_lshrrev_b32 v10, 5, v{vL}
                    v_lshlrev_b32 v10, 7, v10
                    v_bfe_u32 v11, v{vL}, 4, 1
                    v_lshl_add_u32 v10, v11, 14, v10
                    s_lshl2_add_u32 s{sT0}, s{sPL2}, s{sGW}
                    s_lshl_b32 s{sPL2}, s{sT0}, 8""")
                else:
                    k(f"""v_lshrrev_b32 v10, 4, v{vL}
                    v_lshlrev_b32 v10, 13, v10
                    s_lshr_b32 s{sT0}, s{sPL2}, 3
                    s_lshl1_add_u32 s{sT0}, s{sGW}, s{sT0}
                    s_and_b32 s{sT1}, s{sPL2}, 7
                    s_lshl3_add_u32 s{sT0}, s{sT1}, s{sT0}
                    s_lshl_b32 s{sPL2}, s{sT0}, 7""")
                k(f'v_add_u32 v1, s{sSTG}, v{aL16}')
                if c.hp < 0: self.t_hp = k(f'buffer_load_dword v11, v10, s[{S_WS}:{S_WS+3}], s{sPL2} offen sc1')
            self.attention(pf, hook)
            self.stamp()
            self.setA()

    def setA(self):
        k = self.k; c = self.cfg
        W, A, toks = self.W, self.A, self.toks
        KAP = EARLY + LATE
        k.c('==== f = h @ w_down')
        k(f'v_mov_b32 v8, {L_CNT}')
        def bo():
            k.wait(vm=self.t_o)
            self.t_arr = self.arrive(5, 8, 2)
        if c.fair: k('s_setprio 0')
        pend = []; wq8 = []
        for q in range(5):
            self.stamp('g2')
            if q == c.bo_at: bo()
            if q == c.hp: self.t_hp = k(f'buffer_load_dword v11, v10, s[{S_WS}:{S_WS+3}], s{sPL2} offen sc1')
            if q == c.hc: self.poll_check(self.t_hp, 11, 10, S_WS, f's{sPL2}', 4, role=False, slp=c.slp)
            J = []
            if q >= 1:
                pend += self.ldA(q + 3, KAP[q + 3], A[q + 3])
                if q >= c.hc: J += pend; pend = []
                wq8 += self.ldW(q + 7, KAP[q + 7], W[q + 7])
                J += wq8[:c.wn[q]]; wq8 = wq8[c.wn[q]:]
            if q == c.bo_at: J.insert(min(2, len(J)), lambda: self.last_signals(self.t_arr, 2, 5, 4))
            if q < 4:
                k.wait(vm=toks[('a', q)])
                self.kstep(W[q], A[q], q == 0, J)
            else:
                self.lds_wait(5, 8, 1)
                rd = lambda q: (lambda T: k(f'ds_read_b128 {vr(12+4*T,4)}, v1 offset:{(q-4)*5120 + T*1024}'))
                lt = [rd(4)(T) for T in range(5)]
                carry = J
        self.stamp()
        for q in range(4, 12 - c.nfuse):
            nx = q + 3
            J = carry if q == 4 else (self.ldA(nx, KAP[nx], A[nx]) if nx < 12 else [])
            if q > 4:
                J = wq8[:c.wn[q]] + J; wq8 = wq8[c.wn[q]:]
            assert q < 7 or len(wq8) <= 5 * (10 - q)
            if ('a', q) not in toks:
                for f in J: (f[2] if isinstance(f, tuple) else f)()
                J = []
            if q == 8:
                for d in range(1, 4):
                    J.append(lambda d=d: k(f's_add_u32 s{sT0}, s{sGW}, {d}\ns_and_b32 s{sT0}, s{sT0}, 3\ns_mul_i32 s{sT0}, s{sT0}, 15360\ns_add_u32 s{sT0}, s{sT0}, {L_RF + (d-1)*5120}\nv_add_u32 v{11+d}, s{sT0}, v{aL16}'))
                J.append(lambda: k(f's_mul_i32 s{sT1}, s{sGW}, 15360\ns_add_u32 s{sT1}, s{sT1}, {L_RF}\nv_add_u32 v10, s{sT1}, v{aL16}'))
            if q == 11 - c.nfuse:
                def c1(): self.t_c1 = k('ds_read_b32 v9, v8 offset:4')
                J.append(c1)
            k.wait(vm=max(toks[('a', q)].n, toks[('w', q)].n if q >= 8 else 0))
            self.kstep(W[q], A[q], False, J, lds=(lt, rd(q + 1) if q < 7 else None) if q < 8 else None)
            if q == 7: self.lds_add(1, 0x100)
            if q == c.og: self.lds_add(8, 1)
            if q in (4, 5, 6, 7, 8): self.stamp('g2')
        assert not wq8
        k.wait(lg=self.t_c1)
        k(f'v_readfirstlane_b32 s{sT0}, v9\ns_cmp_ge_u32 s{sT0}, 0x400\ns_cbranch_scc1 L_stg')
        self.lds_wait(1, 0x400, 1)
        k.label('L_stg')
        wq = []; since = 0
        for d in (1, 2, 3, 0):
            for q in range(12 - c.nfuse, 12):
                k.wait(vm=max(toks[('a', q)].n, toks[('w', q)].n))
                for T in range(5):
                    acc = vACC + 4 * (5 * d + T)
                    k(f'v_mfma_f32_16x16x32_bf16 {vr(acc,4)}, {vr(W[q][T],4)}, {vr(A[q][d],4)}, {vr(acc,4)}')
                    since += 1
                    if wq and wq[0][0] != d and since >= c.nfuse: k(wq.pop(0)[1]); since = 0
                    if d and q == 11: wq.append((d, f'ds_write_b128 v{11+d}, {vr(acc,4)} offset:{T*1024}'))
        while wq: k(wq.pop(0)[1])
        assert not wq
        self.stamp()
        self.stamp('g2')
        self.lds_add(0, 1)
        self.lds_wait(0, 4, 0)
        tr = []
        for T in range(5):
            for d in range(3): r = k(f'ds_read_b128 {vr(vACC + 20 + 4*(5*d+T),4)}, v10 offset:{d*5120 + T*1024}')
            tr.append(r)
        if c.hsc: k(f's_mov_b32 s{sT1}, {hex(f2u(-LOG2E))}')
        k(f's_lshl_b32 s{sT0}, s{sGW}, 2\nv_add_u32 v8, s{sT0}, v8')
        for T in range(5):
            k.wait(lg=tr[T]); self.sum4(T)
            a = vACC + 4*T; b = a + 20
            if c.hsc:
                for e in range(4): k(f'v_exp_f32 v{b+e}, v{a+e}')
                for e in range(4): k(f'v_fma_f32 v{b+e}, v{b+e}, s{sT1}, s{sT1}')
            else:
                for e in range(4): k(f'v_mul_f32 v{b+e}, {hex(f2u(-LOG2E))}, v{a+e}')
                for e in range(4): k(f'v_exp_f32 v{b+e}, v{b+e}')
                for e in range(4): k(f'v_add_f32 v{b+e}, 1.0, v{b+e}')
            for e in range(4): k(f'v_rcp_f32 v{b+e}, v{b+e}')
            for e in range(4): k(f'v_mul_f32 v{a+e}, v{a+e}, v{b+e}')
            k(f'ds_write_b128 v10, {vr(a,4)} offset:{T*1024}')
            if c.gcnt == 2 and T in (1, 3): self.lds_add(12, 1)
        if c.gcnt:
            self.lds_add(12, 1)
            self.stamp('g2')
        else:
            k.wait(lg='all')
            self.stamp('g2')
            k('s_barrier')
        self.stamp(); self.stamp('tl')
        if 'tl' in c.grps: k('s_waitcnt lgkmcnt(0)')

    def b_pre(self):
        k = self.k; c = self.cfg
        XR, F99 = (244 if c.s5k else 208), 240
        k(f"""v_lshrrev_b32 v8, 2, v{vL}
        v_mul_u32_u24 v8, 1280, v8
        v_and_b32 v9, 3, v{vL}
        v_lshl_add_u32 v1, v9, 4, v8
        v_lshl_add_u32 v10, v9, 3, v8
        s_lshl2_add_u32 s{sT0}, s{sR2}, s{sGW}
        s_mul_i32 s{sT0}, s{sT0}, {16*1280}
        s_mul_i32 s{sT1}, s{sC2}, 160
        s_add_u32 s{sT0}, s{sT0}, s{sT1}
        s_bitcmp1_b32 s{sC2}, 0
        s_cselect_b32 s{sT1}, 32, 0
        s_cselect_b32 s{sT2}, 0, 128
        s_add_u32 s{sXO}, s{sT0}, s{sT1}
        s_add_u32 s{sWO_}, s{sT0}, s{sT2}""")
        def f99():
            k(f's_add_u32 s{sT0}, s{sCD}, {99*1024}')
            self.wt['x'] = k(f'buffer_load_dwordx4 {vr(F99,4)}, v{aL16}, s[{S_WS}:{S_WS+3}], s{sT0} offen sc1')
        self.bq = [lambda: k(f'buffer_load_dwordx4 {vr(XR,4)}, v1, s[{S_X}:{S_X+3}], s{sXO} offen'),
                   lambda: k(f'buffer_load_dwordx4 {vr(XR+4,4)}, v1, s[{S_X}:{S_X+3}], s{sXO} offen offset:64'),
                   lambda: self.wt.__setitem__('x', k(f'buffer_load_dwordx2 {vr(XR+8,2)}, v10, s[{S_X}:{S_X+3}], s{sWO_} offen'))] + ([] if c.s5k else [f99])
    def setBk(self):
        k = self.k; c = self.cfg; wt = self.wt; toks = self.toks
        XR = 244; L_RS = L_KV
        W = [[112 + 20*q + 4*T for T in range(5)] for q in range(5)]
        sl = [212 + 4*j for j in range(8)] + [12 + 4*j for j in range(5)] + W[0] + W[1][:2]
        A = [sl[4*q:4*q+4] for q in range(5)]
        self.stamp('g2')
        k(f'v_mov_b32 v8, {L_CNT}')
        for f in self.bq: f()
        self.stamp('g2')
        k(f"""v_lshlrev_b32 v{aL8}, 3, v{vL}
        v_lshrrev_b32 v2, 5, v{vL}
        v_bfe_u32 v11, v{vL}, 4, 1
        v_lshl_add_u32 v2, v11, 7, v2
        s_lshl2_add_u32 s{sT0}, s{sPL2}, s{sGW}
        s_lshl_b32 s{sT0}, s{sT0}, 1
        v_add_lshl_u32 v2, v2, s{sT0}, 7""")
        k.wait(vm=wt['x'])
        k(f'v_and_b32 v9, 15, v{vL}\nv_lshrrev_b32 v7, 4, v{vL}\nv_lshl_add_u32 v9, v9, 2, v7\nv_lshlrev_b32 v9, 2, v9')
        for e in range(10): k(f'ds_bpermute_b32 v{XR+e}, v9, v{XR+e}')
        k(f'v_and_b32 v7, 3, v{vL}\nv_lshlrev_b32 v7, 6, v7\nv_and_or_b32 v7, v{vL}, 60, v7')
        k.wait(vm=self.t_o)
        t = self.arrive(5, 8, vACC); self.last_signals(t, vACC, 5, vACC + 2)
        k(f's_setprio {c.bprio2}')
        for _ in range(4): self.stamp('g2')
        self.lds_wait(8, 4, 2)
        tp = k(f'buffer_load_dword v11, v2, s[{S_WS}:{S_WS+3}], 0 offen sc1')
        self.stamp('g2')
        self.poll_check(tp, 11, 2, S_WS, '0', 5, role=False, slp=c.slp)
        self.stamp(); self.stamp('g2')
        k(f's_setprio {c.bp5}')
        LD = sum((self.ldA(q, q, A[q], mid=(q == 4)) for q in range(5)), [])
        for f in LD[:13]: f[2]()
        if c.bp4 is not None: k(f's_setprio {c.bp4}')
        ad = (2, 4, 5)
        def addr(d): return lambda: k(f's_add_u32 s{sT0}, s{sGW}, {d}\ns_and_b32 s{sT0}, s{sT0}, 3\ns_mul_i32 s{sT0}, s{sT0}, 15360\ns_add_u32 s{sT0}, s{sT0}, {L_RS + (d-1)*5120}\nv_add_u32 v{ad[d-1]}, s{sT0}, v{aL16}')
        self.stamp('g2')
        for q in range(5 - c.nfb):
            k.wait(vm=toks[('a', q)])
            self.kstep(W[q], A[q], q == 0, {0: [addr(1), addr(2), addr(3)], 1: LD[13:18], 2: LD[18:]}.get(q, []))
        self.stamp('g2')
        wq = []; since = 0; XU = W[2][0]
        un = [f'v_lshlrev_b32 v{XU+2*e}, 16, v{XR+e}\nv_and_b32 v{XU+2*e+1}, 0xffff0000, v{XR+e}' for e in range(10)]
        for d in (1, 2, 3, 0):
            for q in range(5 - c.nfb, 5):
                k.wait(vm=toks[('a', q)])
                for T in range(5):
                    acc = vACC + 4 * (5 * d + T)
                    k(f'v_mfma_f32_16x16x32_bf16 {vr(acc,4)}, {vr(W[q][T],4)}, {vr(A[q][d],4)}, {vr(acc,4)}')
                    since += 1
                    if wq and wq[0][0] != d and since >= c.nfb: k(wq.pop(0)[1]); since = 0
                    if d and q == 4: wq.append((d, f'ds_write_b128 v{ad[d-1]}, {vr(acc,4)} offset:{T*1024}'))
                    if un: k(un.pop(0))
        while wq: k(wq.pop(0)[1])
        self.stamp(); self.stamp('g2')
        self.lds_add(2, 1)
        k(f's_mul_i32 s{sT1}, s{sGW}, 15360\nv_add_u32 v11, s{sT1}, v{aL16}\nv_add_u32 v2, {L_RS}, v11')
        self.lds_wait(2, 4, 0)
        tr = []
        for T in range(5):
            for d in range(3): r = k(f'ds_read_b128 {vr(vACC + 20 + 4*(5*d+T),4)}, v2 offset:{d*5120 + T*1024}')
            tr.append(r)
        for T in range(5):
            k.wait(lg=tr[T]); self.sum4(T)
        k(f's_lshl_b32 s{sT0}, s{sGW}, 2\nv_add_u32 v8, s{sT0}, v8')
        self.lds_wait(12, 1, 0)
        self.stamp(); self.stamp('g2'); self.stamp('tl')
        GR = W[3][0]; PK = W[4][0]
        tr = [k(f'ds_read_b128 {vr(GR+4*T,4)}, v11 offset:{L_RF + T*1024}') for T in range(5)]
        tb = []
        for T in range(5):
            k.wait(lg=tr[T])
            for e in range(4): k(f'v_fmac_f32 v{XU+4*T+e}, v{vACC+4*T+e}, v{GR+4*T+e}')
            for e in range(2): k(f'v_cvt_pk_bf16_f32 v{PK+2*T+e}, v{XU+4*T+2*e}, v{XU+4*T+2*e+1}')
            for e in range(2): r = k(f'ds_bpermute_b32 v{XR+2*T+e}, v7, v{PK+2*T+e}')
            tb.append(r)
        k.wait(lg=tb[1]); k(f'buffer_store_dwordx4 {vr(XR,4)}, v1, s[{S_OUT}:{S_OUT+3}], s{sXO} offen {c.outf}')
        k.wait(lg=tb[3]); k(f'buffer_store_dwordx4 {vr(XR+4,4)}, v1, s[{S_OUT}:{S_OUT+3}], s{sXO} offen offset:64 {c.outf}')
        k.wait(lg=tb[4]); k(f'buffer_store_dwordx2 {vr(XR+8,2)}, v10, s[{S_OUT}:{S_OUT+3}], s{sWO_} offen {c.outf}')
    def setB(self):
        k = self.k; c = self.cfg
        OF = [112 + 4*q for q in range(20)]
        slot = [52 + 4*j for j in range(15)] + [192 + 4*j for j in range(12)] + [244, 248, 252]; NS = 30
        F99 = 240; XU = 12; XR = 208; WS = self.WS; wt = self.wt
        k.c('==== s = o @ wo, then out = x + s * silu(f)')
        self.stamp('g2')
        k(f'v_mov_b32 v8, {L_CNT}')
        for f in self.bq: f()
        self.stamp('g2')
        k(f"""v_lshlrev_b32 v{aL8}, 3, v{vL}
        v_lshrrev_b32 v2, 3, v{vL}
        v_bfe_u32 v11, v{vL}, 2, 1
        v_lshl_add_u32 v2, v11, 7, v2
        s_lshl_b32 s{sT0}, s{sPL2}, 3
        v_add_lshl_u32 v2, v2, s{sT0}, 7
        v_add_u32 v4, {L_WO}, v{aL16}
        v_add_u32 v5, s{sAM+1}, v4
        v_add_u32 v11, 4096, v5""")
        k.wait(vm=wt['x'])
        k(f'v_and_b32 v9, 15, v{vL}\nv_lshrrev_b32 v7, 4, v{vL}\nv_lshl_add_u32 v9, v9, 2, v7\nv_lshlrev_b32 v9, 2, v9')
        for e in range(10): r = k(f'ds_bpermute_b32 v{vACC+e}, v9, v{XR+e}')
        k(f'v_and_b32 v7, 3, v{vL}\nv_lshlrev_b32 v7, 6, v7\nv_and_or_b32 v7, v{vL}, 60, v7')
        k.wait(lg=r)
        for e in range(10):
            k(f'v_lshlrev_b32 v{XU+2*e}, 16, v{vACC+e}\nv_and_b32 v{XU+2*e+1}, 0xffff0000, v{vACC+e}')
        def oarr():
            k.wait(vm=self.t_o)
            self.t_arr = self.arrive(5, 8, vACC)
        if c.boa == 0: oarr(); self.last_signals(self.t_arr, vACC, 5, vACC + 2)
        self.lds_wait(7, 8, 1)
        k(f's_setprio {c.bprio2}')
        self.stamp('g2')
        for a in range(1, 17):
            if a == c.boa: oarr()
            k.wait(vm=wt[a])
            k(f'ds_write_b128 v11, {vr(WS[a],4)} offset:{(a-1)*4096}')
            if a == c.boa: self.last_signals(self.t_arr, vACC, 5, vACC + 2)
        self.lds_add(2, 1)
        self.stamp('g2')
        self.lds_wait(2, 4, 1)
        lt = {}
        def rd(j):
            p = j - 68 if 68 <= j < 92 else j
            lt[j] = k(f'ds_read_b128 {vr(slot[j % NS],4)}, v{4 + (p >> 6)} offset:{(p & 63)*1024}')
        for j in range(NS): rd(j)
        self.lds_add(4, 1)
        self.stamp('g2')
        self.lds_wait(4, 4, 1)
        for a in range(17, 23):
            k.wait(vm=wt[a])
            k(f'ds_write_b128 v5, {vr(WS[a],4)} offset:{(a-17)*4096}')
        self.lds_add(3, 1)
        k(f'v_add_u32 v5, 65536, v4')
        self.stamp('g2')
        if 'Z' in c.skip:
            for a in list(range(8, 17)) * 2 + [9, 10]: self.wo_round(a)()
        self.lds_wait(8, 4, 2)
        tp = k(f'buffer_load_dword v11, v2, s[{S_WS}:{S_WS+3}], 0 offen sc1')
        self.stamp('g2')
        self.poll_check(tp, 11, 2, S_WS, '0', 5, role=False, slp=c.slp)
        self.stamp()
        self.stamp('g2')
        ot = []
        def old(q):
            so = sAM + 3
            if q % 4 == 0: k(f's_add_u32 s{so}, s{sAM}, {q*1024}')
            off = (q & 3) * 1024
            if q % 5 == 4:
                k(f'buffer_load_dwordx2 {vr(OF[q],2)}, v{aL8}, s[{S_WS}:{S_WS+3}], s{so} offen offset:{off} sc1')
                ot.append(k(f'buffer_load_dwordx2 {vr(OF[q]+2,2)}, v{aL8}, s[{S_WS}:{S_WS+3}], s{so} offen offset:{off+512} sc1'))
            else:
                ot.append(k(f'buffer_load_dwordx4 {vr(OF[q],4)}, v{aL16}, s[{S_WS}:{S_WS+3}], s{so} offen offset:{off} sc1'))
        k(f's_setprio {c.bp5}')
        for q in range(c.oa): old(q)
        if c.bp4 is not None: k(f's_setprio {c.bp4}')
        for j in range(100):
            q, T = divmod(j, 5)
            if j in (0, 50, 99): self.stamp('g2')
            if j + NS - 1 == 68: self.lds_wait(3, 4, 0)
            if j == 80: k(f's_mul_i32 s{sT1}, s{sGW}, 15360\ns_add_u32 s{sT1}, s{sT1}, {L_RF}\nv_add_u32 v11, s{sT1}, v{aL16}\ns_lshl_b32 s{sT0}, s{sGW}, 2\nv_add_u32 v8, s{sT0}, v8')
            if j >= 1 and j + NS - 1 < 99: rd(j + NS - 1)
            k.wait(vm=ot[q], lg=lt[min(j + 4, 98)] if T == 0 else None)
            acc = vACC + 4 * T
            k(f"v_mfma_f32_16x16x32_bf16 {vr(acc,4)}, {vr(slot[j % NS] if j < 99 else F99,4)}, {vr(OF[q],4)}, {'0' if q == 0 else vr(acc,4)}")
            if T == 4 and len(ot) < 20: old(len(ot))
        self.stamp()
        if c.gcnt: self.lds_wait(12, 1, 0)
        else: k('s_barrier')
        self.stamp()
        self.stamp('g2'); self.stamp('tl')
        GR = OF[0]; tb = {}
        ST = {1: f'buffer_store_dwordx4 {vr(XR,4)}, v1, s[{S_OUT}:{S_OUT+3}], s{sXO} offen {c.outf}',
              3: f'buffer_store_dwordx4 {vr(XR+4,4)}, v1, s[{S_OUT}:{S_OUT+3}], s{sXO} offen offset:64 {c.outf}',
              4: f'buffer_store_dwordx2 {vr(XR+8,2)}, v10, s[{S_OUT}:{S_OUT+3}], s{sWO_} offen {c.outf}'}
        for n, grp in enumerate(((0, 1), (2, 3), (4,)) if c.gcnt == 2 else ((0, 1, 2, 3, 4),)):
            if n:
                self.lds_wait(12, n + 1, 0)
                k(ST.pop(grp[0] - 1))
            tr = {T: k(f'ds_read_b128 {vr(GR+4*T,4)}, v11 offset:{T*1024}') for T in grp}
            for T in grp:
                k.wait(lg=tr[T])
                for e in range(4): k(f'v_fmac_f32 v{XU+4*T+e}, v{vACC+4*T+e}, v{GR+4*T+e}')
                for e in range(2): k(f'v_cvt_pk_bf16_f32 v{XR+12+2*T+e}, v{XU+4*T+2*e}, v{XU+4*T+2*e+1}')
                for e in range(2): tb[T] = k(f'ds_bpermute_b32 v{XR+2*T+e}, v7, v{XR+12+2*T+e}')
        for T in sorted(ST):
            k.wait(lg=tb[T]); k(ST[T])

    def finish(self):
        k = self.k; c = self.cfg
        if c.stamps:
            self.stamp('tl')
            if 'tl' in c.grps: k('s_waitcnt lgkmcnt(0)')
            k('s_waitcnt vmcnt(0)')
            self.stamp('fin')
            k(f's_waitcnt lgkmcnt(0)\ns_mov_b32 s{sST0 + self.nst - 1}, s{sSTT}')
            k(f's_lshl3_add_u32 s{sT0}, s2, s{sW}\ns_lshl_b32 s{sT0}, s{sT0}, 6\ns_add_u32 s{sT0}, s{sT0}, {STAMP}\nv_mov_b32 v1, 0\ns_mov_b64 exec, 1')
            if self.nst < 14: k(f'v_mov_b32 v2, s101\nbuffer_store_dword v2, v1, s[{S_WS}:{S_WS+3}], s{sT0} offen offset:60')
            for n in range(self.nst):
                k(f'v_mov_b32 v2, s{sST0+n}\nbuffer_store_dword v2, v1, s[{S_WS}:{S_WS+3}], s{sT0} offen offset:{4*n}')
        k('s_endpgm')

    def build(self):
        k = self.k
        self.prologue()
        pre = k.snap(); nst = self.nst
        st = []
        self.S = 1; self.stok = {}
        gb = self.phase0B(); next(gb)
        mid = (k.snap(), self.nst, self.stok)
        self.S = 0; k.restore(pre); self.nst = nst; self.stok = {}
        k.label('L_setA')
        self.phase0A()
        k.flush_hazards()
        k('s_bitcmp1_b32 s2, 6\ns_cbranch_scc1 L_m01\ns_branch L_m00' if self.cfg.dup else 's_branch L_mainA')
        st.append((k.snap(), self.nst, self.stok))
        self.S = 1; k.restore(mid[0]); self.nst, self.stok = mid[1:]
        for _ in gb: pass
        k.flush_hazards()
        st.append((k.snap(), self.nst, self.stok))
        for S in (() if self.cfg.dup else (1, 0)):
            self.S = S
            snap, self.nst, self.stok = st[S]; k.restore(snap)
            if not S: k.label('L_mainA')
            self.gemm1()
            self.back_half()
            self.finish()
        if self.cfg.dup:
            import re
            cs0 = dict(self.cs_tok)
            k(f's_bitcmp1_b32 s2, 6\ns_cbranch_scc1 L_m11')
            for S, typ in ((1, 0), (0, 0), (1, 1), (0, 1)):
                self.S = S; self.ftyp = typ
                snap, self.nst, stok = st[S]; k.restore(snap); self.stok = dict(stok); self.cs_tok = dict(cs0)
                k.label(f'L_m{S}{typ}')
                n0 = len(k.out)
                self.gemm1(); self.back_half(); self.finish()
                for t in self.tail:
                    k.win = []; t(k)
                self.tail = []
                own = {l[:-1] for l in k.out[n0:] if l.endswith(':')}
                k.out[n0:] = [re.sub(r'L_\w+', lambda m: m.group(0) + f'_{typ}' if m.group(0) in own else m.group(0), l) for l in k.out[n0:]]
        self.tail.append(self.fallback)
        for t in self.tail:
            k.win = []
            t(k)
        k.label('L_end')
        k('s_endpgm')
        sk = self.cfg.skip
        if 'm' in sk: k.out = [l for l in k.out if 'v_mfma' not in l]
        if 'M' in sk: k.out = [l for l in k.out if 'v_mfma_f32_16x16x32' not in l]
        if 'e' in sk: k.out = [l for l in k.out if 'v_exp_f32' not in l and 'v_rcp_f32' not in l]
        if 'S' in sk: k.out = [l for l in k.out if not ('buffer_store_dwordx4' in l and 'sc1' in l)]
        if 'L' in sk: k.out = [l for l in k.out if not ('buffer_load_dwordx4' in l and 'sc1' in l)]
        import re
        def drop(pat): k.out = [l for l in k.out if not re.search(pat, l)]
        if 'X' in sk: drop(r'buffer_load_dwordx4 v85, s\[4:7\]')
        if 'U' in sk: drop(r'buffer_load_dwordx4 v5, s\[64:67\]')
        if 'V' in sk: drop(r'buffer_load_dwordx4 v5, s\[16:19\]')
        if 'K' in sk: drop(r'buffer_load_dwordx4 v28, s\[20:23\]')
        if 'G' in sk: drop(r'buffer_load_dwordx4 v6, s\[20:23\], s58 offen sc1 lds')
        if 'H' in sk: drop(r'buffer_load_dwordx4 v\[(19[2-9]|20[0-7]|22[4-9]|23[0-9]):\d+\], v6, s\[20:23\], s\d+ offen offset')
        if 'O' in sk: drop(r'buffer_load_dwordx4 v\[\d+:\d+\], v6, s\[20:23\], s43 offen')
        if 'R' in sk: drop(r'ds_read_b64_tr_b16 v\[(34|38|42|46):')
        if 'r' in sk:
            drop(r'ds_read_b64_tr_b16 v\[(36|38|44|46):\d+\], v[1-3] offset:(?!1[0-9]{5})')
            k.out = [l.replace('v[36:39], v[', 'v[40:43], v[').replace('v[44:47], v[', 'v[32:35], v[') if 'v_mfma_f32_32x32x16' in l and 'v[96:111], v' not in l else l for l in k.out]
        if 'Y' in sk: drop(r'^\s*(ds_|s_barrier|s_branch L_lw|s_sleep|v_(exp|rcp|cvt_pk|mul_f32|fma_f32|fmac|add_f32|permlane|dot2c)|s_waitcnt lgkmcnt\([1-9])')
        if 'W' in sk: drop(r's_waitcnt vmcnt\([1-9]')
        if 'D' in sk: k.out = [l for l in k.out if not ('buffer_load_dwordx4' in l and 'lds' in l and 'sc1' not in l)]
        return self.wrap()

    def wrap(self):
        hdr = ''.join(open('recurrent_scan__sliding_block__swiglu_ffn__prompt.s.ref').readlines()[:11]) if self.cfg.header else ''
        return f'''{hdr}; @launch grid=(256,1,1) block=(512,1,1) lds={LDS_BYTES}
.amdgcn_target "amdgcn-amd-amdhsa--gfx950"{DOC}.text
.p2align {self.cfg.al}
{self.cfg.pad}.globl {KN}
.p2align 8
.type {KN},@function
{KN}:
{self.k.text()}.section .rodata,"a"
.p2align 6
.amdhsa_kernel {KN}
  .amdhsa_next_free_vgpr 256
  .amdhsa_next_free_sgpr 102
  .amdhsa_accum_offset 256
  .amdhsa_group_segment_fixed_size 0
  .amdhsa_kernarg_size 80
  .amdhsa_user_sgpr_count 2
  .amdhsa_user_sgpr_kernarg_segment_ptr 1
  .amdhsa_system_sgpr_workgroup_id_x 1
.end_amdhsa_kernel
'''
Cfg.clrwg = 0; Cfg.rrA = (0, 2, 4, 6); Cfg.rrB = (1, 3, 5, 7); Cfg.rot = None; Cfg.wn = (0,5,0,3,3,3,3,3,0,0,0,0); Cfg.dup = 0; Cfg.code = (); Cfg.cnd = 0; Cfg.cnt = 0; Cfg.hsc = 0; Cfg.s5k = 0; Cfg.nfb = 2; Cfg.sm = 'q'; Cfg.kA = 'e'; Cfg.kB = 'p'; Cfg.hA = 'q'; Cfg.hB = 'q'; Cfg.dA = 'qe'; Cfg.dB = 'qp'; Cfg.c1 = 21; Cfg.c3 = 23; Cfg.ab = 9; Cfg.aq = 20; Cfg.c2b = 9; Cfg.wts = (0.5,1,2,2); Cfg.tilt = 0; Cfg.gainb = 1.0; Cfg.m16 = 1; Cfg.gain = 1.0; Cfg.ec = 19; Cfg.g0 = 16; Cfg.hs = 49152; Cfg.pkm = 0; Cfg.fin = 1; Cfg.pka = 2; Cfg.pkn = 1; Cfg.slot0 = (0,0,0,0,1,1,1,1); Cfg.slot2 = (2,)*8; Cfg.slot1 = (5,6)*4; Cfg.u1 = 2; Cfg.u2 = 5; Cfg.bpos = (0,1,1); Cfg.sb = 2; Cfg.jit = None; Cfg.al = 12; Cfg.pad = ''; Cfg.pknt = 'nt'; Cfg.gcnt = 1; Cfg.idle = None; Cfg.og = 7; Cfg.boa = 0; Cfg.fair = 1; Cfg.fairA = (3,3,2,2,1,1,0,0); Cfg.fairB = (3,3,3,2,2,1,1,1); Cfg.ed = 4; Cfg.eap = 1; Cfg.eb = 14; Cfg.hoistb = 2; Cfg.epfb = 0; Cfg.bp5 = 0; Cfg.nfuse = 2; Cfg.bin = 18; Cfg.bn1 = 99; Cfg.bn2 = 0; Cfg.g1map = 0; Cfg.stf = 'sc1'; Cfg.xp = 3; Cfg.rv = 2; Cfg.bp4 = 0; Cfg.bp3 = 99; Cfg.bh_chk = 5; Cfg.touch = 0; Cfg.tstep = 1; Cfg.bnp = 30; Cfg.op = 12; Cfg.oa = 14; Cfg.bprio2 = 0; Cfg.blast = 1; Cfg.hp = 0; Cfg.hc = 2; Cfg.alast = 0; Cfg.nslot = 2; Cfg.dp1 = 2; Cfg.dp2 = 3; Cfg.dpx = 9; Cfg.bprio = 1; Cfg.w0early = 1; Cfg.dm1 = 2; Cfg.dm2 = 0; Cfg.skip = ''; Cfg.bh_skew = 0; Cfg.bdefer = 10; Cfg.ogate = 0; Cfg.outf = ''

def make(**kw):
    c = Cfg()
    for a, b in kw.items():
        assert hasattr(c, a), a
        setattr(c, a, b)
    g0 = Gen(c); g0.build()
    g = Gen(c); g.known = g0.counts
    return g.build(), g

if __name__ == '__main__':
    s, g = make(stamps=True)
    open('k.s', 'w').write(s)
    print(g.k.count, 'nops', g.k.nops)
```

```python
import sys, math, struct
from emit import *

KN = 'recurrent_scan__sliding_block__swiglu_ffn__prompt_kernel'

FL   = 0x0
STATS= 0x10000
WEXT = 0x20000
STAMP= 0x60000
QKV  = 0x100000
HIM  = 0x900000
OIM  = 0x1000000
W2P  = 0x1400000
WS_BYTES = 0x1800000
OOB  = 0x7f000000

L_RING = 0
L_X    = 65536
CH     = 6208
L_KV   = 65536
L_ONES = L_KV + 10 * CH + 64
L_EXT  = 65536 + 68608
L_PACK = L_EXT + 10240
LDS_BYTES = 163840
L_CNT = 162816; L_RF = 0; L_WO = 61440
assert L_EXT == L_WO + 71 * 1024
assert 10 * CH + 64 + 6400 <= 68608 and LDS_BYTES <= 163840

S_X, S_Q, S_G, S_U, S_WS, S_DBG, S_WD, S_WO, S_OUT, S_TMP = 4, 8, 12, 16, 20, 24, 28, 32, 36, 40
S_U0, S_U1 = 36, 64
sI, sG, sW, sGW, sXO, sWO_, sM0X, sM0W = 44, 45, 46, 47, 48, 49, 50, 51
sFLAG, sPOLL, sQF, sHE, sHL, sQS1, sQS2 = 52, 53, 54, 55, 56, 57, 3
sT0, sT1, sT2, sT3, sT4, sT5 = 58, 59, 60, 61, 62, 63
sPKS, sPKL, sPKD0, sPKD1, sPKD2 = 51, 24, 25, 26, 27
sAI, sAJ, sR2, sC2, sCNT = 69, 70, 71, 72, 73
sCO, sCD, sC2O, sC3O = 74, 75, 76, 77
sWB, sPL2, sKVS, sKVM, sSTG = 78, 79, 81, 82, 83
sSTR, sADV, sC1, sSLOT, sRL = 68, 84, 85, 53, 82
sAM = 40
sSTT = 86; sST0 = 88

vL = 0
vWR0, vWR1, vWR2 = 1, 2, 3
vEB = 3; vVAR = 10; vCC = 16
vDA, vDB = 4, 5
aL16, aL16b = 6, 7
vEX, vP = 8, 9
vST = 10
vMEAN = 12
vRS, vC1, vHO, vQO = 16, 17, 18, 19
vSW = 28
vT = 20
vFR = 32
vA0 = 48
vA1 = 80
vX = 96
vSEL = vA1 + 8; vCSA = vA1 + 12; vCSO = vA1 + 7; vCSG = vA1 + 6; vCSB = vX + 120
aK0, aK1, aV, aO0, aO1, aL8 = 86, 87, 3, 4, 5, 3
vQ = 80; vM = 88; vS0 = 48; vS1 = 64; vS2 = 192; vO = 96; vPP = 32
vKB = ((20, 24), (28, 26)); vVB = (40, 12)
vACC = 32
EARLY = (0, 1, 2, 3); LATE = (4, 5, 6, 7, 8, 9, 10, 11)

LOG2E = 1.4426950408889634
def f2u(x): return struct.unpack('<I', struct.pack('<f', x))[0]

DOC = '\n; separate straight-line streams.  Hand-offs between workgroups use write-through stores into d_ws, one\n;  GEMM1   : 128 x 320 tile of x @ [wqkv | w_gate | w_up], x held in registers, weights through an LDS ring;\n;            LayerNorm is applied exactly as rstd * (x @ W - mean * colsum(W)); SwiGLU in the epilogue\n;  attn    : 128 queries x 2 heads, window 256.  exp2 of the raw scores is kept only when every row sum lies\n'
class Cfg:
    header = False
    stamps = False; clock = 's_memtime'; grps = ['main', 'fin']
    spin = 16000
    g2map = 1
    fa = 4; pa = 6
    cb = 1; cbd = 2
    pk = 4; pkd = 2
    c2 = 4
    fb = 11; pb = 14
    fq = 18; pq = 21
    w0early = 0
    hoist_hi = 22
    hoist = 3
    kvn = 5
    bh_at = 3
    epf = 12
    bo_at = 3
    slp = 8; slp0 = 16
    prio = 0

class Gen:
    def __init__(self, cfg):
        self.cfg = cfg; self.k = K(); self.tail = []; self.nst = 0; self.uid = 0
        self.known = {}; self.counts = {}

    def jitter(self):
        k = self.k; self.uid += 1; u = self.uid
        seed, mask, thr = self.cfg.jit
        h = (seed * 2654435761 + u * 40503) & 0x7fffffff | 1
        k(f'''s_lshl3_add_u32 s100, s2, s{sW}
        s_add_u32 s100, s100, {u}
        s_mul_i32 s100, s100, {h}
        s_lshr_b32 s101, s100, 13
        s_xor_b32 s100, s100, s101
        s_mul_i32 s100, s100, 0x2c1b3c6d
        s_lshr_b32 s101, s100, 24
        s_cmp_ge_u32 s101, {thr}
        s_cbranch_scc1 L_jd{u}
        s_bfe_u32 s100, s100, 0x80008
        s_and_b32 s100, s100, {mask}''')
        k.label(f'L_jl{u}')
        k(f's_sleep 1\ns_sub_u32 s100, s100, 1\ns_cbranch_scc0 L_jl{u}')
        k.label(f'L_jd{u}')
    def stamp(self, grp='main'):
        if self.cfg.jit and grp in ('p0', 'p1', 'p3', 'at', 'g2', 'jj'): self.jitter()
        if not self.cfg.stamps or grp not in self.cfg.grps: return
        k = self.k
        if self.nst > 0: k(f's_mov_b32 s{sST0 + self.nst - 1}, s{sSTT}')
        k(f"{self.cfg.clock if self.cfg.clock != 'dual' else ('s_memrealtime' if self.S else 's_memtime')} s[{sSTT}:{sSTT+1}]")
        self.nst += 1
        assert self.nst <= 14
    def poll_check(self, tok, vd, voff, srd, soff, thr, role=True, wide=False, slp=6):
        k = self.k; self.uid += 1; u = self.uid
        if 'n' in self.cfg.skip: return
        if role:
            k(f's_cmp_lg_u32 s{sGW}, 0\ns_cbranch_scc1 L_pok{u}\ns_waitcnt vmcnt({k.nvm - tok})')
        else: k.wait(vm=tok)
        mn = f'v_min3_u32 v{vd}, v{vd}, v{vd+1}, v{vd+2}\nv_min_u32 v{vd}, v{vd}, v{vd+3}\n' if wide else ''
        ld = f'buffer_load_dwordx4 v[{vd}:{vd+3}]' if wide else f'buffer_load_dword v{vd}'
        k(f'{mn}v_cmp_le_u32 vcc, {thr}, v{vd}\ns_cmp_eq_u64 vcc, -1\ns_cbranch_scc0 L_pslow{u}')
        k.label(f'L_pok{u}')
        def slow(k):
            k.label(f'L_pslow{u}')
            k(f's_mov_b32 s{sCNT}, 0')
            k.label(f'L_ploop{u}')
            if self.cfg.stamps: k(f's_add_u32 s101, s101, {1 << (5 * (thr if srd == S_WS else 0))}')
            k(f's_sleep {slp}\n{ld}, v{voff}, s[{srd}:{srd+3}], {soff} offen sc1\ns_waitcnt vmcnt(0)')
            k(f'{mn}v_cmp_le_u32 vcc, {thr}, v{vd}\ns_cmp_eq_u64 vcc, -1\ns_cbranch_scc1 L_pok{u}')
            k(f's_add_u32 s{sCNT}, s{sCNT}, 1\ns_cmp_lt_u32 s{sCNT}, {self.cfg.spin}\ns_cbranch_scc1 L_ploop{u}\ns_branch L_pok{u}')
        self.tail.append(slow)
    def flag_store(self, val, t=vT+10, test=None, srd=S_WS, who=None):
        k = self.k; self.uid += 1; u = self.uid
        k(test or f's_cmp_lg_u32 s{sGW}, 0')
        k(f's_cbranch_scc1 L_nf{u}\nv_mov_b32 v{t}, {val}\nv_mov_b32 v{t+1}, 0\ns_mov_b64 exec, 1')
        k(f"buffer_store_dword v{t}, v{t+1}, s[{srd}:{srd+3}], {f's{sT3}' if srd == S_DBG else f's{sFLAG}'} offen sc1")
        k.nvm -= 1
        if who and self.cfg.cnd: k.cond.append((k.nvm, 1, lambda nw: who, -1))
        k('s_mov_b64 exec, -1')
        k.label(f'L_nf{u}')

    def prologue(self):
        k = self.k; c = self.cfg
        k('s_cmp_ge_u32 s2, 256\ns_cbranch_scc1 L_end')
        k(f"""s_load_dwordx2 s[{S_X}:{S_X+1}], s[0:1], 0
        s_bitcmp1_b32 s2, {7 if self.cfg.g1map else 6}
        s_cselect_b32 s{sT0}, 8, 32
        s_cselect_b32 s{sT1}, 8, 40
        s_load_dwordx2 s[{S_U0}:{S_U0+1}], s[0:1], s{sT0}
        s_load_dwordx2 s[{S_U1}:{S_U1+1}], s[0:1], s{sT1}
        s_load_dwordx2 s[{S_Q}:{S_Q+1}], s[0:1], 8
        s_load_dwordx2 s[{S_WS}:{S_WS+1}], s[0:1], 72
        s_load_dwordx2 s[{S_DBG}:{S_DBG+1}], s[0:1], 64""")
        if c.stamps: k(f"{c.clock if c.clock != 'dual' else 's_memtime'} s[{sSTT}:{sSTT+1}]\ns_mov_b32 s101, 0"); self.nst = 1
        k(f'v_lshrrev_b32 v1, 6, v0\nv_and_b32 v{vL}, 63, v0\nv_readfirstlane_b32 s{sW}, v1')
        self.prologue2(); self.prologue3()
        k(f's_cmp_lt_u32 s{sW}, 4\ns_cbranch_scc1 L_setA')

    def prologue2(self):
        k = self.k; t = vT
        if self.cfg.g1map:
            k(f"""s_bfe_u32 s{sI}, s2, 0x40003
            s_and_b32 s{sT1}, s2, 7
            s_lshr_b32 s{sT0}, s2, 7
            s_lshl1_add_u32 s{sG}, s{sT1}, s{sT0}
            s_lshl_b32 s{sT2}, s2, 7
            s_bfe_u32 s{sT1}, s2, 0x20001""")
        else:
            k(f"""s_and_b32 s{sI}, s2, 1
            s_bfe_u32 s{sT0}, s2, 0x30003
            s_lshl3_add_u32 s{sI}, s{sI}, s{sT0}
            s_bfe_u32 s{sT1}, s2, 0x20001
            s_lshr_b32 s{sT0}, s2, 6
            s_lshl2_add_u32 s{sG}, s{sT1}, s{sT0}""")
        k(f"""s_and_b32 s{sGW}, s{sW}, 3
        s_mov_b32 s{S_X+2}, {2048*1280}
        s_mov_b32 s{S_X+3}, 0x20000
        s_mul_i32 s{sC3O}, s{sT1}, 768
        s_and_b32 s{sT2}, s{sT2 if self.cfg.g1map else 2}, 128
        s_add_u32 s{sT2}, s{sT2}, s{sC3O}
        s_and_b32 s{sT3}, s{sG}, 14
        s_lshl_b32 s{sT3}, s{sT3}, 7
        s_movk_i32 s{sT4}, 3072
        s_bitcmp1_b32 s2, {7 if self.cfg.g1map else 6}
        s_cselect_b32 s{sC1}, s{sT3}, s{sT2}
        s_cselect_b32 s{sSTR}, 3840, s{sT4}
        s_cselect_b32 s{sT5}, {'128, 0' if self.cfg.m16 else '0xa0, 32'}
        s_mul_i32 s{S_U0+2}, s{sSTR}, 640
        s_mov_b32 s{S_U0+3}, 0x20000
        s_mov_b32 s{S_U1+2}, s{S_U0+2}
        s_mov_b32 s{S_U1+3}, 0x20000""")
        k(f"""v_lshrrev_b32 v{t}, 3, v{vL}
        v_and_b32 v{t+1}, 7, v{vL}
        v_lshlrev_b32 v{t+1}, 4, v{t+1}""")
    def prologue3(self):
        k = self.k; t = vT
        k(f"""s_lshl_b32 s{sM0X}, s{sW}, 11
        s_lshl3_add_u32 s{sXO}, s{sI}, s{sW}
        s_mul_i32 s{sXO}, s{sXO}, {16*1280}
        v_and_b32 v{t+3}, 48, v{vL}
        v_xor_b32 v{t+3}, v{t+1}, v{t+3}
        v_mul_u32_u24 v{vA1+4}, 1280, v{t}
        v_add_u32 v{vA1+4}, v{vA1+4}, v{t+3}
        v_xor_b32 v{vA1+5}, 64, v{vA1+4}
        v_add_u32 v{vA1+5}, {10240-1024}, v{vA1+5}""")
        if self.cfg.rot:
            a, b, m = self.cfg.rot
            k(f's_and_b32 s{sCNT}, s{sI}, 7\ns_mul_i32 s{sM0W}, s{sCNT}, {a}\ns_and_b32 s{sCNT}, s{sG}, 3\ns_mul_i32 s{sCNT}, s{sCNT}, {b}\ns_add_u32 s{sM0W}, s{sM0W}, s{sCNT}')
            k(f's_mul_i32 s{sCNT}, s{sM0W}, {-(-65536 // m)}\ns_lshr_b32 s{sCNT}, s{sCNT}, 16\ns_mul_i32 s{sCNT}, s{sCNT}, {m}\ns_sub_u32 s{sM0W}, s{sM0W}, s{sCNT}')
            if m == 5: k(f's_lshl_b32 s{sM0W}, s{sM0W}, 1')
            k(f's_lshl_b32 s{sCNT}, s{sM0W}, 7\ns_add_u32 s{sXO}, s{sXO}, s{sCNT}')
    def prologue4(self):
        k = self.k; t = vT
        k(f"""s_mul_i32 s{sWO_}, s{sW}, s{sSTR}
        s_lshl3_add_u32 s{sWO_}, s{sWO_}, s{sC1}
        s_lshl_b32 s{sADV}, s{sSTR}, 6
        v_and_b32 v{t+2}, 16, v{vL}
        v_lshlrev_b32 v{t+2}, 2, v{t+2}
        {f's_lshl_b32 s{sCNT}, s{sW}, 5' if self.cfg.m16 else ''}
        {f'v_and_or_b32 v{t+2}, s{sCNT}, 32, v{t+2}' if self.cfg.m16 else ''}
        v_xor_b32 v{vSW}, v{t+1}, v{t+2}
        v_mad_u32_u24 v{vDA}, v{t}, s{sSTR}, v{vSW}
        v_xor_b32 v{vDB}, s{sT5}, v{vDA}""")
        if self.cfg.rot: k(f's_mul_i32 s{sCNT}, s{sM0W}, s{sADV}\ns_add_u32 s{sWO_}, s{sWO_}, s{sCNT}')

    def late_srds(self):
        k = self.k
        L = ((S_Q, 8, 640*3840), (S_G, 32, 640*3072), (S_U, 40, 640*3072)) + (((S_WD, 48, 1536*1280), (S_WO, 16, 640*1280)) if self.S else ())
        for d, off, size in L[1:]: k(f's_load_dwordx2 s[{d}:{d+1}], s[0:1], {off}')
        if self.S: k(f's_load_dwordx2 s[{S_TMP}:{S_TMP+1}], s[0:1], 56')
        for d, off, size in L: k(f's_mov_b32 s{d+2}, {size}\ns_mov_b32 s{d+3}, 0x20000')
        k(f's_cmp_lt_u32 s{sG}, 14\ns_cselect_b32 s{S_Q+2}, s{S_Q+2}, 0')

    def dma_stage(self, n):
        k = self.k; slot = (n & 3) * 16384
        steps = []
        if n < 10:
            def x():
                k(f's_add_u32 m0, s{sM0X}, {L_X + slot}')
                k(f'buffer_load_dwordx4 v{vA1+4}, s[{S_X}:{S_X+3}], s{sXO} offen lds')
                k(f'buffer_load_dwordx4 v{vA1+5}, s[{S_X}:{S_X+3}], s{sXO} offen offset:1024 lds')
                k(f's_add_u32 s{sXO}, s{sXO}, 128')
                if self.cfg.rot: k(f's_cmp_eq_u32 s{sM0W}, {9 - n}\ns_cselect_b32 s{sCNT}, 1280, 0\ns_sub_u32 s{sXO}, s{sXO}, s{sCNT}')
            steps.append(x)
        def w():
            if n == 10:
                k(f"""v_lshrrev_b32 v{vDA}, 3, v{vL}
                v_mul_u32_u24 v{vDA}, 3840, v{vDA}
                v_add_u32 v{vDA}, v{vDA}, v{vSW}
                v_add_u32 v{vDB}, {(64 if self.cfg.m16 else 8)*3840 - 1024}, v{vDA}
                s_mul_i32 s{sWO_}, s{sW}, {(8 if self.cfg.m16 else 16)*3840}
                s_add_u32 s{sWO_}, s{sWO_}, s{sC2O}""")
            if n == 15:
                k(f"""v_lshrrev_b32 v{vDA}, 3, v{vL}
                v_mul_u32_u24 v{vDA}, 3072, v{vDA}
                v_add_u32 v{vDA}, v{vDA}, v{vSW}
                v_xor_b32 v{vDB}, {0 if self.cfg.m16 else 32}, v{vDA}
                s_mul_i32 s{sWO_}, s{sW}, {8*3072}
                s_add_u32 s{sWO_}, s{sWO_}, s{sC3O}""")
            k(f's_add_u32 m0, s{sM0X}, {L_RING + slot}')
            if 10 <= n < 15:
                k(f'buffer_load_dwordx4 v{vDA}, s[{S_Q}:{S_Q+3}], s{sWO_} offen lds')
                self.stok[n] = k(f'buffer_load_dwordx4 v{vDB}, s[{S_Q}:{S_Q+3}], s{sWO_} offen offset:1024 lds')
                k(f's_add_u32 s{sWO_}, s{sWO_}, {128*3840}')
            else:
                s0, s1, adv = (S_U0, S_U1, f's{sADV}') if n < 10 else (S_G, S_U, 64*3072)
                k(f'buffer_load_dwordx4 v{vDA}, s[{s0}:{s0+3}], s{sWO_} offen lds')
                k(f's_add_u32 m0, s{sM0X}, {L_RING + slot + 1024}')
                self.stok[n] = k(f'buffer_load_dwordx4 v{vDB}, s[{s1}:{s1+3}], s{sWO_} offen lds')
                k(f's_add_u32 s{sWO_}, s{sWO_}, {adv}')
                if self.cfg.rot and n < 10: k(f's_cmp_eq_u32 s{sM0W}, {9 - n}\ns_cselect_b32 s{sCNT}, s{S_U0+2}, 0\ns_sub_u32 s{sWO_}, s{sWO_}, s{sCNT}')
        steps.append(w)
        return steps

    def cs_sel(self):
        k = self.k; sel = vSEL; t = vT + 10
        k(f"""v_and_b32 v{t}, 1, v{vL}
        v_lshlrev_b32 v{t}, 4, v{t}
        s_movk_i32 s{sT3}, 0x3f80
        v_lshlrev_b32 v{t}, v{t}, s{sT3}""")
        for d in range(4):
            m = hex((3 << (2*d)) * 0x10001)
            k(f's_mov_b32 vcc_lo, {m}\ns_mov_b32 vcc_hi, {m}\nv_cndmask_b32 v{sel+d}, 0, v{t}, vcc')
        k(f"""v_and_b32 v{vCSO}, 7, v{vL}
        v_lshlrev_b32 v{vCSO}, 4, v{vCSO}
        v_bfe_u32 v{t}, v{vL}, 4, 1
        v_lshl_add_u32 v{vCSO}, v{t}, 3, v{vCSO}
        v_and_b32 v{t}, 8, v{vL}
        v_lshl_add_u32 v{vCSO}, v{t}, 4, v{vCSO}
        v_and_b32 v{t}, 32, v{vL}
        v_lshl_add_u32 v{vCSO}, v{t}, 24, v{vCSO}""")
    def cs_run(self, buf, acc):
        k = self.k; h = buf
        for j in range(10):
            k(f"v_mfma_f32_16x16x32_bf16 {vr(acc,4)}, {vr(vSEL,4)}, {vr(buf+4*j,4)}, {'0' if j == 0 else vr(acc,4)}")
        for e in range(4): k(f'v_add_f32_dpp v{h+4+e}, v{acc+e}, v{acc+e} row_ror:8 row_mask:0xf bank_mask:0xf')
        for e in range(2): k(f'v_cvt_pk_bf16_f32 v{acc+e}, v{h+4+2*e}, v{h+5+2*e}')
        for e in range(2): k(f'v_lshlrev_b32 v{h+2*e}, 16, v{acc+e}\nv_and_b32 v{h+2*e+1}, 0xffff0000, v{acc+e}')
        for e in range(4): k(f'v_sub_f32 v{h+e}, v{h+4+e}, v{h+e}')
        k(f's_mov_b32 vcc_lo, 0xff00ff00\ns_mov_b32 vcc_hi, 0xff00ff00')
        for e in range(2): k(f'v_cvt_pk_bf16_f32 v{acc+2+e}, v{h+2*e}, v{h+2*e+1}')
        for e in range(2): k(f'v_cndmask_b32 v{acc+e}, v{acc+e}, v{acc+2+e}, vcc')

    def cs_loads(self, p):
        k = self.k
        if p not in self.slots: return
        k(f's_cmp_lg_u32 s{sSLOT}, {p}\ns_cbranch_scc1 L_ncb{p}')
        for j in range(10):
            k(f'buffer_load_dwordx4 {vr(vCSB+4*j,4)}, v{vCSG}, s[{S_TMP}:{S_TMP+3}], s{sCO} offen')
            if j < 9: k(f's_add_u32 s{sCO}, s{sCO}, s{sRL}')
        k.nvm -= 10
        if k.nvm > 0: k.cond.append((k.nvm, 10, self.slot_test, p))
        self.cs_tok[p] = Tok(k.nvm + 1)
        k.label(f'L_ncb{p}')
    def cs_use(self, lo, hi, name):
        k = self.k
        def f():
            k.wait(vm=self.cs_tok[hi])
            k(f's_sub_u32 s{sT0}, s{sSLOT}, {lo}\ns_cmp_le_u32 s{sT0}, {hi - lo}\ns_cbranch_scc0 L_cu{lo}')
            self.cs_run(vCSB, vCSA)
            k(f'buffer_store_dwordx2 {vr(vCSA,2)}, v{vCSO}, s[{S_WS}:{S_WS+3}], s{sCD} offen sc1')
            k.nvm -= 1; setattr(self, name, Tok(k.nvm + 1))
            if self.cfg.cnd: k.cond.append((k.nvm, 1, lambda nw: f's_sub_u32 s{sCNT}, s{sSLOT}, {lo}\ns_cmp_le_u32 s{sCNT}, {hi - lo}', -1))
            k.flush_hazards()
            k.label(f'L_cu{lo}')
        return f
    def phase0A(self):
        k = self.k; X = vX; t = vT; c = self.cfg
        self.slots = set(c.slot0) | set(c.slot1) | set(c.slot2); self.cs_tok = {}
        assert min(c.slot1) > max(max(c.slot0), max(c.slot2)) and min(c.slot1) >= 1 and min(c.slot2) >= 1
        tab = lambda L: hex(sum(v << (4*j) for j, v in enumerate(L)))
        k(f"""s_lshr_b32 s{sT0}, s{sI}, 1
        s_and_b32 s{sT2}, s{sT5}, 128
        s_bitcmp1_b32 s{sI}, 0
        s_cselect_b32 s{sT2}, s{sT2}, 0
        s_add_u32 s{sT2}, s{sT2}, s{sC1}
        s_mul_i32 s{sT1}, s{sT0}, 80
        s_mul_i32 s{sT1}, s{sT1}, s{sSTR}
        s_add_u32 s{sCO}, s{sT1}, s{sT2}
        s_lshl_b32 s{sRL}, s{sSTR}, 3
        v_mad_u32_u24 v{vCSG}, v{t}, s{sSTR}, v{t+1}
        s_mov_b32 s{S_TMP+2}, s{S_U0+2}
        s_mov_b32 s{S_TMP+3}, 0x20000
        s_mov_b32 s{S_WS+2}, {WS_BYTES}
        s_mov_b32 s{S_WS+3}, 0x20000
        s_lshl_b32 s{sT1}, s{sT0}, 2
        s_lshr_b32 s{sSLOT}, {tab(c.slot0)}, s{sT1}
        s_and_b32 s{sSLOT}, s{sSLOT}, 15
        s_cmp_eq_u32 s{sW}, 0
        s_cselect_b32 s{sSLOT}, s{sSLOT}, 15
        s_bitcmp1_b32 s{sI}, 0
        s_waitcnt lgkmcnt(0)
        s_cselect_b64 s[{S_TMP}:{S_TMP+1}], s[{S_U1}:{S_U1+1}], s[{S_U0}:{S_U0+1}]""")
        assert k.nvm == 0
        self.cs_loads(0)
        clr = f's_and_b32 s{sT4}, s2, 0xe7\ns_lshl3_add_u32 s{sT4}, s{sT4}, s{sW}\ns_cmp_lg_u32 s{sT4}, {(7 if c.g1map else c.clrwg)*8 + 3}'
        k(clr + '\ns_cbranch_scc1 L_noclr')
        k(f'v_lshlrev_b32 v{X+60}, 7, v{vL}\nv_mov_b32 v{X+64}, 0\ns_lshl_b32 s{sT4}, s{sI}, 13')
        k(f'buffer_store_dword v{X+64}, v{X+60}, s[{S_WS}:{S_WS+3}], s{sT4} offen sc1')
        k.label('L_noclr')
        k(f's_cmp_lg_u32 s{sW}, 1\ns_cbranch_scc1 L_nopf\ns_getpc_b64 s[{sT2}:{sT3}]')
        k.label('L_pc')
        k(f's_lshr_b32 s{sT4}, s2, 3\ns_mul_i32 s{sT4}, s{sT4}, {3072 if c.dup else 2048}\nv_lshl_add_u32 v{X+60}, v{vL}, 7, s{sT4}\nv_min_u32 v{X+60}, L_end-L_pc, v{X+60}')
        k(f's_mov_b64 exec, {0xffffff if c.dup else 0xffff}\nglobal_load_dword v{X+61}, v{X+60}, s[{sT2}:{sT3}]\ns_mov_b64 exec, -1')
        k.label('L_nopf')
        k.nvm = 0
        self.stamp('p0')
        d0 = self.dma_stage(0)
        d0[0]()
        self.prologue4()
        d0[1]()
        self.late_srds()
        k(f's_mov_b32 s{S_DBG+2}, 256\ns_mov_b32 s{S_DBG+3}, 0x20000')
        self.consts1()
        k(f"""s_mul_i32 s{sT1}, s{sG}, 10240
        s_add_u32 s{sT1}, s{sT1}, {WEXT}
        s_lshl_b32 s{sT3}, s{sT0}, 8
        s_add_u32 s{sPL2}, s{sT1}, s{sT3}
        s_and_b32 s{sT4}, s{sT3}, {0 if c.m16 else 1024}
        s_add_u32 s{sT1}, s{sPL2}, s{sT4}
        s_and_b32 s{sT3}, s{sI}, 1
        s_lshl_b32 s{sT3}, s{sT3}, {11 if c.m16 else 10}
        s_add_u32 s{sCD}, s{sT1}, s{sT3}
        s_cmp_eq_u32 s{sW}, 2
        s_cselect_b32 s{sCD}, s{sPL2}, s{sCD}
        s_lshl_b32 s{sT1}, s{sW}, 12
        s_add_u32 s{sCD}, s{sCD}, s{sT1}
        s_sub_u32 s{sT1}, s{sW}, 1
        s_cmp_le_u32 s{sT1}, 1
        s_waitcnt lgkmcnt(0)
        s_cbranch_scc0 L_nol
        s_bitcmp1_b32 s{sI}, 0
        s_cselect_b64 s[{S_TMP}:{S_TMP+1}], s[{S_U}:{S_U+1}], s[{S_G}:{S_G+1}]
        s_cselect_b32 s{sT4}, -1, {tab(c.slot2)}
        s_cmp_lt_u32 s{sG}, 14
        s_cselect_b32 s{sT4}, s{sT4}, -1
        s_movk_i32 s{sT3}, 3072
        s_cmp_eq_u32 s{sW}, 2
        s_cselect_b64 s[{S_TMP}:{S_TMP+1}], s[{S_Q}:{S_Q+1}], s[{S_TMP}:{S_TMP+1}]
        s_cselect_b32 s{sT4}, s{sT4}, {tab(c.slot1)}
        s_cselect_b32 s{sT3}, 3840, s{sT3}
        s_cselect_b32 s{sT2}, s{sC2O}, s{sC3O}
        s_lshl_b32 s{sT1}, s{sT0}, 2
        s_lshr_b32 s{sSLOT}, s{sT4}, s{sT1}
        s_and_b32 s{sSLOT}, s{sSLOT}, 15
        s_mul_i32 s{S_TMP+2}, s{sT3}, 640
        s_mul_i32 s{sT1}, s{sT0}, 80
        s_mul_i32 s{sT1}, s{sT1}, s{sT3}
        s_add_u32 s{sCO}, s{sT1}, s{sT2}
        s_lshl_b32 s{sRL}, s{sT3}, 3
        v_mad_u32_u24 v{vCSG}, v{t}, s{sT3}, v{t+1}""")
        k.label('L_nol')
        self.cs_loads(1)
        self.cs_sel()
        if c.m16: k(f's_and_b32 s{sT3}, s{sI}, 2\ns_and_b32 s{sT4}, s{sI}, 4\ns_lshl2_add_u32 s{sT3}, s{sT3}, s{sT4}\ns_lshl_b32 s{sT3}, s{sT3}, 3\nv_xor_b32 v{vCSO}, s{sT3}, v{vCSO}')
        else: k(f's_and_b32 s{sT3}, s{sI}, 3\ns_lshl_b32 s{sT3}, s{sT3}, 5\nv_xor_b32 v{vCSO}, s{sT3}, v{vCSO}')
        self.consts0()
        self.stamp('p0')
        for f in self.dma_stage(1): f()
        self.stamp('p0')
        self.cs_loads(2)
        k(f's_lshl_b32 s{sT3}, s{sI}, 6\n' + clr + f'\ns_cbranch_scc1 L_nodbg\ns_waitcnt vmcnt({k.nvm})')
        self.flag_store(1, X+58, 's_cmp_lg_u32 0, 0', S_DBG)
        k.label('L_nodbg')
        self.stamp('p0')

    def phase0B(self):
        k = self.k; X = vCSB; c = self.cfg
        k(f"""s_lshl4_add_u32 s{sT0}, s{sI}, s{sG}
        s_lshl2_add_u32 s{sT0}, s{sT0}, s{sGW}
        s_mul_i32 s{sCD}, s{sT0}, 2560
        v_lshrrev_b32 v{X+22}, 5, v{vL}
        v_mul_u32_u24 v{X+21}, 1280, v{X+22}
        v_and_b32 v{X+23}, 31, v{vL}
        v_lshl_add_u32 v{X+20}, v{X+23}, 4, v{X+21}
        v_lshl_add_u32 v{X+21}, v{X+23}, 3, v{X+21}""")
        k('s_waitcnt lgkmcnt(0)')
        LD = (f'buffer_load_dwordx4 v[{X}:{X+3}], v{X+20}, s[{S_X}:{S_X+3}], s{sCD} offen',
              f'buffer_load_dwordx4 v[{X+4}:{X+7}], v{X+20}, s[{S_X}:{S_X+3}], s{sCD} offen offset:512',
              f'buffer_load_dwordx2 v[{X+8}:{X+9}], v{X+21}, s[{S_X}:{S_X+3}], s{sCD} offen offset:1024')
        def ld(p):
            for j in range(3):
                if c.bpos[j] == p: self.t_sl = k(LD[j])
        ld(0)
        self.stamp('p0')
        d0 = self.dma_stage(0)
        d0[0]()
        self.prologue4()
        d0[1]()
        k.flush_hazards()
        k('s_branch L_setB')
        yield
        k.label('L_setB')
        self.late_srds()
        k(f's_mov_b32 s{S_WS+2}, {WS_BYTES}\ns_mov_b32 s{S_WS+3}, 0x20000')
        k(f's_lshl_b32 s{sCO}, s{sT0}, 4\ns_add_u32 s{sCO}, s{sCO}, {STATS}\nv_lshlrev_b32 v{X+22}, 3, v{X+22}')
        self.consts0(); self.consts1()
        self.pack_setup()
        k('s_waitcnt lgkmcnt(0)')
        ld(1)
        self.stamp('p0')
        for f in self.dma_stage(1): f()
        self.stamp('p0')
        ld(2)
        self.stamp('p0')
    def stats(self):
        k = self.k; X = vCSB
        a, b, m = X + 10, X + 11, X + 12
        k(f'v_mov_b32 v{a}, 0\nv_mov_b32 v{b}, 0\ns_mov_b32 s{sT2}, 0x3f803f80')
        k.wait(vm=self.t_sl)
        for d in range(10): k(f'v_dot2c_f32_bf16 v{a}, s{sT2}, v{X+d}\nv_dot2c_f32_bf16 v{b}, v{X+d}, v{X+d}')
        k('s_nop 2')
        for ctl in ('quad_perm:[1,0,3,2]', 'quad_perm:[2,3,0,1]', 'row_half_mirror', 'row_mirror'):
            for r in (a, b): k(f'v_add_f32_dpp v{r}, v{r}, v{r} {ctl} row_mask:0xf bank_mask:0xf')
        k(f"""v_mov_b32 v{X}, v{a}
        v_mov_b32 v{X+1}, v{b}
        v_permlane16_swap_b32 v{a}, v{X}
        v_permlane16_swap_b32 v{b}, v{X+1}
        v_add_f32 v{a}, v{a}, v{X}
        v_add_f32 v{b}, v{b}, v{X+1}
        v_mul_f32 v{m}, {hex(f2u(-1.0/640))}, v{a}
        v_mul_f32 v{b}, {hex(f2u(1.0/640))}, v{b}
        v_fma_f32 v{b}, -v{m}, v{m}, v{b}
        v_max_f32 v{b}, 0, v{b}
        v_add_f32 v{m+1}, {hex(f2u(1e-5))}, v{b}
        v_cvt_pk_bf16_f32 v{m}, v{m}, v{m}
        s_mov_b32 exec_lo, 1
        s_mov_b32 exec_hi, 1""")
        self.t_a = k(f'buffer_store_dwordx2 v[{m}:{m+1}], v{X+22}, s[{S_WS}:{S_WS+3}], s{sCO} offen sc1')
        k('s_mov_b64 exec, -1')

    def consts0(self):
        k = self.k; t = vT; S = self.S
        if self.cfg.m16:
            k(f'''v_lshrrev_b32 v{t+4}, 4, v{vL}
            v_bfe_u32 v{t}, v{vL}, 2, 2
            v_and_b32 v{t+1}, 3, v{vL}
            v_lshlrev_b32 v{t+1}, 3, v{t+1}
            v_lshl_add_u32 v{t+1}, v{t}, 7, v{t+1}
            v_and_b32 v{t+2}, 1, v{t+4}
            v_and_or_b32 v{t+2}, v{t}, 2, v{t+2}
            v_lshl_add_u32 v{t+1}, v{t+2}, 5, v{t+1}
            v_lshl_add_u32 v{vWR0}, v{t+4}, 11, v{t+1}''')
            if S: k(f'v_xor_b32 v{vWR0}, 64, v{vWR0}')
            k(f'''v_xor_b32 v{vWR1}, 32, v{vWR0}
            v_mul_u32_u24 v{vEB}, 1536, v{t+4}
            v_sub_u32 v{vEB}, {L_EXT}, v{vEB}
            v_and_b32 v{t}, 15, v{vL}
            v_bfe_u32 v{t+1}, v{vL}, 1, 3
            v_xor_b32 v{t+1}, v{t+1}, v{t+4}
            v_lshlrev_b32 v{t+1}, 4, v{t+1}
            v_lshl_add_u32 v{t+1}, v{t}, 7, v{t+1}
            s_lshl_b32 s{sT0}, s{sGW}, 12
            s_add_u32 s{sT0}, s{sT0}, {L_X}
            v_add_u32 v{vA1}, s{sT0}, v{t+1}
            v_xor_b32 v{vA1+1}, 64, v{vA1}''')
            return
        k(f'''v_bfe_u32 v{t}, v{vL}, 2, 2
        v_and_b32 v{t+1}, 1, v{vL}
        v_lshlrev_b32 v{t+1}, 4, v{t+1}
        v_and_b32 v{t+2}, 2, v{vL}
        v_lshl_add_u32 v{t+1}, v{t+2}, 2, v{t+1}
        v_bfe_u32 v{t+2}, v{vL}, 4, 1
        v_lshrrev_b32 v{t+4}, 5, v{vL}
        v_lshl_add_u32 v{t+1}, v{t}, 7, v{t+1}
        v_and_b32 v{t+3}, 2, v{t}
        v_or_b32 v{t+3}, v{t+3}, v{t+2}
        v_lshl_add_u32 v{t+1}, v{t+3}, 5, v{t+1}
        v_lshrrev_b32 v{t+3}, 4, v{vL}
        v_lshl_add_u32 v{vWR0}, v{t+3}, 10, v{t+1}
        v_lshl_add_u32 v{vWR2}, v{t+4}, 10, v{t+1}''')
        if S: k(f'v_xor_b32 v{vWR0}, 64, v{vWR0}\nv_xor_b32 v{vWR2}, 64, v{vWR2}')
        k(f'''v_xor_b32 v{vWR1}, 32, v{vWR0}
        v_and_b32 v{t}, 31, v{vL}
        v_bfe_u32 v{t+1}, v{vL}, 1, 3
        v_xor_b32 v{t+1}, v{t+1}, v{t+4}
        v_lshlrev_b32 v{t+1}, 4, v{t+1}
        v_lshl_add_u32 v{t+1}, v{t}, 7, v{t+1}
        s_lshl_b32 s{sT0}, s{sGW}, 12
        s_add_u32 s{sT0}, s{sT0}, {L_X}
        v_add_u32 v{vA1}, s{sT0}, v{t+1}
        v_xor_b32 v{vA1+1}, 32, v{vA1}
        v_xor_b32 v{vA1+2}, 64, v{vA1}
        v_xor_b32 v{vA1+3}, 0x60, v{vA1}''')
    def consts1(self):
        k = self.k; t = vT + 9; S = self.S; c = self.cfg
        if c.m16:
            k(f'''v_lshrrev_b32 v{t}, 5, v{vL}
            v_bfe_u32 v{t+1}, v{vL}, 4, 1
            v_lshl_add_u32 v{t}, v{t+1}, 1, v{t}
            v_and_b32 v{t+1}, 15, v{vL}
            v_lshlrev_b32 v{t+1}, 4, v{t+1}
            v_lshl_add_u32 v{vQO}, v{t}, 11, v{t+1}
            v_lshl_add_u32 v{vHO}, v{t}, 8, v{t+1}
            v_lshlrev_b32 v{aL16}, 4, v{vL}
            v_add_u32 v{aL16b}, 4096, v{aL16}''')
        else: k(f'''v_and_b32 v{t}, 31, v{vL}
        v_lshrrev_b32 v{t+2}, 5, v{vL}
        v_lshlrev_b32 v{vQO}, 11, v{t+2}
        v_lshl_add_u32 v{vQO}, v{t}, 4, v{vQO}
        v_bfe_u32 v{t+1}, v{vL}, 4, 1
        v_mul_u32_u24 v{vHO}, {c.hs}, v{t+1}
        v_lshl_add_u32 v{vHO}, v{t+2}, 8, v{vHO}
        v_and_b32 v{t+1}, 15, v{vL}
        v_lshl_add_u32 v{vHO}, v{t+1}, 4, v{vHO}
        v_lshlrev_b32 v{aL16}, 4, v{vL}
        v_add_u32 v{aL16b}, 4096, v{aL16}''')
        k(f"""s_add_u32 s{sC2O}, s{sG}, 16
        s_lshl_b32 s{sC2O}, s{sC2O}, 7
        s_and_b32 s{sT1}, s{sG}, 3
        s_lshl_b32 s{sT1}, s{sT1}, 7
        s_add_u32 s{sC3O}, s{sC3O}, s{sT1}
        s_add_u32 s{sC3O}, s{sC3O}, 256
        s_lshl2_add_u32 s{sT1}, s{sI}, s{sGW}
        s_mul_i32 s{sT1}, s{sT1}, {2*self.cfg.hs}
        s_add_u32 s{sT1}, s{sT1}, {HIM + S*1024}
        s_lshl4_add_u32 s{sHE}, s{sC1}, s{sT1}
        s_lshl4_add_u32 s{sHL}, s{sC3O}, s{sT1}
        s_mul_i32 s{sT2}, s{sI}, {240*2048}
        s_lshl_b32 s{sT1}, s{sGW}, 9
        s_add_u32 s{sT2}, s{sT2}, s{sT1}
        s_add_u32 s{sT2}, s{sT2}, {QKV + S*8192}
        s_lshl_b32 s{sT1}, s{sC1}, 7
        s_add_u32 s{sQS1}, s{sT2}, s{sT1}
        s_lshl_b32 s{sT1}, s{sC2O}, 7
        s_add_u32 s{sQS2}, s{sT2}, s{sT1}
        s_cmp_lt_u32 s{sG}, 14
        s_cselect_b32 s{sQS2}, s{sQS2}, {OOB}
        s_cmp_lt_u32 s{sG}, 10
        s_mov_b32 s{sQF}, {hex(f2u(-1.0 / LOG2E if c.m16 else 1.0))}
        s_cselect_b32 s{sQF}, {hex(f2u((-1.0 if c.m16 else LOG2E) / math.sqrt(20.0)))}, s{sQF}
        s_lshl_b32 s{sFLAG}, s2, 7""")
    def consts2(self):
        k = self.k; S = self.S; c = self.cfg
        k(f'''s_bfe_u32 s{sAI}, s2, 0x40003
        s_and_b32 s{sT0}, s2, 7
        s_lshr_b32 s{sT1}, s2, 7
        s_lshl1_add_u32 s{sAJ}, s{sT0}, s{sT1}''')
        if c.g2map == 0:
            k(f's_bfe_u32 s{sT1}, s2, 0x20003\ns_lshl2_add_u32 s{sR2}, s{sT0}, s{sT1}\ns_lshr_b32 s{sC2}, s2, 5')
        else:
            k(f'''s_lshr_b32 s{sT1}, s{sT0}, 1
            s_bfe_u32 s{sT2}, s2, 0x30003
            s_lshl3_add_u32 s{sR2}, s{sT1}, s{sT2}
            s_and_b32 s{sT1}, s2, 1
            s_lshr_b32 s{sT2}, s2, 6
            s_lshl2_add_u32 s{sC2}, s{sT1}, s{sT2}''')
        k(f'''s_mul_i32 s{sT0}, s{sC2}, 68
        s_mul_i32 s{sT1}, s{sGW}, 12
        s_add_u32 s{sT1}, s{sT0}, s{sT1}
        s_mul_i32 s{sWB}, s{sT1}, 5120
        s_add_u32 s{sWB}, s{sWB}, {W2P}
        s_mul_i32 s{sSTG}, s{sGW}, 20480
        s_cmp_eq_u32 s{sGW}, 3
        s_cselect_b32 s{sSTG}, {L_EXT}, s{sSTG}
        s_lshr_b32 s{sPL2}, s{sR2}, 1''')
        if S:
            k(f"""s_mul_i32 s{sCD}, s{sT0}, 5120
            s_add_u32 s{sCD}, s{sCD}, {W2P + 48*5120}
            s_mov_b64 s[{S_OUT}:{S_OUT+1}], s[{S_TMP}:{S_TMP+1}]
            s_mov_b32 s{S_OUT+2}, {2048*1280}
            s_mov_b32 s{S_OUT+3}, 0x20000""")
    def consts3(self):
        k = self.k; S = self.S
        if S and self.cfg.s5k:
            k(f's_mul_i32 s{sT0}, s{sGW}, 25600\ns_add_u32 s{sCD}, s{sCD}, s{sT0}\ns_lshl4_add_u32 s{sT1}, s{sR2}, s{sGW}\ns_mul_i32 s{sT1}, s{sT1}, 5120\ns_add_u32 s{sT1}, s{sT1}, {OIM}')
            for d in range(4):
                k(f's_add_u32 s{sT0}, s{sGW}, {d}\ns_and_b32 s{sT0}, s{sT0}, 3\ns_mul_i32 s{sT0}, s{sT0}, 20480\ns_add_u32 s{sAM+d}, s{sT0}, s{sT1}')
        elif S:
            k(f's_lshl2_add_u32 s{sT1}, s{sR2}, s{sGW}\ns_mul_i32 s{sAM}, s{sT1}, 20480\ns_add_u32 s{sAM}, s{sAM}, {OIM}\ns_lshl_b32 s{sAM+1}, s{sGW}, 10\ns_add_u32 s{sAM+2}, s{sAM+1}, s{sCD}')
        else:
            k(f's_mul_i32 s{sT1}, s{sR2}, {4*self.cfg.hs}\ns_mul_i32 s{sT0}, s{sGW}, 12288\ns_add_u32 s{sT1}, s{sT1}, s{sT0}\ns_add_u32 s{sT1}, s{sT1}, {HIM}')
            for d in range(4):
                k(f's_add_u32 s{sT0}, s{sGW}, {d}\ns_and_b32 s{sT0}, s{sT0}, 3\ns_mul_i32 s{sT0}, s{sT0}, {self.cfg.hs}\ns_add_u32 s{sAM+d}, s{sT0}, s{sT1}')
        k(f'''s_mul_i32 s{sKVS}, s{sAI}, {240*2048}
        s_mul_i32 s{sT1}, s{sAJ}, {5*2048}
        s_add_u32 s{sKVS}, s{sKVS}, s{sT1}
        s_mul_i32 s{sKVM}, s{sW}, 768''')

    def fg(self, d, src, t):
        if self.cfg.g1map: self.k(f'v_bfe_u32 v{t}, v{src}, 1, 3\nv_and_b32 v{d}, 1, v{src}\nv_lshlrev_b32 v{d}, 14, v{d}\nv_lshl_add_u32 v{d}, v{t}, 7, v{d}')
        else: self.k(f'v_bfe_u32 v{t}, v{src}, 2, 2\nv_and_b32 v{d}, 3, v{src}\nv_lshlrev_b32 v{d}, 13, v{d}\nv_lshl_add_u32 v{d}, v{t}, 8, v{d}')
    def fi(self, d, src, t):
        if self.cfg.g1map: self.k(f'v_and_b32 v{d}, 15, v{src}\nv_lshlrev_b32 v{d}, 10, v{d}')
        else: self.k(f'v_bfe_u32 v{t}, v{src}, 3, 1\nv_and_b32 v{d}, 7, v{src}\nv_lshlrev_b32 v{d}, 10, v{d}\nv_lshl_add_u32 v{d}, v{t}, 7, v{d}')
    def poll(self, kind, thr):
        k = self.k; a = vEX; st = {}
        srd = S_DBG if kind == 'dbg' else S_WS
        def addr():
            t = vT + 10
            if kind == 'dbg': k(f'v_and_b32 v{a}, 3, v{vL}\nv_lshlrev_b32 v{a}, 6, v{a}')
            elif kind == 'rc':
                self.fg(a, vL, t); self.fi(t + 1, vL, t)
                k(f"""s_lshl_b32 s{sT1}, s2, 7
                s_and_b32 s{sT2}, s{sT1}, {(0x78 if self.cfg.g1map else 0x39) << 7}
                s_and_b32 s{sT1}, s{sT1}, {(0x87 if self.cfg.g1map else 0xc6) << 7}
                v_add_u32 v{a}, s{sT2}, v{a}
                v_add_u32 v{t+1}, s{sT1}, v{t+1}
                s_mov_b32 vcc_lo, 0xffff0000
                s_mov_b32 vcc_hi, 0xffff0000
                v_cndmask_b32 v{a}, v{a}, v{t+1}, vcc""")
            elif kind == 'pk':
                self.fi(t + 1, vL, t)
                k(f"""s_lshl_b32 s{sT1}, s2, 7
                s_and_b32 s{sT1}, s{sT1}, {(0x87 if self.cfg.g1map else 0xc6) << 7}
                v_add_u32 v{t+1}, s{sT1}, v{t+1}
                s_mul_i32 s{sT1}, s{sC2}, 5
                s_lshr_b32 s{sT1}, s{sT1}, 2
                v_lshrrev_b32 v{a}, 1, v{vL}
                v_lshl_add_u32 v{a}, v{a}, 3, v{vL}
                v_add_lshl_u32 v{a}, v{a}, s{sT1}, 7
                s_mov_b32 vcc_lo, 0
                s_mov_b32 vcc_hi, 0xffff0000
                v_cndmask_b32 v{a}, v{a}, v{t+1}, vcc""")
            elif kind == 'kv':
                k(f"""v_lshrrev_b32 v{t}, 4, v{vL}
                v_sub_u32 v{t}, s{sAI}, v{t}
                v_max_i32 v{t}, 0, v{t}
                v_mov_b32 v{t+1}, s{sPL2}
                s_mov_b32 vcc_lo, 0
                s_mov_b32 vcc_hi, 0xffff0000
                v_cndmask_b32 v{t+1}, v{t}, v{t+1}, vcc""")
                self.fi(t + 1, t + 1, t); self.fg(a, vL, t)
                k(f'v_add_u32 v{a}, v{a}, v{t+1}')
        def issue():
            self.uid += 1; u = self.uid
            k(f's_cmp_lg_u32 s{sGW}, 0\ns_cbranch_scc1 L_np{u}')
            k(f'buffer_load_dword v{vP}, v{a}, s[{srd}:{srd+3}], 0 offen sc1')
            k.nvm -= 1; st['t'] = k.nvm
            k.label(f'L_np{u}')
        def check(): self.poll_check(st['t'], vP, a, srd, '0', thr)
        return addr, issue, check
    def ext_a(self):
        k = self.k
        if self.S:
            k(f"""s_lshl_b32 s{sT2}, s{sGW}, 9
            s_add_u32 m0, s{sT2}, {L_EXT + 8192}
            s_mul_i32 s{sT1}, s{sG}, 10240
            s_add_u32 s{sT1}, s{sT1}, s{sT2}
            s_add_u32 s{sT3}, s{sT1}, {WEXT + 8192}
            s_cmp_lt_u32 s{sG}, 14
            s_cselect_b32 s{sT3}, s{sT3}, {OOB}
            s_mov_b32 exec_hi, 0""")
            k(f'buffer_load_dwordx4 v{aL16}, s[{S_WS}:{S_WS+3}], s{sT3} offen sc1 lds')
            k(f"""s_mov_b32 exec_hi, -1
            s_lshl1_add_u32 m0, s{sT2}, {L_EXT}
            s_add_u32 s{sT1}, s{sT1}, s{sT2}
            s_add_u32 s{sT1}, s{sT1}, {WEXT}""")
            k(f'buffer_load_dwordx4 v{aL16}, s[{S_WS}:{S_WS+3}], s{sT1} offen sc1 lds')
        k(f'''v_and_b32 v{vT+10}, {15 if self.cfg.m16 else 31}, v{vL}
        v_lshlrev_b32 v{vT+10}, 3, v{vT+10}
        s_lshl2_add_u32 s{sT1}, s{sI}, s{sGW}
        s_lshl_b32 s{sT1}, s{sT1}, 8
        s_add_u32 s{sT1}, s{sT1}, {STATS}''')
        self.t_ea = k(f'buffer_load_dwordx2 v[{vST}:{vST+1}], v{vT+10}, s[{S_WS}:{S_WS+3}], s{sT1} offen sc1')
        if self.cfg.m16: self.t_ea = k(f'buffer_load_dwordx2 v[{vCC}:{vCC+1}], v{vT+10}, s[{S_WS}:{S_WS+3}], s{sT1} offen offset:128 sc1')
    def ext_b(self):
        k = self.k
        k(f"""s_lshl_b32 s{sT2}, s{sGW}, 10
        s_add_u32 m0, s{sT2}, {L_EXT + 4096}
        s_mul_i32 s{sT1}, s{sG}, 10240
        s_add_u32 s{sT1}, s{sT1}, s{sT2}
        s_add_u32 s{sT1}, s{sT1}, {WEXT + 4096}""")
        self.t_eb = k(f'buffer_load_dwordx4 v{aL16}, s[{S_WS}:{S_WS+3}], s{sT1} offen sc1 lds')
    def stats_prep(self):
        k = self.k
        if self.cfg.m16:
            k(f"""v_mov_b32 v{vMEAN}, v{vVAR}
            v_mov_b32 v{vMEAN+1}, v{vVAR}
            v_mov_b32 v{vMEAN+2}, v{vCC}
            v_mov_b32 v{vMEAN+3}, v{vCC}
            v_rsq_f32 v{vCC}, v{vVAR+1}
            v_mov_b32 v{vVAR}, v{vVAR+1}
            v_mov_b32 v{vVAR+1}, v{vCC+1}
            v_rsq_f32 v{vCC+1}, v{vCC+1}
            v_mul_f32 v{vCC}, {hex(f2u(-LOG2E))}, v{vCC}
            v_mul_f32 v{vCC+1}, {hex(f2u(-LOG2E))}, v{vCC+1}""")
            if self.cfg.hsc: k(f'v_mul_f32 v{vVAR}, {hex(f2u(-1/LOG2E))}, v{vVAR}\nv_mul_f32 v{vVAR+1}, {hex(f2u(-1/LOG2E))}, v{vVAR+1}')
            return
        k(f'v_rsq_f32 v{vRS}, v{vST+1}')
        for e in range(4): k(f'v_mov_b32 v{vMEAN+e}, v{vST}')
        k(f'v_mul_f32 v{vC1}, {hex(f2u(-LOG2E))}, v{vRS}\nv_mul_f32 v{vST}, s{sQF}, v{vRS}')
    def job_gu(self, tt, soff):
        k = self.k; J = []; out = vT; acc = vA0 + 16 * tt; c = self.cfg
        c1, var = (vCC + tt, vVAR + tt) if c.m16 else (vC1, vST + 1)
        def one(s): J.append(lambda: k(s))
        for e0 in (0, 4):
            for e in range(e0, e0 + 4): one(f'v_mul_f32 v{acc+8+e}, v{acc+e}, v{acc+8+e}')
            for e in range(e0, e0 + 4): one(f'v_mul_f32 v{acc+e}, v{c1}, v{acc+e}')
            for e in range(e0, e0 + 4): one(f'v_exp_f32 v{acc+e}, v{acc+e}')
            for e in range(e0, e0 + 4): one(f'v_fma_f32 v{acc+e}, v{acc+e}, v{var}, v{var}')
            for e in range(e0, e0 + 4): one(f'v_rcp_f32 v{acc+e}, v{acc+e}')
            for e in range(e0, e0 + 4): one(f'v_mul_f32 v{acc+e}, v{acc+e}, v{acc+8+e}')
            for e in range(e0, e0 + 4, 2): one(f'v_cvt_pk_bf16_f32 v{out+e//2}, v{acc+e}, v{acc+e+1}')
        def st():
            if c.m16:
                k(f's_add_u32 s{sT1}, s{soff}, {tt*c.hs}\nv_permlane16_swap_b32 v{out}, v{out+2}\nv_permlane16_swap_b32 v{out+1}, v{out+3}')
                self.t_store = k(f'buffer_store_dwordx4 v[{out}:{out+3}], v{vHO}, s[{S_WS}:{S_WS+3}], s{sT1} offen {c.stf}')
            else:
                self.t_store = k(f'buffer_store_dwordx4 v[{out}:{out+3}], v{vHO}, s[{S_WS}:{S_WS+3}], s{soff} offen offset:{tt*512} {c.stf}')
        J.append(st)
        return J
    def qkv_half(self, pas, tt, half):
        k = self.k; c = self.cfg
        acc = vA0 + 16 * tt + 8 * half if pas == 1 else vA1 + 8 * tt
        soff = sQS1 if pas == 1 else sQS2
        if c.m16:
            sc = vT + 10; off = half * 16384 + tt * 256
            k(f"v_mul_f32 v{sc}, {f's{sQF}' if pas == 1 else hex(f2u(-1.0 / LOG2E))}, v{vCC+tt}")
        else:
            sc = vST if pas == 1 else vRS; off = half * 16384 + tt * 4096
        for e in range(8): k(f'v_mul_f32 v{acc+e}, v{sc}, v{acc+e}')
        for e in range(0, 8, 2): k(f'v_cvt_pk_bf16_f32 v{acc+e//2}, v{acc+e}, v{acc+e+1}')
        k(f's_add_u32 s{sT1}, s{soff}, {off}')
        if c.m16: k(f'v_permlane16_swap_b32 v{acc}, v{acc+2}\nv_permlane16_swap_b32 v{acc+1}, v{acc+3}')
        self.t_store = k(f'buffer_store_dwordx4 {vr(acc,4)}, v{vQO}, s[{S_WS}:{S_WS+3}], s{sT1} offen {c.stf}')
    def job_e1(self, j):
        k = self.k
        def f():
            tt, half = j >> 1, j & 1
            if self.typ == 0:
                J = self.job_gu(tt, sHE)
                for x in (J[26:] if half else J[:26]): x()
            else:
                self.qkv_half(1, tt, half)
                if not half and not self.cfg.cnt: k.nvm -= 1
        return f
    def slot_test(self, newer):
        return f's_sub_u32 s{sCNT}, s{sSLOT}, {newer[0][3]}\ns_cmp_le_u32 s{sCNT}, {newer[-1][3] - newer[0][3]}'
    def job_csb(self, lump):
        c = self.cfg
        for p in sorted(self.slots):
            if p >= 3: lump[p - 3].append(('first', lambda p=p: self.cs_loads(p)))
        lump[c.u1].append(('first', self.cs_use(0, max(max(c.slot0), max(c.slot2)), 't_a')))
        lump[c.u2].append(('first', self.cs_use(min(c.slot1), max(c.slot1), 't_b')))
        assert c.u2 <= 6
    def pack_setup(self):
        k = self.k
        a0, a1, go = vA1 + 6, vA1 + 7, vA1 + 8
        d = vT; x, y = vT + 10, vT + 11
        k(f"""s_mul_i32 s{sT1}, s2, 52429
        s_lshr_b32 s{sT1}, s{sT1}, 19
        s_mul_i32 s{sT3}, s{sT1}, 10
        s_sub_u32 s{sPKL}, s2, s{sT3}
        s_lshl2_add_u32 s{sT2}, s{sT1}, s{sGW}
        s_mul_i32 s{sPKS}, s{sT2}, 10240
        s_lshl_b32 s{sT3}, s{sPKL}, 7
        s_add_u32 s{sPKS}, s{sPKS}, s{sT3}
        s_mul_i32 s{sT3}, s{sT1}, 5120
        s_lshl_b32 s{sT4}, s{sGW}, 8
        s_add_u32 s{sT3}, s{sT3}, s{sT4}
        s_add_u32 s{sT3}, s{sT3}, {W2P}
        s_cmp_lt_u32 s{sT2}, 96
        s_cselect_b32 s{sPKD0}, s{sT3}, {OOB}
        s_cselect_b32 s{sPKS}, s{sPKS}, {OOB}
        s_add_u32 s{sPKD1}, s{sPKD0}, {24*5120}
        s_mul_i32 s{sT1}, s{sT2}, 52429
        s_lshr_b32 s{sT1}, s{sT1}, 18
        s_mul_i32 s{sT3}, s{sT1}, 5
        s_sub_u32 s{sT3}, s{sT2}, s{sT3}
        s_and_b32 s{sT4}, s{sT1}, 3
        s_lshr_b32 s{sT1}, s{sT1}, 2
        s_mul_i32 s{sT1}, s{sT1}, 5
        s_cmp_gt_u32 s{sT3}, 2
        s_subb_u32 s{sT5}, s{sT3}, 0
        s_cmp_eq_u32 s{sT3}, 2
        s_cselect_b32 s{sT5}, s{sT4}, s{sT5}
        s_cselect_b32 s{sT4}, 4, s{sT4}
        s_add_u32 s{sT1}, s{sT1}, s{sT4}
        s_mul_i32 s{sT1}, s{sT1}, 5120
        s_lshl_b32 s{sT5}, s{sT5}, 8
        s_add_u32 s{sT1}, s{sT1}, s{sT5}
        s_add_u32 s{sT1}, s{sT1}, {W2P + 48*5120}
        s_cmp_lt_u32 s{sT2}, 80
        s_cselect_b32 s{sPKD2}, s{sT1}, {OOB}
        s_bfe_u32 s{sSLOT}, s2, {hex(0x4 | ((self.cfg.nslot.bit_length()-1) << 16))}""")
    def job_pack(self, lump):
        k = self.k; c = self.cfg
        a0, a1, go = 8, 9, vT + 10
        d = vT; x, y = vT + 4, vT + 5
        def issue(p):
            def f():
                if 'p' in c.skip: k(f's_mov_b32 s{sSLOT}, 9')
                if 's' in c.skip: k(f's_mov_b32 s{sPKD0}, {OOB}\ns_mov_b32 s{sPKD1}, {OOB}\ns_mov_b32 s{sPKD2}, {OOB}')
                k(f"""s_cmp_lg_u32 s{sSLOT}, {p}
                s_cbranch_scc1 L_npk{p}
                v_lshrrev_b32 v{go}, 3, v{vL}
                v_mul_u32_u24 v{go}, 1280, v{go}
                v_and_b32 v{go+1}, 0x70, v{aL16}
                v_add_u32 v{go}, v{go}, v{go+1}
                s_mul_i32 s{sT2}, s{sGW}, 3072
                s_add_u32 m0, s{sT2}, {L_PACK}
                s_add_u32 s{sT1}, s{sPKS}, {96*10240 - 1024}""")
                k(f'buffer_load_dwordx4 v{go}, s[{S_WD}:{S_WD+3}], s{sPKS} offen {c.pknt} lds')
                k(f'buffer_load_dwordx4 v{go}, s[{S_WD}:{S_WD+3}], s{sT1} offen offset:1024 {c.pknt} lds')
                k(f's_add_u32 m0, s{sT2}, {L_PACK + 2048}')
                k(f'buffer_load_dwordx4 v{go}, s[{S_WO}:{S_WO+3}], s{sPKS} offen {c.pknt} lds')
                k.nvm -= 3; k.cond.append((k.nvm, 3, self.slot_test, p)); self.t_pk = Tok(k.nvm + 1)
                k.label(f'L_npk{p}')
            return f
        def addr1():
            k(f"""s_lshl_b32 s{sT1}, s{sPKL}, 1
            v_lshrrev_b32 v{x}, 5, v{vL}
            v_add_u32 v{x}, s{sT1}, v{x}
            v_mul_u32_u24 v{y}, 52, v{x}
            v_lshrrev_b32 v{y}, 8, v{y}
            v_mul_u32_u24 v{a0}, 5, v{y}
            v_sub_u32 v{x}, v{x}, v{a0}
            v_bfe_u32 v{d}, v{vL}, 4, 1
            v_lshl_add_u32 v{d+1}, v{x}, 1, v{d}
            v_cmp_lt_u32 vcc, 4, v{d+1}
            v_mul_u32_u24 v{y}, {2*340}, v{y}
            v_add_u32 v{a1}, {340-6}, v{d+1}
            v_cndmask_b32 v{a1}, v{d+1}, v{a1}, vcc
            v_cmp_eq_u32 vcc, 5, v{d+1}
            v_mov_b32 v{d+2}, {340+4}
            v_and_b32 v{d+3}, 15, v{vL}
            v_cndmask_b32 v{a1}, v{a1}, v{d+2}, vcc
            v_add_lshl_u32 v{a1}, v{a1}, v{y}, 10
            v_lshl_add_u32 v{a1}, v{d+3}, 4, v{a1}""")
        def addr2():
            k(f"""v_and_b32 v{d+1}, 3, v{vL}
            v_lshlrev_b32 v{d+2}, 4, v{d+1}
            v_lshl_add_u32 v{d+2}, v{d}, 3, v{d+2}
            v_cmp_eq_u32 vcc, 2, v{x}
            v_lshlrev_b32 v{d+1}, 3, v{d+1}
            v_lshl_add_u32 v{d+1}, v{d}, 5, v{d+1}
            v_cndmask_b32 v{a0}, v{d+2}, v{d+1}, vcc
            v_bfe_u32 v{x}, v{vL}, 2, 2
            v_lshl_add_u32 v{a0}, v{x}, 7, v{a0}
            v_lshrrev_b32 v{x}, 5, v{vL}
            v_lshl_add_u32 v{a0}, v{x}, 6, v{a0}
            s_mul_i32 s{sT1}, s{sGW}, 3072
            s_add_u32 s{sT1}, s{sT1}, {L_PACK}
            v_add_u32 v{a0}, s{sT1}, v{a0}""")
        D = vT + 4
        def rd(it):
            def f():
                k.wait(vm=self.t_pk)
                k(f'ds_read_b64_tr_b16 {vr(D,2)}, v{a0} offset:{it*1024}')
                self.t_pr = k(f'ds_read_b64_tr_b16 {vr(D+2,2)}, v{a0} offset:{it*1024+512}')
            return f
        def st(it):
            def f():
                k.wait(lg=self.t_pr)
                self.t_b = k(f'buffer_store_dwordx4 {vr(D,4)}, v{a1}, s[{S_WS}:{S_WS+3}], s{(sPKD0, sPKD1, sPKD2)[it]} offen {c.stf}')
            return f
        n = c.pk
        for p in range(c.nslot): lump[n + p].append(('first', issue(p)))
        u = n + c.nslot - 1 + c.pkd
        lump[c.pka].append(addr1); lump[c.pka + 1].append(addr2)
        for it in range(3):
            lump[u + it // c.pkn].append(('first', rd(it)) if it % c.pkn == 0 else ('late', rd(it)))
            lump[u + it // c.pkn].append(('late', st(it)))
        assert c.pka + 1 < u and c.fb > u + 2 // c.pkn and c.pka + 1 <= 9
    def job_ones(self):
        k = self.k
        d = vT; tk = vT + 10; a = vT + 11
        k(f'''s_mul_i32 s{sT1}, s{sW}, 48
        v_add_u32 v{tk}, s{sT1}, v{vL}
        s_sub_i32 s{sT1}, 2, s{sAI}
        s_lshl_b32 s{sT1}, s{sT1}, 7
        v_cmp_le_i32 vcc, s{sT1}, v{tk}
        v_mov_b32 v{d+1}, 0x3f80
        v_lshlrev_b32 v{a}, 4, v{tk}
        v_cndmask_b32 v{d}, 0, v{d+1}, vcc
        v_lshrrev_b32 v{d+2}, 7, v{tk}
        v_mul_u32_u24 v{d+2}, {240*2048 - 2048}, v{d+2}
        v_add_u32 v{d+2}, v{d+2}, v{a}
        v_mov_b32 v{d+3}, {OOB}
        v_cndmask_b32 v{vT+8}, v{d+3}, v{d+2}, vcc
        s_mov_b32 vcc_lo, 0x11111111
        s_mov_b32 vcc_hi, 0x11111111
        v_cndmask_b32 v{d}, 0, v{d}, vcc
        v_mov_b32 v{d+1}, 0
        v_mov_b32 v{d+2}, v{d}
        v_mov_b32 v{d+3}, 0
        v_add_u32 v{a}, {L_ONES}, v{a}
        ds_write_b128 v{a}, v[{d}:{d+3}]''')
        if self.S: k(f'v_mov_b32 v{tk}, 0\nv_lshlrev_b32 v{a}, 2, v{vL}\nv_add_u32 v{a}, {L_CNT}, v{a}\nds_write_b32 v{a}, v{tk}')
    def job_kv(self):
        k = self.k; J = []; S = self.S
        for e in range(10):
            def f(e=e):
                src = QKV - 2*240*2048 + ((80 if e < 5 else 155) + e) * 2048
                k(f's_add_u32 m0, s{sKVM}, {L_KV + e*CH}\ns_add_u32 s{sT1}, s{sKVS}, {src}\ns_mov_b32 exec_hi, 0xffff')
                self.t_kv = k(f'buffer_load_dwordx4 v{vT+8}, s[{S_WS}:{S_WS+3}], s{sT1} offen sc1 lds')
                k('s_mov_b32 exec_hi, -1')
            J.append(f)
        def q():
            k(f'''s_lshl_b32 s{sT1}, s{sGW}, 9
            s_add_u32 s{sT1}, s{sT1}, s{sKVS}
            s_add_u32 s{sT2}, s{sT1}, {QKV + S*3*2048}
            s_add_u32 s{sT1}, s{sT1}, {QKV + 4096 + 8*S}
            v_lshrrev_b32 v{vT+10}, 5, v{vL}
            v_and_b32 v{vQO}, 0x1f0, v{aL16}
            v_lshl_add_u32 v{vQO}, v{vT+10}, 11, v{vQO}
            v_lshl_add_u32 v{vT+10}, v{vT+10}, 30, v{vQO}''')
            k(f'buffer_load_dwordx4 v[{vQ}:{vQ+3}], v{vQO}, s[{S_WS}:{S_WS+3}], s{sT2} offen sc1')
            self.t_kv = k(f'buffer_load_dwordx2 v[{vQ+4}:{vQ+5}], v{vT+10}, s[{S_WS}:{S_WS+3}], s{sT1} offen sc1')
        J.append(q)
        return J
    def job_touch(self, gw):
        k = self.k; c = self.cfg
        nsh = 8 if c.g2map else 4; per = -(-2720 // (8 * nsh))
        def f():
            self.uid += 1; u = self.uid
            k(f"""s_cmp_lg_u32 s{sGW}, {gw}
            s_cbranch_scc1 L_nt{u}
            s_and_b32 s{sT1}, s{sR2}, {nsh-1}
            s_lshl3_add_u32 s{sT1}, s{sT1}, s{sW}
            s_mul_i32 s{sT1}, s{sT1}, {per}
            v_min_u32 v{vT+5}, {min(per,64)-1}, v{vL}
            v_add_u32 v{vT+5}, s{sT1}, v{vT+5}
            v_min_u32 v{vT+5}, 2719, v{vT+5}
            v_lshlrev_b32 v{vT+5}, 7, v{vT+5}
            s_mul_i32 s{sT1}, s{sC2}, {68*5120}
            s_add_u32 s{sT1}, s{sT1}, {W2P}""")
            k(f'buffer_load_dword v{vT+6}, v{vT+5}, s[{S_WS}:{S_WS+3}], s{sT1} offen sc1')
            k.nvm -= 1
            k.label(f'L_nt{u}')
        return f
    def job_code(self):
        k = self.k; self.uid += 1; u = self.uid
        k(f's_cmp_lg_u32 s{sGW}, 1\ns_cbranch_scc1 L_nc{u}\ns_getpc_b64 s[{sT2}:{sT3}]')
        k.label(f'L_pc{u}')
        k(f's_lshr_b32 s{sT4}, s2, 3\ns_lshl_b32 s{sT4}, s{sT4}, 9\nv_lshl_add_u32 v{vT+10}, v{vL}, 7, s{sT4}\nv_min_u32 v{vT+10}, L_end-L_pc{u}, v{vT+10}')
        k(f's_mov_b64 exec, 15\nglobal_load_dword v{vT+6}, v{vT+10}, s[{sT2}:{sT3}]\ns_mov_b64 exec, -1')
        k.nvm -= 1
        k.label(f'L_nc{u}')
    def dmask(self, r):
        n0 = 8 * (r >> 2) + (r & 3)
        return f's_lshl_b32 s{sT2}, -1, {n0}\ns_lshl_b32 s{sT3}, -1, {n0+4}'
    def job_masks(self, lo, hi):
        k = self.k
        def f():
            k(f'v_mov_b32 v{vT+10}, 0xffff')
            for j in range(lo, hi):
                k(self.dmask(2*j) + f'\nv_cndmask_b32 v{vM+j}, 0, v{vT+10}, s[{sT2}:{sT3}]')
                k(self.dmask(2*j+1) + f'\nv_cndmask_b32 v{vM+j}, v{vM+j}, -1, s[{sT2}:{sT3}]')
        return f

    def frag_list(self):
        c = self.cfg; F = []
        ea, eb = c.pa + c.ed, c.eb
        for n in range(25):
            slot = (n & 3) * 16384
            for q in range(8):
                f = dict(stage=n, first=(q == 0))
                if c.m16:
                    T = q & 1
                    if 10 <= n < 15:
                        t = q >> 1; kk = 4 * (n - 10) + t
                        f.update(off=slot + (t & 1) * 8192 + (t >> 1) * 1024, acc=vA1 + 4 * T, dm=8)
                    else:
                        t, part = q >> 2, (q >> 1) & 1
                        kk = 2 * (n if n < 10 else n - 15) + t
                        f.update(off=slot + t * 8192 + part * 1024, acc=vA0 + 8 * part + 4 * T, dm=16)
                        if n < 10 and q & 3 == 0: f['xread'] = (vX + 8 * kk, vA1 + t, slot)
                    f.update(addr=(vWR0, vWR1)[T], b=vX + 8 * kk, zero=(kk == 0))
                elif 10 <= n < 15:
                    kk = 8 * (n - 10) + q
                    f.update(addr=vWR2, off=slot + q * 2048, acc=vA1, b=vX + 4 * kk, zero=(kk == 0))
                else:
                    t, tt = q >> 1, q & 1
                    kk = 4 * (n if n < 10 else n - 15) + t
                    f.update(addr=(vWR0, vWR1)[tt], off=slot + t * 4096, acc=vA0 + 16 * tt, b=vX + 4 * kk, zero=(kk == 0))
                    if n < 10 and tt == 0: f['xread'] = (vX + 4 * kk, vA1 + t, slot)
                F.append(f)
                def ext(u):
                    g = dict(stage=n, first=False, b=vMEAN, zero=False)
                    if c.m16:
                        for T in range(2):
                            F.append(dict(g, addr=(vWR0, vWR1)[T], off=u * 2048, acc=(vA1 if u == 4 else vA0 + 8 * (u & 1)) + 4 * T, dm=8 if u == 4 else 16, ext=f'v{vEB}'))
                    else:
                        F.append(dict(g, addr=vWR2 if u == 4 else (vWR0, vWR1)[u & 1], off=0, acc=vA1 if u == 4 else vA0 + 16 * (u & 1), ext=L_EXT + (u >> 1) * 4096))
                if q == 1:
                    if n == ea: ext(0)
                    if n == min(ea + 1, 10): ext(1)
                    if n == eb: ext(4)
                    if n == c.ec: ext(2)
                    if n == c.ec + 1: ext(3)
        return F
    def issue_reads(self, F, i, h):
        k = self.k; f = F[i]; m16 = self.cfg.m16
        fr = vFR + 4 * (i & 3); a = f['addr']
        if h == 0 and f['first']: self.barrier(f['stage'])
        if 'xread' in f and (m16 or h == 0):
            d, xa, off = f['xread']
            k(f'ds_read_b128 {vr(d + 4*h,4)}, v{xa} offset:{off + 2048*h}')
        if 'ext' in f:
            if h == 0: k(f"v_add_u32 v{vT+9}, {f['ext']}, v{a}")
            a = vT + 9
            if m16:
                if h: f['tok'] = k(f"ds_read_b64_tr_b16 {vr(fr,2)}, v{a} offset:{f['off']}")
                return
        f['tok'] = k(f"ds_read_b64_tr_b16 {vr(fr + 2*h,2)}, v{a} offset:{f['off'] + 512*h}")
    def g1_mfma(self, f, i, mt):
        fr = vFR + 4 * (i & 3)
        if not self.cfg.m16:
            acc = vr(f['acc'], 16)
            self.k(f"v_mfma_f32_32x32x16_bf16 {acc}, {vr(fr,4)}, {vr(f['b'],4)}, {'0' if f['zero'] else acc}")
            return
        acc = vr(f['acc'] + f['dm'] * mt, 4)
        if 'ext' in f: self.k(f"v_mfma_f32_16x16x16_bf16 {acc}, {vr(fr,2)}, {vr(f['b'] + 2*mt,2)}, {acc}")
        else: self.k(f"v_mfma_f32_16x16x32_bf16 {acc}, {vr(fr,4)}, {vr(f['b'] + 4*mt,4)}, {'0' if f['zero'] else acc}")
    def close_window(self):
        if self.sd:
            self.sd.finish()
            self.counts[(self.S, self.typ, self.win)] = self.sd.n
            self.sd = None
        for j in self.end[self.win]: j()
    def barrier(self, n):
        k = self.k
        self.close_window()
        self.stamp('jj')
        toks = [self.stok[n]] + ([] if 'n' in self.cfg.skip else [g() for g in self.pre[n]])
        sk = self.cfg.skip
        k.wait(vm=max(t.n for t in toks), lg='all' if n in self.drain and not ('d' in sk) else None)
        if not ('B' in sk and n > 10 and n & 1) and not ('C' in sk and n > 10): k('s_barrier')
        if 10 < n < 14: self.stamp('jj')
        if n in (0, 10, 15): self.stamp()
        if n in (0, 1, 2, 3): self.stamp('p0')
        if n <= 10: self.stamp('p1')
        if 8 <= n <= 19: self.stamp('p2')
        if n >= 14: self.stamp('p3')
        for g in self.post[n]: g()
        k.c(f'---- GEMM1 stage {n}')
        self.win = n; self.wpos = 0
        self.sd = Side(k, list(self.lump[n]), self.cfg.wts) if self.lump[n] else None
    def deal(self, nslots):
        P = self.cfg.gfB if self.S else self.cfg.gfA
        if P and self.win >= self.cfg.gf0 and self.wpos in P: self.k(f's_setprio {P[self.wpos]}')
        self.wpos += 1
        if self.sd:
            tot = self.known.get((self.S, self.typ, self.win), 0)
            wait = max([j for j in self.lump[self.win] if isinstance(j, int)] + [0])
            share = (self.cfg.gainb if self.S else self.cfg.gain) * tot / max(nslots - wait, 1)
            tilt = self.cfg.tilt * (-1 if self.S else 1)
            self.sd.give(share * (1 + tilt * (2.0 * self.wpos / nslots - 1)), self.wpos)
    def run_frags(self, F, lo, hi):
        k = self.k; m16 = self.cfg.m16
        for i in range(lo, hi):
            f = F[i]; more = i + 3 < len(F)
            ns = lambda: self.nfr[self.win] * (2 if m16 else 1)
            k.wait(lg=f['tok'])
            self.g1_mfma(f, i, 0)
            if m16:
                if more and not F[i + 3]['first']: self.issue_reads(F, i + 3, 0)
                self.deal(ns())
                self.g1_mfma(f, i, 1)
                if more and F[i + 3]['first']: self.issue_reads(F, i + 3, 0)
            elif more: self.issue_reads(F, i + 3, 0)
            if more: self.issue_reads(F, i + 3, 1)
            self.deal(ns())

    def gemm1(self):
        k = self.k; c = self.cfg; S = self.S
        L = self.lump = {n: [] for n in range(-1, 26)}
        E = self.end = {n: [] for n in range(-1, 26)}
        pre = self.pre = {n: [] for n in range(26)}
        post = self.post = {n: [] for n in range(26)}
        ea, eb = c.pa + c.ed, c.eb; mm = 2 if c.m16 else 1
        if S:
            for n, v in ((c.fa, 1), (c.fb, 2), (c.fq, 3)):
                post[n].append(lambda v=v: self.flag_store(v, who=f's_cmp_eq_u32 s{sGW}, 0'))
        else:
            for n, kind, thr in ((c.fa - 2, 'dbg', 1), (c.pa, 'rc', 1), (c.pb, 'pk', 2), (c.pq, 'kv', 3)):
                a_, i_, c_ = self.poll(kind, thr)
                E[n + 1].append(c_); L[{'pk': c.ab, 'kv': c.aq}.get(kind, n)].append(('late', a_)); E[n].append(i_)
            assert c.fa >= 2 and c.pa >= c.fa and c.pb >= c.ab >= max(c.pa + 2, c.c2) and c.pq >= c.aq >= c.pb + 2
        self.drain = set()
        nxt = 2
        for n in range(24):
            depth = c.dp1 if n < c.dpx else c.dp2
            while nxt <= min(n + depth, 24):
                mode = (c.dB if S else c.dA)[n >= 8]
                if mode == 'q': L[n] += self.dma_stage(nxt)
                elif mode == 'l': L[n] += [('late', f) for f in self.dma_stage(nxt)]
                elif mode == 'e': E[n] = self.dma_stage(nxt) + E[n] if nxt == n + depth and not (n == c.dpx and c.dp2 > c.dp1) else E[n] + self.dma_stage(nxt)
                else: post[n] += self.dma_stage(nxt)
                if nxt == n + 3 and nxt >= 4: self.drain.add(n)
                nxt += 1
        pre[c.fa].append(lambda: self.t_a)
        if S: {'q': L, 'e': E, 'p': post}[c.sm][c.sb].append(self.stats); self.job_pack(L)
        else: self.job_csb(E)
        c2 = c.c2b if S else c.c2
        L[c2].append(self.consts2); L[c2 + 1].append(self.consts3)
        assert c.c2b >= 8 and c.c2 + 1 > max(c.slot1) - 3
        pre[c.fb].append(lambda: self.t_b)
        L[c.pa + 2].append(('first', self.ext_a)); pre[ea].append(lambda: self.t_ea); post[ea].append(self.stats_prep)
        if S: L[c.pb + 2].append(self.ext_b); pre[c.ec].append(lambda: self.t_eb)
        assert ea <= 10 and ea <= eb <= 14 and c.pb + 2 < c.ec
        for j in range(4): L[11 + j].append(self.job_e1(j))
        def e2():
            for tt in range(2): self.qkv_half(2, tt, 0)
            self.t_q = self.t_store
        g0 = c.g0
        if g0 == 15: L[g0].append(4 * mm)
        L[g0].append(e2); pre[c.fq].append(lambda: self.t_q)
        assert c.fq > g0
        L[g0 + 1].append(self.job_ones)
        L[g0 + 2].append(self.job_masks(0, 4)); L[g0 + 3].append(self.job_masks(4, 8))
        L[c.c1].append(self.attn_c1); L[22].append(self.attn_c2); L[c.c3].append(self.attn_c3)
        assert c.ec <= 20 and c.c3 >= 25 - c.dp2
        def place(mode, n, J):
            if mode == 'q': L[n] += J
            elif mode == 'f': L[n] += [('first', j) for j in J]
            elif mode == 'e': E[n] += [('first', j) for j in J]
            else: post[n] += J
        for n in c.code: L[n].append(self.job_code)
        kv = self.job_kv(); n = c.pq + 2
        while kv:
            assert g0 + 1 < n <= 24
            take = len(kv) if n == 24 else c.kvn
            place(c.kB if S else c.kA, n, kv[:take]); kv = kv[take:]; n += 1
        self.g2_plan()
        for n in range(c.pb + 2, 25):
            for _ in range((c.hoistb if S else c.hoist) if n <= c.hoist_hi else 0):
                hm = c.hB if S else c.hA
                if self.pf and self.pf[0][0] == 'w' and self.pf[0][1] + 3 < vX + 16 * (n - 16 + (hm == 'e')) + 8:
                    place(hm, n, [self.pf.pop(0)[2]])
        for D in (L, E):
            for n in D:
                late = [j[1] for j in D[n] if isinstance(j, tuple) and j[0] == 'late']
                first = [j[1] for j in D[n] if isinstance(j, tuple) and j[0] == 'first']
                D[n] = first + [j for j in D[n] if not isinstance(j, tuple)] + late
        F = self.frag_list()
        self.nfr = {n: sum(f['stage'] == n for f in F) for n in range(25)}
        self.nfr[0] -= 3; self.nfr[24] += 2
        self.typ = None; self.sd = None; self.win = -1; self.frac = 0.0
        for j in L[-1]: j()
        if c.prio == 2 and S: k('s_setprio 1')
        for i in range(3): self.issue_reads(F, i, 0); self.issue_reads(F, i, 1)
        at = lambda n: next(i for i, f in enumerate(F) if f['stage'] == n) - 3
        if c.dup:
            self.typ = self.ftyp
            self.run_frags(F, 0, len(F))
            self.close_window()
            self.stamp()
            return
        self.run_frags(F, 0, at(11))
        self.close_window(); E[10] = []
        tag = 'AB'[S]
        k(f's_bitcmp1_b32 s2, {7 if c.g1map else 6}\ns_cbranch_scc1 L_ty{tag}')
        s0 = k.snap(); nst = self.nst; res = []; e14 = E[14]
        for typ in (0, 1):
            k.restore(s0); self.nst = nst; self.typ = typ; self.win = 10; E[14] = e14
            if typ: k.label(f'L_ty{tag}')
            self.run_frags(F, at(11), at(15))
            self.close_window(); E[14] = []
            k('s_nop 1')
            if not typ: k(f's_branch L_tj{tag}')
            res.append((k.nvm - k.dvm, k.nlg, k.dlg, {n: k.nvm - self.stok[n].n for n in self.stok if n >= 15}, k.cond))
        assert res[0][1:3] == res[1][1:3] and not res[0][4] and not res[1][4], res
        for n in res[0][3]: self.stok[n] = Tok(k.nvm - min(res[0][3][n], res[1][3][n]))
        k.dvm = k.nvm - max(res[0][0], res[1][0])
        assert c.fb <= 14 and c.pb in (14, 15, 16) and c.pk + c.nslot + c.pkd + 2 <= 11
        k.label(f'L_tj{tag}')
        self.typ = None
        self.run_frags(F, at(15), len(F))
        self.close_window()
        if c.prio or c.gfA or c.gfB: k('s_setprio 0')
        self.stamp()

    def attn_c1(self):
        k = self.k; t = vT; S = self.S
        k(f"""v_and_b32 v{t}, 31, v{vL}
        v_lshrrev_b32 v{t+1}, 5, v{vL}
        s_lshl_b32 s{sT0}, s{sGW}, 9
        s_add_u32 s{sT2}, s{sT0}, {L_KV + S*3*CH}
        v_mul_u32_u24 v{aK0}, {CH}, v{t+1}
        v_lshl_add_u32 v{aK0}, v{t}, 4, v{aK0}
        v_add_u32 v{aK0}, s{sT2}, v{aK0}
        s_add_u32 s{sT3}, s{sT0}, {L_KV + 2*CH + 8*S}
        v_lshl_add_u32 v{aK1}, v{t}, 4, s{sT3}
        s_lshl2_add_u32 s{sT0}, s{sAI}, s{sGW}
        s_lshr_b32 s{sT1}, s{sAJ}, 2
        s_lshl3_add_u32 s{sT0}, s{sT0}, s{sT1}
        s_mul_i32 s{sT0}, s{sT0}, 5120
        s_add_u32 s{sT0}, s{sT0}, {OIM + S*512}
        s_and_b32 s{sT1}, s{sAJ}, 3
        s_lshl_b32 s{sT2}, s{sT1}, 10
        s_add_u32 s{sQS1}, s{sT0}, s{sT2}
        s_lshl_b32 s{sT2}, s{sT1}, 7
        s_add_u32 s{sQS2}, s{sT0}, s{sT2}
        s_add_u32 s{sQS2}, s{sQS2}, 4096""")
    def attn_c2(self):
        k = self.k; t = vT; S = self.S
        k(f"""v_lshrrev_b32 v{t+1}, 5, v{vL}
        s_lshl_b32 s{sT0}, s{sGW}, 9
        v_bfe_u32 v{t}, v{vL}, 2, 2
        v_lshl_add_u32 v{t}, v{t+1}, 2, v{t}
        v_lshlrev_b32 v{t}, 4, v{t}
        v_and_b32 v{aV}, 1, v{vL}
        v_mul_u32_u24 v{aV}, {CH}, v{aV}
        v_and_b32 v{t+2}, 2, v{vL}
        v_lshl_add_u32 v{aV}, v{t+2}, 2, v{aV}
        s_add_u32 s{sT1}, s{sT0}, {L_KV + (5 + 3*S)*CH}
        v_add3_u32 v{aV}, v{aV}, v{t}, s{sT1}
        s_add_u32 s{sT2}, s{sT0}, {L_KV + 7*CH + 8*S}
        v_add_u32 v{t}, s{sT2}, v{t}
        s_mov_b32 vcc_lo, 0x33330000
        s_mov_b32 vcc_hi, 0x33330000
        v_cndmask_b32 v{aV}, v{aV}, v{t}, vcc
        s_add_u32 s{sT1}, s{sT0}, {L_ONES + 8 - 8*S}
        v_lshl_add_u32 v{t}, v{t+1}, 6, s{sT1}
        s_lshl_b64 vcc, vcc, 2
        v_cndmask_b32 v{aV}, v{aV}, v{t}, vcc
        v_add_u32 v{t}, 16, v{t}
        s_mov_b32 vcc_lo, 0x22220000
        s_mov_b32 vcc_hi, 0x22220000
        v_cndmask_b32 v{aV}, v{aV}, v{t}, vcc""")
    def attn_c3(self):
        k = self.k; t = vT
        k(f"""v_lshrrev_b32 v{t+1}, 5, v{vL}
        v_bfe_u32 v{t}, v{vL}, 4, 1
        v_mul_u32_u24 v{t}, 20480, v{t}
        v_and_b32 v{t+2}, 15, v{vL}
        v_lshl_add_u32 v{aO0}, v{t+2}, 4, v{t}
        v_lshl_add_u32 v{aO0}, v{t+1}, 8, v{aO0}
        v_lshl_add_u32 v{aO1}, v{t+2}, 3, v{t}
        v_lshl_add_u32 v{aO1}, v{t+1}, 30, v{aO1}""")
    def rdK(self, t, buf, a0=None, a1=None):
        k = self.k; k0, k1 = vKB[buf]
        k(f'ds_read_b128 {vr(k0,4)}, v{a0 or aK0} offset:{t*512}')
        return k(f'ds_read_b64 {vr(k1,2)}, v{a1 or aK1} offset:{t*512}')
    def rdV(self, t, buf, a=None):
        k = self.k; v = vVB[buf]
        for q in range(4): r = k(f'ds_read_b64_tr_b16 {vr(v+2*q,2)}, v{a or aV} offset:{t*512 + q*128}')
        return r
    def qk(self, buf, S):
        k = self.k; k0, k1 = vKB[buf]
        k(f'v_mfma_f32_32x32x16_bf16 {vr(S,16)}, {vr(k0,4)}, {vr(vQ,4)}, 0')
        k(f'v_mfma_f32_32x32x8_bf16 {vr(S,16)}, {vr(k1,2)}, {vr(vQ+4,2)}, {vr(S,16)}')
    def pv(self, buf, half, P, first=False):
        self.k(f"v_mfma_f32_32x32x16_bf16 {vr(vO,16)}, {vr(vVB[buf]+4*half,4)}, {vr(P+4*half,4)}, {'0' if first else vr(vO,16)}")
    def attention(self, pf, hook=None):
        k = self.k; c = self.cfg
        npf = len(pf); pts = [0]; NP = c.bnp if self.S else 30
        def sp():
            pts[0] += 1
            while npf - len(pf) < (npf * pts[0] + NP - 1) // NP and pf: pf.pop(0)()
        def ex(Sb, lo, hi):
            for r in range(lo, hi): k(f'v_exp_f32 v{Sb+r}, v{Sb+r}')
        def cv(Sb, half):
            for r in range(8*half, 8*half + 8, 2): k(f'v_cvt_pk_bf16_f32 v{vPP+r//2}, v{Sb+r}, v{Sb+r+1}')
        def qa(buf, Sb): k(f'v_mfma_f32_32x32x16_bf16 {vr(Sb,16)}, {vr(vKB[buf][0],4)}, {vr(vQ,4)}, 0')
        def qb(buf, Sb): k(f'v_mfma_f32_32x32x8_bf16 {vr(Sb,16)}, {vr(vKB[buf][1],2)}, {vr(vQ+4,2)}, {vr(Sb,16)}')
        def rv(t, buf, q): return k(f'ds_read_b64_tr_b16 {vr(vVB[buf]+2*q,2)}, v{aV} offset:{t*512 + q*128}')
        def merge(far, diag, lo=0, hi=16):
            for r in range(lo, hi):
                k(self.dmask(r) + f'\nv_cndmask_b32 v{far+r}, v{far+r}, v{diag+r}, s[{sT2}:{sT3}]')
        first = [True]
        def pv(buf, half, P):
            self.pv(buf, half, P, first[0]); first[0] = False
        nb = [0]
        def mid():
            nb[0] += 1
            self.stamp('at')
            if c.fair:
                P = c.fairB if self.S else c.fairA
                if nb[0] > 1 and P[nb[0]-1] != P[nb[0]-2]: k(f's_setprio {P[nb[0]-1]}')
            if nb[0] == c.bh_at:
                k.wait(vm=self.t_hl)
                k(f'v_mov_b32 v2, {L_CNT}')
                self.t_arr = self.arrive(6, 2, 9)
            if nb[0] == 8 and hook: hook()
        def block(Sb, vb, tv, nq, nk, nv, nq2=None):
            mid(); tk = tvn = None
            ex(Sb, 0, 4)
            if nq: k.wait(lg=nq[2]); qa(nq[0], nq[1])
            if nv: rv(nv[0], nv[1], 0); rv(nv[0], nv[1], 1)
            sp()
            ex(Sb, 4, 8)
            if nb[0] == c.bh_at: self.last_signals(self.t_arr, 9, 4, 8)
            if nq: qb(nq[0], nq[1])
            if nv: rv(nv[0], nv[1], 2); tvn = rv(nv[0], nv[1], 3)
            cv(Sb, 0); ex(Sb, 8, 10)
            k.wait(lg=tv); pv(vb, 0, vPP)
            sp()
            if nq2:
                ex(Sb, 10, 13); k.wait(lg=nq2[2]); qa(nq2[0], nq2[1]); ex(Sb, 13, 16); qb(nq2[0], nq2[1]); cv(Sb, 1)
            else:
                ex(Sb, 10, 16); cv(Sb, 1)
            if nk: tk = self.rdK(*nk)
            sp()
            pv(vb, 1, vPP)
            sp()
            return tk, tvn
        def merged(Sb, bfar, bdiag, tv, nq=None, nk=None):
            mid(); tk = None
            ex(Sb, 0, 4)
            if nq: k.wait(lg=nq[2]); qa(nq[0], nq[1])
            ex(Sb, 4, 8)
            if nq: qb(nq[0], nq[1])
            if nk: tk = self.rdK(*nk)
            for half in range(2):
                cv(Sb, half)
                for j in range(4*half, 4*half + 4): k(f'v_and_b32 v{vM+j}, v{vM+j}, v{vPP+j}')
                for j in range(4*half, 4*half + 4): k(f'v_xor_b32 v{vPP+j}, v{vM+j}, v{vPP+j}')
                k.wait(lg=tv); pv(bdiag, half, vM)
                if half == 0: ex(Sb, 8, 12)
                sp()
                pv(bfar, half, vPP)
                if half == 0: ex(Sb, 12, 16)
            return tk
        k.c('==== attention')
        S = (vS0, vS1); S2 = 212 if c.s5k else vS2
        if c.fair: k(f's_setprio {(c.fairB if self.S else c.fairA)[0]}')
        self.stamp('at')
        if not (self.S and c.blast):
            t0 = self.rdK(0, 0); t8 = self.rdK(8, 1)
            self.rdV(0, 0); tv8 = self.rdV(8, 1)
            k.wait(lg=t0); self.qk(0, S[0])
            k.wait(lg=t8); self.qk(1, S[1])
            tk = self.rdK(1, 0)
            merge(S[0], S[1])
            tk = merged(S[0], 0, 1, tv8, (0, S[1], tk), (2, 1))
            tv = self.rdV(1, 1)
            for t in range(1, 8):
                tk, tv = block(S[t & 1], t & 1, tv, (t & 1, S[(t+1) & 1], tk) if t < 7 else None,
                               (t + 2, (t+1) & 1) if t < 6 else None, (t + 1, (t+1) & 1) if t < 7 else None)
        else:
            t1 = self.rdK(1, 0); tk = self.rdK(2, 1); tv = self.rdV(1, 1)
            k.wait(lg=t1); self.qk(0, S[1])
            for t in range(1, 7):
                tk, tv = block(S[t & 1], t & 1, tv, (t & 1, S[(t+1) & 1], tk), (t + 2 if t < 6 else 0, (t+1) & 1), (t + 1, (t+1) & 1))
            t8 = self.rdK(8, 0)
            _, tv0 = block(S[1], 1, tv, (1, S[0], tk), None, (0, 0), (0, S2, t8))
            merge(S[0], S2, 0, 4)
            tv8 = self.rdV(8, 1)
            merge(S[0], S2, 4, 16)
            merged(S[0], 0, 1, tv8)
        assert not pf
        self.stamp('at')
        tag = 'AB'[self.S]
        k.c('range check of the row sums; true-maximum softmax otherwise')
        k(f'v_mov_b32 v8, {hex(f2u(2.0**-40))}\nv_mov_b32 v9, {hex(f2u(2.0**40))}\nv_med3_f32 v8, v{vO+12}, v8, v9')
        if c.fin:
            k(f'v_mul_f32 v9, 0, v{vO}')
            for r in range(1, 12): k(f'v_fmac_f32 v{8 + (r & 1)}, 0, v{vO+r}')
            k('v_add_f32 v8, v8, v9')
        k(f'v_cmp_eq_f32 vcc, v8, v{vO+12}\ns_cmp_eq_u64 vcc, -1\ns_cbranch_scc1 L_aok{tag}')
        if not c.skip: k(f's_call_b64 s[{sT4}:{sT5}], L_fallback')
        k.label(f'L_aok{tag}')
        if not c.s5k: self.lds_add(7, 1, 2)
        k(f'v_rcp_f32 v8, v{vO+12}')
        for r in range(12): k(f'v_mul_f32 v{vO+r}, v8, v{vO+r}')
        for j in range(6): k(f'v_cvt_pk_bf16_f32 v{vS0+j}, v{vO+2*j}, v{vO+2*j+1}')
        k(f'buffer_store_dwordx4 {vr(vS0,4)}, v{aO0}, s[{S_WS}:{S_WS+3}], s{sQS1} offen {self.cfg.stf}')
        self.t_o = k(f'buffer_store_dwordx2 {vr(vS0+4,2)}, v{aO1}, s[{S_WS}:{S_WS+3}], s{sQS2} offen {self.cfg.stf}')
    def fallback(self, k):
        sB, sXr, sOr = sT0, sHE, sQF
        mx, ninf, a0, a1, a2 = 8, 9, vM, vM + 1, vM + 2
        k.c('==== softmax with the true row maximum: pass 0 finds it, pass 1 accumulates')
        k.label('L_fallback')
        k('s_nop 7\ns_nop 7')
        k(f'v_mov_b32 v{ninf}, 0xff800000\nv_mov_b32 v{mx}, 0xff800000')
        for ps in range(2):
            k(f's_lshl2_add_u32 s{sB}, s{sAI}, s{sGW}\ns_sub_i32 s{sB}, 8, s{sB}\ns_max_i32 s{sB}, s{sB}, 0')
            k.label(f'L_fb{ps}')
            k(f's_lshl_b32 s{sT1}, s{sB}, 9\nv_add_u32 v{a0}, s{sT1}, v{aK0}\nv_add_u32 v{a1}, s{sT1}, v{aK1}\nv_add_u32 v{a2}, s{sT1}, v{aV}')
            self.rdK(0, 0, a0, a1)
            if ps: self.rdV(0, 0, a2)
            k(f's_cmp_eq_u32 s{sB}, 0\ns_cselect_b32 s{sXr}, -1, 0\ns_and_b32 s{sT1}, s{sB}, 7\ns_cselect_b32 s{sOr}, -1, 0\ns_waitcnt lgkmcnt(0)')
            self.qk(0, vS0)
            for r in range(16):
                k(self.dmask(r) + f'''
                s_xor_b32 s{sT2}, s{sT2}, s{sXr}
                s_xor_b32 s{sT3}, s{sT3}, s{sXr}
                s_or_b32 s{sT2}, s{sT2}, s{sOr}
                s_or_b32 s{sT3}, s{sT3}, s{sOr}
                v_cndmask_b32 v{vS0+r}, v{ninf}, v{vS0+r}, s[{sT2}:{sT3}]''')
            if ps == 0:
                for r in range(0, 16, 2): k(f'v_max3_f32 v{mx}, v{mx}, v{vS0+r}, v{vS0+r+1}')
            else:
                for r in range(16): k(f'v_sub_f32 v{vS0+r}, v{vS0+r}, v{mx}')
                for r in range(16): k(f'v_exp_f32 v{vS0+r}, v{vS0+r}')
                for r in range(0, 16, 2): k(f'v_cvt_pk_bf16_f32 v{vPP+r//2}, v{vS0+r}, v{vS0+r+1}')
                self.pv(0, 0, vPP); self.pv(0, 1, vPP)
            k.flush_hazards()
            k(f's_add_u32 s{sB}, s{sB}, 1\ns_cmp_le_u32 s{sB}, 8\ns_cbranch_scc1 L_fb{ps}')
            if ps == 0:
                k(f'v_mov_b32 v{a0}, v{mx}\nv_permlane32_swap_b32 v{mx}, v{a0}\nv_max_f32 v{mx}, v{mx}, v{a0}')
                for r in range(16): k(f'v_mov_b32 v{vO+r}, 0')
        k(f's_setpc_b64 s[{sT4}:{sT5}]')

    def ldW(self, q, kap, regs):
        k = self.k; J = []
        for T in range(5):
            def f(T=T):
                k(f's_add_u32 s{sT0}, s{sWB}, {kap*5120}')
                a, off = (aL16, T*1024) if T < 4 else (aL16b, 0)
                if 'Z' in self.cfg.skip and q >= 8:
                    k(f'ds_read_b128 {vr(regs[T],4)}, v1 offset:{T*1024}'); self.toks[('w', q)] = Tok(0); return
                self.toks[('w', q)] = k(f'buffer_load_dwordx4 {vr(regs[T],4)}, v{a}, s[{S_WS}:{S_WS+3}], s{sT0} offen offset:{off} sc1')
            J.append(('w', regs[T], f))
        return J
    def ldA(self, q, kap, regs, mid=False):
        k = self.k; J = []
        for d in range(4):
            def f(d=d):
                so = sAM + d; off = kap * 1024
                if off > 3500:
                    k(f's_add_u32 s{sT0}, s{so}, {off & ~4095}'); so = sT0; off &= 4095
                if mid:
                    k(f'buffer_load_dwordx2 {vr(regs[d],2)}, v{aL8}, s[{S_WS}:{S_WS+3}], s{so} offen offset:{off} sc1')
                    self.toks[('a', q)] = k(f'buffer_load_dwordx2 {vr(regs[d]+2,2)}, v{aL8}, s[{S_WS}:{S_WS+3}], s{so} offen offset:{off+512} sc1')
                else:
                    self.toks[('a', q)] = k(f'buffer_load_dwordx4 {vr(regs[d],4)}, v{aL16}, s[{S_WS}:{S_WS+3}], s{so} offen offset:{off} sc1')
            J.append(('a', regs[d], f))
        return J
    def stage_w(self):
        k = self.k; J = []
        for q in range(4):
            for T in range(5):
                def f(q=q, T=T):
                    o = T * 1024
                    k(f's_add_u32 m0, s{sSTG}, {q*5120 + o}\ns_add_u32 s{sT0}, s{sWB}, {LATE[q]*5120 + o}')
                    k(f'buffer_load_dwordx4 v{aL16}, s[{S_WS}:{S_WS+3}], s{sT0} offen sc1 lds')
                J.append(f)
        return J
    def wo_round(self, a):
        k = self.k
        def f():
            k(f's_add_u32 m0, s{sAM+1}, {L_WO + a*4096}\ns_add_u32 s{sT0}, s{sAM+2}, {a*4096}')
            if a == 24:
                k(f's_cmp_eq_u32 s{sGW}, 3\ns_cselect_b32 s{sT1}, 1024, 0\ns_sub_u32 s{sT0}, s{sT0}, s{sT1}\ns_sub_u32 m0, m0, s{sT1}')
            self.t_wo = k(f'buffer_load_dwordx4 v{aL16}, s[{S_WS}:{S_WS+3}], s{sT0} offen sc1 lds')
        return f
    def g2_plan(self):
        self.toks = {}
        if self.S and self.cfg.s5k:
            k = self.k; self.wt = {}
            def w(j):
                def f():
                    k(f's_add_u32 s{sT0}, s{sCD}, {j*1024}')
                    self.wt[j] = k(f'buffer_load_dwordx4 {vr(112+4*j,4)}, v{aL16}, s[{S_WS}:{S_WS+3}], s{sT0} offen sc1')
                return f
            self.pf = [('w', 112 + 4*j, w(j)) for j in range(25)]
        elif self.S:
            k = self.k
            self.WS = WS = {a: (112 + 4*(a-1) if a < 15 else 168 + 4*a if a < 17 else 112 + 4*(a-3)) for a in range(1, 23)}
            self.wt = {}
            def w(a):
                def f():
                    k(f's_add_u32 s{sT0}, s{sAM+2}, {a*4096}')
                    self.wt[a] = k(f'buffer_load_dwordx4 {vr(WS[a],4)}, v{aL16}, s[{S_WS}:{S_WS+3}], s{sT0} offen sc1')
                return f
            self.pf = [('w', WS[a], w(a)) for a in sorted(WS, key=WS.get)]
        else:
            self.W = [[112 + 20*(q&3) + 4*T for T in range(5)] if not 4 <= q < 8 else [12 + 4*T for T in range(5)] for q in range(12)]
            self.A = [[192 + 16*(q&3) + 4*m for m in range(4)] for q in range(12)]
            self.pf = sum((self.ldW(q, EARLY[q], self.W[q]) for q in range(4)), []) + sum((self.ldA(q, EARLY[q], self.A[q]) for q in range(4)), [])
    def arrive(self, word, a, d):
        k = self.k
        k(f'v_mov_b32 v{d}, 1\ns_mov_b64 exec, 1')
        t = k(f'ds_add_rtn_u32 v{d}, v{a}, v{d} offset:{4*word}')
        k('s_mov_b64 exec, -1')
        return t
    def last_signals(self, tok, d, val, t):
        self.k.wait(lg=tok)
        self.flag_store(val, t, f'v_readfirstlane_b32 s{sT0}, v{d}\ns_cmp_lg_u32 s{sT0}, 7')
    def lds_add(self, word, val, a=8):
        self.k(f'v_mov_b32 v9, {val}\ns_mov_b64 exec, 1\nds_add_u32 v{a}, v9 offset:{4*word}\ns_mov_b64 exec, -1')
    def kstep(self, wregs, aregs, first, q, lds=None):
        k = self.k
        q = [j[2] if isinstance(j, tuple) else j for j in q]
        for T in range(5):
            if lds: k.wait(lg=lds[0][T])
            for mt in range(4):
                acc = vACC + 4 * (5 * mt + T)
                k(f"v_mfma_f32_16x16x32_bf16 {vr(acc,4)}, {vr(wregs[T],4)}, {vr(aregs[mt],4)}, {'0' if first else vr(acc,4)}")
                if q and (mt % 2 == 1 or len(q) > 10): q.pop(0)()
                if lds and lds[1] is not None and mt == 0 and T > 0: lds[0][T-1] = lds[1](T - 1)
        while q: q.pop(0)()
        if lds and lds[1] is not None: lds[0][4] = lds[1](4)
    def red_write(self, base):
        k = self.k
        for d in range(1, 4):
            k(f'''s_add_u32 s{sT0}, s{sGW}, {d}
            s_and_b32 s{sT0}, s{sT0}, 3
            s_mul_i32 s{sT0}, s{sT0}, 15360
            s_add_u32 s{sT0}, s{sT0}, {base + (d-1)*5120}
            v_add_u32 v8, s{sT0}, v{aL16}''')
            for T in range(5): r = k(f'ds_write_b128 v8, {vr(vACC + 4*(5*d+T),4)} offset:{T*1024}')
        return r
    def red_read(self, base):
        k = self.k
        k(f's_mul_i32 s{sT0}, s{sGW}, 15360\ns_add_u32 s{sT0}, s{sT0}, {base}\nv_add_u32 v8, s{sT0}, v{aL16}')
        toks = []
        for T in range(5):
            for d in range(3): r = k(f'ds_read_b128 {vr(vACC + 20 + 4*(5*d+T),4)}, v8 offset:{d*5120 + T*1024}')
            toks.append(r)
        return toks
    def sum4(self, T):
        k = self.k
        for e in range(4):
            a = vACC + 4*T + e
            k(f'v_add_f32 v{a}, v{a}, v{a+20}\nv_add_f32 v{a+40}, v{a+40}, v{a+60}')
        for e in range(4):
            a = vACC + 4*T + e
            k(f'v_add_f32 v{a}, v{a}, v{a+40}')
    def lds_wait(self, word, thr, slp, a=8):
        k = self.k; self.uid += 1; u = self.uid
        k.label(f'L_lw{u}')
        k(f'ds_read_b32 v9, v{a} offset:{4*word}\ns_waitcnt lgkmcnt(0)\nv_readfirstlane_b32 s{sT0}, v9\ns_cmp_ge_u32 s{sT0}, {thr}\ns_cbranch_scc1 L_lwd{u}')
        if slp: k(f's_sleep {slp}')
        k(f's_branch L_lw{u}')
        k.label(f'L_lwd{u}')
        k.dlg = k.nlg

    def back_half(self):
        k = self.k; c = self.cfg; S = self.S
        toks = self.toks
        k.c('==== epilogue of pass 3 (SwiGLU)')
        pf = [j[2] for j in self.pf]
        if S and c.bprio: k('s_setprio 1')
        J = self.job_gu(0, sHL) + self.job_gu(1, sHL)
        for n, j in enumerate(J):
            j()
            ep = c.epfb if S else c.epf
            if ep and n % ep == ep - 1 and pf: pf.pop(0)()
        self.t_hl = self.t_store
        k.wait(vm=self.t_kv, lg='all')
        k('s_barrier')
        self.stamp()
        if S:
            self.b_pre(); self.bq += pf
            pf = self.stage_w() + ([] if c.s5k else [self.wo_round(0), self.wo_round(23), self.wo_round(24)]) + self.bq[:c.bin]
            self.bq = self.bq[c.bin:]
            self.attention(pf)
            self.stamp()
            self.setBk() if c.s5k else self.setB()
        else:
            st = {}
            def hook():
                if c.g1map:
                    k(f"""v_lshrrev_b32 v10, 5, v{vL}
                    v_lshlrev_b32 v10, 7, v10
                    v_bfe_u32 v11, v{vL}, 4, 1
                    v_lshl_add_u32 v10, v11, 14, v10
                    s_lshl2_add_u32 s{sT0}, s{sPL2}, s{sGW}
                    s_lshl_b32 s{sPL2}, s{sT0}, 8""")
                else:
                    k(f"""v_lshrrev_b32 v10, 4, v{vL}
                    v_lshlrev_b32 v10, 13, v10
                    s_lshr_b32 s{sT0}, s{sPL2}, 3
                    s_lshl1_add_u32 s{sT0}, s{sGW}, s{sT0}
                    s_and_b32 s{sT1}, s{sPL2}, 7
                    s_lshl3_add_u32 s{sT0}, s{sT1}, s{sT0}
                    s_lshl_b32 s{sPL2}, s{sT0}, 7""")
                k(f'v_add_u32 v1, s{sSTG}, v{aL16}')
                if c.hp < 0: self.t_hp = k(f'buffer_load_dword v11, v10, s[{S_WS}:{S_WS+3}], s{sPL2} offen sc1')
            self.attention(pf, hook)
            self.stamp()
            self.setA()

    def setA(self):
        k = self.k; c = self.cfg
        W, A, toks = self.W, self.A, self.toks
        KAP = EARLY + LATE
        k.c('==== f = h @ w_down')
        k(f'v_mov_b32 v8, {L_CNT}')
        def bo():
            k.wait(vm=self.t_o)
            self.t_arr = self.arrive(5, 8, 2)
        if c.fair: k('s_setprio 0')
        pend = []; wq8 = []
        for q in range(5):
            self.stamp('g2')
            if q == c.bo_at: bo()
            if q == c.hp: self.t_hp = k(f'buffer_load_dword v11, v10, s[{S_WS}:{S_WS+3}], s{sPL2} offen sc1')
            if q == c.hc: self.poll_check(self.t_hp, 11, 10, S_WS, f's{sPL2}', 4, role=False, slp=c.slp)
            J = []
            if q >= 1:
                pend += self.ldA(q + 3, KAP[q + 3], A[q + 3])
                if q >= c.hc: J += pend; pend = []
                wq8 += self.ldW(q + 7, KAP[q + 7], W[q + 7])
                J += wq8[:c.wn[q]]; wq8 = wq8[c.wn[q]:]
            if q == c.bo_at: J.insert(min(2, len(J)), lambda: self.last_signals(self.t_arr, 2, 5, 4))
            if q < 4:
                k.wait(vm=toks[('a', q)])
                self.kstep(W[q], A[q], q == 0, J)
            else:
                self.lds_wait(5, 8, 1)
                rd = lambda q: (lambda T: k(f'ds_read_b128 {vr(12+4*T,4)}, v1 offset:{(q-4)*5120 + T*1024}'))
                lt = [rd(4)(T) for T in range(5)]
                carry = J
        self.stamp()
        for q in range(4, 12 - c.nfuse):
            nx = q + 3
            J = carry if q == 4 else (self.ldA(nx, KAP[nx], A[nx]) if nx < 12 else [])
            if q > 4:
                J = wq8[:c.wn[q]] + J; wq8 = wq8[c.wn[q]:]
            assert q < 7 or len(wq8) <= 5 * (10 - q)
            if ('a', q) not in toks:
                for f in J: (f[2] if isinstance(f, tuple) else f)()
                J = []
            if q == 8:
                for d in range(1, 4):
                    J.append(lambda d=d: k(f's_add_u32 s{sT0}, s{sGW}, {d}\ns_and_b32 s{sT0}, s{sT0}, 3\ns_mul_i32 s{sT0}, s{sT0}, 15360\ns_add_u32 s{sT0}, s{sT0}, {L_RF + (d-1)*5120}\nv_add_u32 v{11+d}, s{sT0}, v{aL16}'))
                J.append(lambda: k(f's_mul_i32 s{sT1}, s{sGW}, 15360\ns_add_u32 s{sT1}, s{sT1}, {L_RF}\nv_add_u32 v10, s{sT1}, v{aL16}'))
            if q == 11 - c.nfuse:
                def c1(): self.t_c1 = k('ds_read_b32 v9, v8 offset:4')
                J.append(c1)
            k.wait(vm=max(toks[('a', q)].n, toks[('w', q)].n if q >= 8 else 0))
            self.kstep(W[q], A[q], False, J, lds=(lt, rd(q + 1) if q < 7 else None) if q < 8 else None)
            if q == 7: self.lds_add(1, 0x100)
            if q == c.og: self.lds_add(8, 1)
            if q in (4, 5, 6, 7, 8): self.stamp('g2')
        assert not wq8
        k.wait(lg=self.t_c1)
        k(f'v_readfirstlane_b32 s{sT0}, v9\ns_cmp_ge_u32 s{sT0}, 0x400\ns_cbranch_scc1 L_stg')
        self.lds_wait(1, 0x400, 1)
        k.label('L_stg')
        wq = []; since = 0
        for d in (1, 2, 3, 0):
            for q in range(12 - c.nfuse, 12):
                k.wait(vm=max(toks[('a', q)].n, toks[('w', q)].n))
                for T in range(5):
                    acc = vACC + 4 * (5 * d + T)
                    k(f'v_mfma_f32_16x16x32_bf16 {vr(acc,4)}, {vr(W[q][T],4)}, {vr(A[q][d],4)}, {vr(acc,4)}')
                    since += 1
                    if wq and wq[0][0] != d and since >= c.nfuse: k(wq.pop(0)[1]); since = 0
                    if d and q == 11: wq.append((d, f'ds_write_b128 v{11+d}, {vr(acc,4)} offset:{T*1024}'))
        while wq: k(wq.pop(0)[1])
        assert not wq
        self.stamp()
        self.stamp('g2')
        self.lds_add(0, 1)
        self.lds_wait(0, 4, 0)
        tr = []
        for T in range(5):
            for d in range(3): r = k(f'ds_read_b128 {vr(vACC + 20 + 4*(5*d+T),4)}, v10 offset:{d*5120 + T*1024}')
            tr.append(r)
        if c.hsc: k(f's_mov_b32 s{sT1}, {hex(f2u(-LOG2E))}')
        k(f's_lshl_b32 s{sT0}, s{sGW}, 2\nv_add_u32 v8, s{sT0}, v8')
        for T in range(5):
            k.wait(lg=tr[T]); self.sum4(T)
            a = vACC + 4*T; b = a + 20
            if c.hsc:
                for e in range(4): k(f'v_exp_f32 v{b+e}, v{a+e}')
                for e in range(4): k(f'v_fma_f32 v{b+e}, v{b+e}, s{sT1}, s{sT1}')
            else:
                for e in range(4): k(f'v_mul_f32 v{b+e}, {hex(f2u(-LOG2E))}, v{a+e}')
                for e in range(4): k(f'v_exp_f32 v{b+e}, v{b+e}')
                for e in range(4): k(f'v_add_f32 v{b+e}, 1.0, v{b+e}')
            for e in range(4): k(f'v_rcp_f32 v{b+e}, v{b+e}')
            for e in range(4): k(f'v_mul_f32 v{a+e}, v{a+e}, v{b+e}')
            k(f'ds_write_b128 v10, {vr(a,4)} offset:{T*1024}')
            if c.gcnt == 2 and T in (1, 3): self.lds_add(12, 1)
        if c.gcnt:
            self.lds_add(12, 1)
            self.stamp('g2')
        else:
            k.wait(lg='all')
            self.stamp('g2')
            k('s_barrier')
        self.stamp(); self.stamp('tl')
        if 'tl' in c.grps: k('s_waitcnt lgkmcnt(0)')

    def b_pre(self):
        k = self.k; c = self.cfg
        XR, F99 = (244 if c.s5k else 208), 240
        k(f"""v_lshrrev_b32 v8, 2, v{vL}
        v_mul_u32_u24 v8, 1280, v8
        v_and_b32 v9, 3, v{vL}
        v_lshl_add_u32 v1, v9, 4, v8
        v_lshl_add_u32 v10, v9, 3, v8
        s_lshl2_add_u32 s{sT0}, s{sR2}, s{sGW}
        s_mul_i32 s{sT0}, s{sT0}, {16*1280}
        s_mul_i32 s{sT1}, s{sC2}, 160
        s_add_u32 s{sT0}, s{sT0}, s{sT1}
        s_bitcmp1_b32 s{sC2}, 0
        s_cselect_b32 s{sT1}, 32, 0
        s_cselect_b32 s{sT2}, 0, 128
        s_add_u32 s{sXO}, s{sT0}, s{sT1}
        s_add_u32 s{sWO_}, s{sT0}, s{sT2}""")
        def f99():
            k(f's_add_u32 s{sT0}, s{sCD}, {99*1024}')
            self.wt['x'] = k(f'buffer_load_dwordx4 {vr(F99,4)}, v{aL16}, s[{S_WS}:{S_WS+3}], s{sT0} offen sc1')
        self.bq = [lambda: k(f'buffer_load_dwordx4 {vr(XR,4)}, v1, s[{S_X}:{S_X+3}], s{sXO} offen'),
                   lambda: k(f'buffer_load_dwordx4 {vr(XR+4,4)}, v1, s[{S_X}:{S_X+3}], s{sXO} offen offset:64'),
                   lambda: self.wt.__setitem__('x', k(f'buffer_load_dwordx2 {vr(XR+8,2)}, v10, s[{S_X}:{S_X+3}], s{sWO_} offen'))] + ([] if c.s5k else [f99])
    def setBk(self):
        k = self.k; c = self.cfg; wt = self.wt; toks = self.toks
        XR = 244; L_RS = L_KV
        W = [[112 + 20*q + 4*T for T in range(5)] for q in range(5)]
        sl = [212 + 4*j for j in range(8)] + [12 + 4*j for j in range(5)] + W[0] + W[1][:2]
        A = [sl[4*q:4*q+4] for q in range(5)]
        self.stamp('g2')
        k(f'v_mov_b32 v8, {L_CNT}')
        for f in self.bq: f()
        self.stamp('g2')
        k(f"""v_lshlrev_b32 v{aL8}, 3, v{vL}
        v_lshrrev_b32 v2, 5, v{vL}
        v_bfe_u32 v11, v{vL}, 4, 1
        v_lshl_add_u32 v2, v11, 7, v2
        s_lshl2_add_u32 s{sT0}, s{sPL2}, s{sGW}
        s_lshl_b32 s{sT0}, s{sT0}, 1
        v_add_lshl_u32 v2, v2, s{sT0}, 7""")
        k.wait(vm=wt['x'])
        k(f'v_and_b32 v9, 15, v{vL}\nv_lshrrev_b32 v7, 4, v{vL}\nv_lshl_add_u32 v9, v9, 2, v7\nv_lshlrev_b32 v9, 2, v9')
        for e in range(10): k(f'ds_bpermute_b32 v{XR+e}, v9, v{XR+e}')
        k(f'v_and_b32 v7, 3, v{vL}\nv_lshlrev_b32 v7, 6, v7\nv_and_or_b32 v7, v{vL}, 60, v7')
        k.wait(vm=self.t_o)
        t = self.arrive(5, 8, vACC); self.last_signals(t, vACC, 5, vACC + 2)
        k(f's_setprio {c.bprio2}')
        for _ in range(4): self.stamp('g2')
        self.lds_wait(8, 4, 2)
        tp = k(f'buffer_load_dword v11, v2, s[{S_WS}:{S_WS+3}], 0 offen sc1')
        self.stamp('g2')
        self.poll_check(tp, 11, 2, S_WS, '0', 5, role=False, slp=c.slp)
        self.stamp(); self.stamp('g2')
        k(f's_setprio {c.bp5}')
        LD = sum((self.ldA(q, q, A[q], mid=(q == 4)) for q in range(5)), [])
        for f in LD[:13]: f[2]()
        if c.bp4 is not None: k(f's_setprio {c.bp4}')
        ad = (2, 4, 5)
        def addr(d): return lambda: k(f's_add_u32 s{sT0}, s{sGW}, {d}\ns_and_b32 s{sT0}, s{sT0}, 3\ns_mul_i32 s{sT0}, s{sT0}, 15360\ns_add_u32 s{sT0}, s{sT0}, {L_RS + (d-1)*5120}\nv_add_u32 v{ad[d-1]}, s{sT0}, v{aL16}')
        self.stamp('g2')
        for q in range(5 - c.nfb):
            k.wait(vm=toks[('a', q)])
            self.kstep(W[q], A[q], q == 0, {0: [addr(1), addr(2), addr(3)], 1: LD[13:18], 2: LD[18:]}.get(q, []))
        self.stamp('g2')
        wq = []; since = 0; XU = W[2][0]
        un = [f'v_lshlrev_b32 v{XU+2*e}, 16, v{XR+e}\nv_and_b32 v{XU+2*e+1}, 0xffff0000, v{XR+e}' for e in range(10)]
        for d in (1, 2, 3, 0):
            for q in range(5 - c.nfb, 5):
                k.wait(vm=toks[('a', q)])
                for T in range(5):
                    acc = vACC + 4 * (5 * d + T)
                    k(f'v_mfma_f32_16x16x32_bf16 {vr(acc,4)}, {vr(W[q][T],4)}, {vr(A[q][d],4)}, {vr(acc,4)}')
                    since += 1
                    if wq and wq[0][0] != d and since >= c.nfb: k(wq.pop(0)[1]); since = 0
                    if d and q == 4: wq.append((d, f'ds_write_b128 v{ad[d-1]}, {vr(acc,4)} offset:{T*1024}'))
                    if un: k(un.pop(0))
        while wq: k(wq.pop(0)[1])
        self.stamp(); self.stamp('g2')
        self.lds_add(2, 1)
        k(f's_mul_i32 s{sT1}, s{sGW}, 15360\nv_add_u32 v11, s{sT1}, v{aL16}\nv_add_u32 v2, {L_RS}, v11')
        self.lds_wait(2, 4, 0)
        tr = []
        for T in range(5):
            for d in range(3): r = k(f'ds_read_b128 {vr(vACC + 20 + 4*(5*d+T),4)}, v2 offset:{d*5120 + T*1024}')
            tr.append(r)
        for T in range(5):
            k.wait(lg=tr[T]); self.sum4(T)
        k(f's_lshl_b32 s{sT0}, s{sGW}, 2\nv_add_u32 v8, s{sT0}, v8')
        self.lds_wait(12, 1, 0)
        self.stamp(); self.stamp('g2'); self.stamp('tl')
        GR = W[3][0]; PK = W[4][0]
        tr = [k(f'ds_read_b128 {vr(GR+4*T,4)}, v11 offset:{L_RF + T*1024}') for T in range(5)]
        tb = []
        for T in range(5):
            k.wait(lg=tr[T])
            for e in range(4): k(f'v_fmac_f32 v{XU+4*T+e}, v{vACC+4*T+e}, v{GR+4*T+e}')
            for e in range(2): k(f'v_cvt_pk_bf16_f32 v{PK+2*T+e}, v{XU+4*T+2*e}, v{XU+4*T+2*e+1}')
            for e in range(2): r = k(f'ds_bpermute_b32 v{XR+2*T+e}, v7, v{PK+2*T+e}')
            tb.append(r)
        k.wait(lg=tb[1]); k(f'buffer_store_dwordx4 {vr(XR,4)}, v1, s[{S_OUT}:{S_OUT+3}], s{sXO} offen {c.outf}')
        k.wait(lg=tb[3]); k(f'buffer_store_dwordx4 {vr(XR+4,4)}, v1, s[{S_OUT}:{S_OUT+3}], s{sXO} offen offset:64 {c.outf}')
        k.wait(lg=tb[4]); k(f'buffer_store_dwordx2 {vr(XR+8,2)}, v10, s[{S_OUT}:{S_OUT+3}], s{sWO_} offen {c.outf}')
    def setB(self):
        k = self.k; c = self.cfg
        OF = [112 + 4*q for q in range(20)]
        slot = [52 + 4*j for j in range(15)] + [192 + 4*j for j in range(12)] + [244, 248, 252]; NS = 30
        F99 = 240; XU = 12; XR = 208; WS = self.WS; wt = self.wt
        k.c('==== s = o @ wo, then out = x + s * silu(f)')
        self.stamp('g2')
        k(f'v_mov_b32 v8, {L_CNT}')
        for f in self.bq: f()
        self.stamp('g2')
        k(f"""v_lshlrev_b32 v{aL8}, 3, v{vL}
        v_lshrrev_b32 v2, 3, v{vL}
        v_bfe_u32 v11, v{vL}, 2, 1
        v_lshl_add_u32 v2, v11, 7, v2
        s_lshl_b32 s{sT0}, s{sPL2}, 3
        v_add_lshl_u32 v2, v2, s{sT0}, 7
        v_add_u32 v4, {L_WO}, v{aL16}
        v_add_u32 v5, s{sAM+1}, v4
        v_add_u32 v11, 4096, v5""")
        k.wait(vm=wt['x'])
        k(f'v_and_b32 v9, 15, v{vL}\nv_lshrrev_b32 v7, 4, v{vL}\nv_lshl_add_u32 v9, v9, 2, v7\nv_lshlrev_b32 v9, 2, v9')
        for e in range(10): r = k(f'ds_bpermute_b32 v{vACC+e}, v9, v{XR+e}')
        k(f'v_and_b32 v7, 3, v{vL}\nv_lshlrev_b32 v7, 6, v7\nv_and_or_b32 v7, v{vL}, 60, v7')
        k.wait(lg=r)
        for e in range(10):
            k(f'v_lshlrev_b32 v{XU+2*e}, 16, v{vACC+e}\nv_and_b32 v{XU+2*e+1}, 0xffff0000, v{vACC+e}')
        def oarr():
            k.wait(vm=self.t_o)
            self.t_arr = self.arrive(5, 8, vACC)
        if c.boa == 0: oarr(); self.last_signals(self.t_arr, vACC, 5, vACC + 2)
        self.lds_wait(7, 8, 1)
        k(f's_setprio {c.bprio2}')
        self.stamp('g2')
        for a in range(1, 17):
            if a == c.boa: oarr()
            k.wait(vm=wt[a])
            k(f'ds_write_b128 v11, {vr(WS[a],4)} offset:{(a-1)*4096}')
            if a == c.boa: self.last_signals(self.t_arr, vACC, 5, vACC + 2)
        self.lds_add(2, 1)
        self.stamp('g2')
        self.lds_wait(2, 4, 1)
        lt = {}
        def rd(j):
            p = j - 68 if 68 <= j < 92 else j
            lt[j] = k(f'ds_read_b128 {vr(slot[j % NS],4)}, v{4 + (p >> 6)} offset:{(p & 63)*1024}')
        for j in range(NS): rd(j)
        self.lds_add(4, 1)
        self.stamp('g2')
        self.lds_wait(4, 4, 1)
        for a in range(17, 23):
            k.wait(vm=wt[a])
            k(f'ds_write_b128 v5, {vr(WS[a],4)} offset:{(a-17)*4096}')
        self.lds_add(3, 1)
        k(f'v_add_u32 v5, 65536, v4')
        self.stamp('g2')
        if 'Z' in c.skip:
            for a in list(range(8, 17)) * 2 + [9, 10]: self.wo_round(a)()
        self.lds_wait(8, 4, 2)
        tp = k(f'buffer_load_dword v11, v2, s[{S_WS}:{S_WS+3}], 0 offen sc1')
        self.stamp('g2')
        self.poll_check(tp, 11, 2, S_WS, '0', 5, role=False, slp=c.slp)
        self.stamp()
        self.stamp('g2')
        ot = []
        def old(q):
            so = sAM + 3
            if q % 4 == 0: k(f's_add_u32 s{so}, s{sAM}, {q*1024}')
            off = (q & 3) * 1024
            if q % 5 == 4:
                k(f'buffer_load_dwordx2 {vr(OF[q],2)}, v{aL8}, s[{S_WS}:{S_WS+3}], s{so} offen offset:{off} sc1')
                ot.append(k(f'buffer_load_dwordx2 {vr(OF[q]+2,2)}, v{aL8}, s[{S_WS}:{S_WS+3}], s{so} offen offset:{off+512} sc1'))
            else:
                ot.append(k(f'buffer_load_dwordx4 {vr(OF[q],4)}, v{aL16}, s[{S_WS}:{S_WS+3}], s{so} offen offset:{off} sc1'))
        k(f's_setprio {c.bp5}')
        for q in range(c.oa): old(q)
        if c.bp4 is not None: k(f's_setprio {c.bp4}')
        for j in range(100):
            q, T = divmod(j, 5)
            if j in (0, 50, 99): self.stamp('g2')
            if j + NS - 1 == 68: self.lds_wait(3, 4, 0)
            if j == 80: k(f's_mul_i32 s{sT1}, s{sGW}, 15360\ns_add_u32 s{sT1}, s{sT1}, {L_RF}\nv_add_u32 v11, s{sT1}, v{aL16}\ns_lshl_b32 s{sT0}, s{sGW}, 2\nv_add_u32 v8, s{sT0}, v8')
            if j >= 1 and j + NS - 1 < 99: rd(j + NS - 1)
            k.wait(vm=ot[q], lg=lt[min(j + 4, 98)] if T == 0 else None)
            acc = vACC + 4 * T
            k(f"v_mfma_f32_16x16x32_bf16 {vr(acc,4)}, {vr(slot[j % NS] if j < 99 else F99,4)}, {vr(OF[q],4)}, {'0' if q == 0 else vr(acc,4)}")
            if T == 4 and len(ot) < 20: old(len(ot))
        self.stamp()
        if c.gcnt: self.lds_wait(12, 1, 0)
        else: k('s_barrier')
        self.stamp()
        self.stamp('g2'); self.stamp('tl')
        GR = OF[0]; tb = {}
        ST = {1: f'buffer_store_dwordx4 {vr(XR,4)}, v1, s[{S_OUT}:{S_OUT+3}], s{sXO} offen {c.outf}',
              3: f'buffer_store_dwordx4 {vr(XR+4,4)}, v1, s[{S_OUT}:{S_OUT+3}], s{sXO} offen offset:64 {c.outf}',
              4: f'buffer_store_dwordx2 {vr(XR+8,2)}, v10, s[{S_OUT}:{S_OUT+3}], s{sWO_} offen {c.outf}'}
        for n, grp in enumerate(((0, 1), (2, 3), (4,)) if c.gcnt == 2 else ((0, 1, 2, 3, 4),)):
            if n:
                self.lds_wait(12, n + 1, 0)
                k(ST.pop(grp[0] - 1))
            tr = {T: k(f'ds_read_b128 {vr(GR+4*T,4)}, v11 offset:{T*1024}') for T in grp}
            for T in grp:
                k.wait(lg=tr[T])
                for e in range(4): k(f'v_fmac_f32 v{XU+4*T+e}, v{vACC+4*T+e}, v{GR+4*T+e}')
                for e in range(2): k(f'v_cvt_pk_bf16_f32 v{XR+12+2*T+e}, v{XU+4*T+2*e}, v{XU+4*T+2*e+1}')
                for e in range(2): tb[T] = k(f'ds_bpermute_b32 v{XR+2*T+e}, v7, v{XR+12+2*T+e}')
        for T in sorted(ST):
            k.wait(lg=tb[T]); k(ST[T])

    def finish(self):
        k = self.k; c = self.cfg
        if c.stamps:
            self.stamp('tl')
            if 'tl' in c.grps: k('s_waitcnt lgkmcnt(0)')
            k('s_waitcnt vmcnt(0)')
            self.stamp('fin')
            k(f's_waitcnt lgkmcnt(0)\ns_mov_b32 s{sST0 + self.nst - 1}, s{sSTT}')
            k(f's_lshl3_add_u32 s{sT0}, s2, s{sW}\ns_lshl_b32 s{sT0}, s{sT0}, 6\ns_add_u32 s{sT0}, s{sT0}, {STAMP}\nv_mov_b32 v1, 0\ns_mov_b64 exec, 1')
            if self.nst < 14: k(f'v_mov_b32 v2, s101\nbuffer_store_dword v2, v1, s[{S_WS}:{S_WS+3}], s{sT0} offen offset:60')
            for n in range(self.nst):
                k(f'v_mov_b32 v2, s{sST0+n}\nbuffer_store_dword v2, v1, s[{S_WS}:{S_WS+3}], s{sT0} offen offset:{4*n}')
        k('s_endpgm')

    def build(self):
        k = self.k
        self.prologue()
        pre = k.snap(); nst = self.nst
        st = []
        self.S = 1; self.stok = {}
        gb = self.phase0B(); next(gb)
        mid = (k.snap(), self.nst, self.stok)
        self.S = 0; k.restore(pre); self.nst = nst; self.stok = {}
        k.label('L_setA')
        self.phase0A()
        k.flush_hazards()
        k('s_bitcmp1_b32 s2, 6\ns_cbranch_scc1 L_m01\ns_branch L_m00' if self.cfg.dup else 's_branch L_mainA')
        st.append((k.snap(), self.nst, self.stok))
        self.S = 1; k.restore(mid[0]); self.nst, self.stok = mid[1:]
        for _ in gb: pass
        k.flush_hazards()
        st.append((k.snap(), self.nst, self.stok))
        for S in (() if self.cfg.dup else (1, 0)):
            self.S = S
            snap, self.nst, self.stok = st[S]; k.restore(snap)
            if not S: k.label('L_mainA')
            self.gemm1()
            self.back_half()
            self.finish()
        if self.cfg.dup:
            import re
            cs0 = dict(self.cs_tok)
            k(f's_bitcmp1_b32 s2, 6\ns_cbranch_scc1 L_m11')
            for S, typ in ((1, 0), (0, 0), (1, 1), (0, 1)):
                self.S = S; self.ftyp = typ
                snap, self.nst, stok = st[S]; k.restore(snap); self.stok = dict(stok); self.cs_tok = dict(cs0)
                k.label(f'L_m{S}{typ}')
                n0 = len(k.out)
                self.gemm1(); self.back_half(); self.finish()
                for t in self.tail:
                    k.win = []; t(k)
                self.tail = []
                own = {l[:-1] for l in k.out[n0:] if l.endswith(':')}
                k.out[n0:] = [re.sub(r'L_\w+', lambda m: m.group(0) + f'_{typ}' if m.group(0) in own else m.group(0), l) for l in k.out[n0:]]
        self.tail.append(self.fallback)
        for t in self.tail:
            k.win = []
            t(k)
        k.label('L_end')
        k('s_endpgm')
        sk = self.cfg.skip
        if 'm' in sk: k.out = [l for l in k.out if 'v_mfma' not in l]
        if 'M' in sk: k.out = [l for l in k.out if 'v_mfma_f32_16x16x32' not in l]
        if 'e' in sk: k.out = [l for l in k.out if 'v_exp_f32' not in l and 'v_rcp_f32' not in l]
        if 'S' in sk: k.out = [l for l in k.out if not ('buffer_store_dwordx4' in l and 'sc1' in l)]
        if 'L' in sk: k.out = [l for l in k.out if not ('buffer_load_dwordx4' in l and 'sc1' in l)]
        import re
        def drop(pat): k.out = [l for l in k.out if not re.search(pat, l)]
        if 'X' in sk: drop(r'buffer_load_dwordx4 v85, s\[4:7\]')
        if 'U' in sk: drop(r'buffer_load_dwordx4 v5, s\[64:67\]')
        if 'V' in sk: drop(r'buffer_load_dwordx4 v5, s\[16:19\]')
        if 'K' in sk: drop(r'buffer_load_dwordx4 v28, s\[20:23\]')
        if 'G' in sk: drop(r'buffer_load_dwordx4 v6, s\[20:23\], s58 offen sc1 lds')
        if 'H' in sk: drop(r'buffer_load_dwordx4 v\[(19[2-9]|20[0-7]|22[4-9]|23[0-9]):\d+\], v6, s\[20:23\], s\d+ offen offset')
        if 'O' in sk: drop(r'buffer_load_dwordx4 v\[\d+:\d+\], v6, s\[20:23\], s43 offen')
        if 'R' in sk: drop(r'ds_read_b64_tr_b16 v\[(34|38|42|46):')
        if 'r' in sk:
            drop(r'ds_read_b64_tr_b16 v\[(36|38|44|46):\d+\], v[1-3] offset:(?!1[0-9]{5})')
            k.out = [l.replace('v[36:39], v[', 'v[40:43], v[').replace('v[44:47], v[', 'v[32:35], v[') if 'v_mfma_f32_32x32x16' in l and 'v[96:111], v' not in l else l for l in k.out]
        if 'Y' in sk: drop(r'^\s*(ds_|s_barrier|s_branch L_lw|s_sleep|v_(exp|rcp|cvt_pk|mul_f32|fma_f32|fmac|add_f32|permlane|dot2c)|s_waitcnt lgkmcnt\([1-9])')
        if 'W' in sk: drop(r's_waitcnt vmcnt\([1-9]')
        if 'D' in sk: k.out = [l for l in k.out if not ('buffer_load_dwordx4' in l and 'lds' in l and 'sc1' not in l)]
        return self.wrap()

    def wrap(self):
        hdr = ''.join(open('recurrent_scan__sliding_block__swiglu_ffn__prompt.s.ref').readlines()[:11]) if self.cfg.header else ''
        return f'''{hdr}; @launch grid=(256,1,1) block=(512,1,1) lds={LDS_BYTES}
.amdgcn_target "amdgcn-amd-amdhsa--gfx950"{DOC}.text
.p2align {self.cfg.al}
{self.cfg.pad}.globl {KN}
.p2align 8
.type {KN},@function
{KN}:
{self.k.text()}.section .rodata,"a"
.p2align 6
.amdhsa_kernel {KN}
  .amdhsa_next_free_vgpr 256
  .amdhsa_next_free_sgpr 102
  .amdhsa_accum_offset 256
  .amdhsa_group_segment_fixed_size 0
  .amdhsa_kernarg_size 80
  .amdhsa_user_sgpr_count 2
  .amdhsa_user_sgpr_kernarg_segment_ptr 1
  .amdhsa_system_sgpr_workgroup_id_x 1
.end_amdhsa_kernel
'''
Cfg.clrwg = 0; Cfg.rrA = (0, 2, 4, 6); Cfg.rrB = (1, 3, 5, 7); Cfg.rot = None; Cfg.wn = (0,5,0,3,3,3,3,3,0,0,0,0); Cfg.gfA = None; Cfg.gfB = None; Cfg.gf0 = 0; Cfg.dup = 0; Cfg.code = (); Cfg.cnd = 0; Cfg.cnt = 0; Cfg.hsc = 0; Cfg.s5k = 0; Cfg.nfb = 2; Cfg.sm = 'q'; Cfg.kA = 'e'; Cfg.kB = 'p'; Cfg.hA = 'q'; Cfg.hB = 'q'; Cfg.dA = 'qe'; Cfg.dB = 'qp'; Cfg.c1 = 21; Cfg.c3 = 23; Cfg.ab = 9; Cfg.aq = 20; Cfg.c2b = 9; Cfg.wts = (0.5,1,2,2); Cfg.tilt = 0; Cfg.gainb = 1.0; Cfg.m16 = 1; Cfg.gain = 1.0; Cfg.ec = 19; Cfg.g0 = 16; Cfg.hs = 49152; Cfg.pkm = 0; Cfg.fin = 1; Cfg.pka = 2; Cfg.pkn = 1; Cfg.slot0 = (0,0,0,0,1,1,1,1); Cfg.slot2 = (2,)*8; Cfg.slot1 = (5,6)*4; Cfg.u1 = 2; Cfg.u2 = 5; Cfg.bpos = (0,1,1); Cfg.sb = 2; Cfg.jit = None; Cfg.al = 12; Cfg.pad = ''; Cfg.pknt = 'nt'; Cfg.gcnt = 1; Cfg.idle = None; Cfg.og = 7; Cfg.boa = 0; Cfg.fair = 1; Cfg.fairA = (3,3,2,2,1,1,0,0); Cfg.fairB = (3,3,3,2,2,1,1,1); Cfg.ed = 4; Cfg.eap = 1; Cfg.eb = 14; Cfg.hoistb = 2; Cfg.epfb = 0; Cfg.bp5 = 0; Cfg.nfuse = 2; Cfg.bin = 18; Cfg.bn1 = 99; Cfg.bn2 = 0; Cfg.g1map = 0; Cfg.stf = 'sc1'; Cfg.xp = 3; Cfg.rv = 2; Cfg.bp4 = 0; Cfg.bp3 = 99; Cfg.bh_chk = 5; Cfg.touch = 0; Cfg.tstep = 1; Cfg.bnp = 30; Cfg.op = 12; Cfg.oa = 14; Cfg.bprio2 = 0; Cfg.blast = 1; Cfg.hp = 0; Cfg.hc = 2; Cfg.alast = 0; Cfg.nslot = 2; Cfg.dp1 = 2; Cfg.dp2 = 3; Cfg.dpx = 9; Cfg.bprio = 1; Cfg.w0early = 1; Cfg.dm1 = 2; Cfg.dm2 = 0; Cfg.skip = ''; Cfg.bh_skew = 0; Cfg.bdefer = 10; Cfg.ogate = 0; Cfg.outf = ''

def make(**kw):
    c = Cfg()
    for a, b in kw.items():
        assert hasattr(c, a), a
        if a in ('gfA', 'gfB') and b: b = {int(x): y for x, y in b.items()}
        setattr(c, a, b)
    g0 = Gen(c); g0.build()
    g = Gen(c); g.known = g0.counts
    return g.build(), g

if __name__ == '__main__':
    s, g = make(stamps=True)
    open('k.s', 'w').write(s)
    print(g.k.count, 'nops', g.k.nops)
```
